```python
import torch

def _softmax(x, axis=-1):
    return torch.softmax(x, dim=axis)

def _gelu(x):
    return torch.nn.functional.gelu(x, approximate='tanh')

def _silu(x):
    return torch.nn.functional.silu(x)

def _sigmoid(x):
    return torch.sigmoid(x)

def _layernorm(x, axis=-1, eps=1e-05):
    m = x.mean(dim=axis, keepdim=True)
    v = x.var(dim=axis, keepdim=True, unbiased=False)
    return (x - m) / torch.sqrt(v + eps)

def _scatter_add(tgt, idx, src, axis=0):
    return tgt.clone().index_add_(axis, idx, src)

def _segment_sum(src, seg, n):
    out = torch.zeros((n,) + src.shape[1:], dtype=src.dtype)
    return out.index_add_(0, seg, src)

def _pad(x, pw):
    flat = tuple((v for pair in reversed(pw) for v in pair))
    return torch.nn.functional.pad(x, flat)
kernel_name = 'concat_heads__memory_aug_recurrent_mem_tr__linear_attn_block__prompt'

def setup_inputs():

    _w = lambda a: (lambda t: t.to(torch.bfloat16) if t.is_floating_point() else t)(torch.as_tensor(a))

    def _A_setup():
        B, S, Dm = (1, 2048, 1024)
        H, Dh = (32, 128)
        M, seg = (8, 32)
        seg = min(seg, S)
        S = S // seg * seg
        return {'x': _w((lambda *s: torch.randn(*s, dtype=torch.bfloat16) * 0.05)(B, S, Dm)), 'mem0': _w((lambda *s: torch.randn(*s, dtype=torch.bfloat16) * 0.8)(B, M, Dm)), 'Wq': _w((lambda *s: torch.randn(*s, dtype=torch.bfloat16) * 3.2)(Dm, H, Dh) * Dm ** (-0.5)), 'Wk': _w((lambda *s: torch.randn(*s, dtype=torch.bfloat16) * 3.2)(Dm, H, Dh) * Dm ** (-0.5)), 'Wv': _w((lambda *s: torch.randn(*s, dtype=torch.bfloat16) * 0.8)(Dm, H, Dh) * Dm ** (-0.5)), 'Wo': _w((lambda *s: torch.randn(*s, dtype=torch.bfloat16) * 0.8)(H, Dh, Dm) * (H * Dh) ** (-0.5)), 'seg_len': seg}
    _A_in = _A_setup()

    def _B_setup():
        B, S, D = (1, 2048, 1024)
        return {'x': _w((lambda *s: torch.randn(*s, dtype=torch.bfloat16) * 0.05)(B, S, D)), 'wqkv': _w((lambda *s: torch.randn(*s, dtype=torch.bfloat16) * 0.8)(D, 3 * D)), 'wo': _w((lambda *s: torch.randn(*s, dtype=torch.bfloat16) * 0.1)(D, D))}
    _B_in = _B_setup()
    return {'A_x': _A_in['x'], 'A_mem0': _A_in['mem0'], 'A_Wq': _A_in['Wq'], 'A_Wk': _A_in['Wk'], 'A_Wv': _A_in['Wv'], 'A_Wo': _A_in['Wo'], 'A_seg_len': _A_in['seg_len'], 'B_x': _B_in['x'], 'B_wqkv': _B_in['wqkv'], 'B_wo': _B_in['wo']}

def reference(A_x, A_mem0, A_Wq, A_Wk, A_Wv, A_Wo, A_seg_len, B_x, B_wqkv, B_wo):

    def _A_ref(x, mem0, Wq, Wk, Wv, Wo, seg_len):
        B, S, Dm = x.shape
        H, Dh = (Wq.shape[1], Wq.shape[2])
        M = mem0.shape[1]
        scale = Dh ** (-0.5)
        n_seg = S // seg_len
        L = M + seg_len
        idx = torch.arange(L)
        mask = (idx[:, None] < M) | (idx[:, None] >= idx[None, :])
        mem = mem0
        outs = []
        for s in range(n_seg):
            xs = x[:, s * seg_len:(s + 1) * seg_len, :].clone()
            h = torch.concatenate([mem, xs], axis=1)
            q = torch.einsum('btd,dhe->bhte', h, Wq)
            k = torch.einsum('btd,dhe->bhte', h, Wk)
            v = torch.einsum('btd,dhe->bhte', h, Wv)
            scores = torch.einsum('bhqe,bhke->bhqk', q, k) * scale
            scores = torch.where(mask[None, None], scores, -1000000000.0)
            p = _softmax(scores, axis=-1)
            o = torch.einsum('bhqk,bhke->bhqe', p, v)
            o = torch.einsum('bhte,hed->btd', o, Wo)
            mem = o[:, :M, :].clone()
            outs.append(o[:, M:, :])
        return torch.concatenate(outs, axis=1)

    def _B_ref(x, wqkv, wo):
        B, S, D = x.shape
        H = 32
        Dh = D // H
        qkv = (lambda x, *d: x.permute(*d))((x @ wqkv).reshape(B, S, 3, H, Dh), 2, 0, 3, 1, 4)
        q, k, v = (qkv[0], qkv[1], qkv[2])
        phi = lambda t: torch.where(t > 0, t + 1, torch.exp(t)) + 1e-06
        pq, pk = (phi(q), phi(k))
        kv = torch.einsum('bhsd,bhse->bhde', pk, v)
        z = torch.einsum('bhsd->bhd', pk)
        num = torch.einsum('bhqd,bhde->bhqe', pq, kv)
        den = torch.einsum('bhqd,bhd->bhq', pq, z)[..., None] + 1e-06
        o = num / den
        return (lambda x, *d: x.permute(*d))(o, 0, 2, 1, 3).reshape(B, S, D) @ wo
    a = _A_ref(A_x, A_mem0, A_Wq, A_Wk, A_Wv, A_Wo, A_seg_len)
    b = _B_ref(B_x, B_wqkv, B_wo)
    return torch.concatenate([a, b], axis=-1)
```

```python
import re
TRANS = ('v_exp_', 'v_log_', 'v_rcp_', 'v_rsq_', 'v_sqrt_', 'v_sin_', 'v_cos_')
def regs_of(op):
    op = op.strip()
    op = op.lstrip('-')
    if op.startswith('abs(') or op.startswith('|'): op = op.strip('abs()|')
    m = re.fullmatch(r'([vas])\[(\d+):(\d+)\]', op)
    if m: return [(m.group(1), i) for i in range(int(m.group(2)), int(m.group(3))+1)]
    m = re.fullmatch(r'([vas])(\d+)', op)
    if m: return [(m.group(1), int(m.group(2)))]
    if op == 'vcc': return [('s', 'vcc')]
    if op == 'exec': return [('s', 'exec')]
    if op == 'm0': return [('s', 'm0')]
    return []
class Ins:
    def __init__(self, text):
        self.text = text
        t = text.split(';')[0].strip()
        self.label = None; self.op = None
        self.w = set(); self.r = set(); self.cls = 'none'; self.states = 0
        self.target = None
        if not t: return
        if t.endswith(':'): self.label = t[:-1]; return
        if t.startswith('.'): return
        parts = t.split(None, 1)
        op = self.op = parts[0]
        rest = parts[1] if len(parts) > 1 else ''
        ops = []; cur = ''; depth = 0
        for ch in rest:
            if ch in '[(': depth += 1
            if ch in '])': depth -= 1
            if ch == ',' and depth == 0: ops.append(cur.strip()); cur = ''
            else: cur += ch
        if cur.strip(): ops.append(cur.strip())
        mods = ''
        if ops:
            last = ops[-1].split(None, 1)
            ops[-1] = last[0]; mods = last[1] if len(last) > 1 else ''
        self.ops = ops; self.mods = mods
        R = [regs_of(o) for o in ops]
        self.states = 1
        self.dpp = False; self.trans = False; self.passes = 0; self.srcc = set(); self.ab = set(); self.wide_data = set(); self.ldsdma = False
        if op == 's_nop': self.states = int(ops[0], 0) + 1; self.cls = 'salu'; return
        if op.startswith('v_mfma') or op.startswith('v_smfmac'):
            self.cls = 'mfma'
            self.passes = 8 if '32x32' in op else 4
            self.w = set(R[0])
            if op.startswith('v_mfma'):
                self.ab = set(R[1]) | set(R[2]); self.srcc = set(R[3])
            else:
                self.ab = set(R[1]) | set(R[2]) | set(R[3]); self.srcc = set(R[0])
            self.r = self.ab | self.srcc
            return
        if op.startswith('v_'):
            self.cls = 'valu'
            self.trans = op.startswith(TRANS)
            self.dpp = '_dpp' in op
            nd = 1
            if re.match(r'v_(add|sub|subrev|addc|subb)_co_', op) or op.startswith('v_mad_u64') or op.startswith('v_div_scale'): nd = 2
            for x in R[:nd]: self.w |= set(x)
            for x in R[nd:]: self.r |= set(x)
            if op.startswith('v_permlane') or op.startswith('v_swap'):
                self.w |= set(R[1]); self.r |= set(R[0])
            if op.startswith(('v_fmac', 'v_dot2c', 'v_writelane')) or self.dpp: self.r |= set(R[0])
            assert not op.startswith('v_cmpx')
            return
        if op.startswith(('buffer_', 'global_')):
            self.cls = 'vmem'
            if op in ('buffer_wbl2', 'buffer_inv'): return
            allr = set()
            for x in R: allr |= set(x)
            toks = mods.split()
            if 'lds' in toks or '_lds_' in op:
                self.ldsdma = True; self.r = allr | {('s', 'm0')}
            elif '_load_' in op:
                self.w = set(R[0]);
                for x in R[1:]: self.r |= set(x)
            elif '_store_' in op:
                self.r = allr
                if op.endswith(('x3', 'x4')): self.wide_data = set(R[0] if op.startswith('buffer') else R[1])
            elif '_atomic_' in op:
                self.r = allr
                if 'sc0' in toks: self.w = set(R[0])
            return
        if op.startswith('ds_'):
            self.cls = 'ds'
            if op.startswith(('ds_read', 'ds_bpermute', 'ds_permute', 'ds_swizzle')) or '_rtn_' in op:
                self.w = set(R[0])
                for x in R[1:]: self.r |= set(x)
            else:
                for x in R: self.r |= set(x)
            return
        if op.startswith('s_'):
            self.cls = 'salu'
            if op.startswith(('s_cbranch', 's_branch')): self.target = ops[0]; return
            if op.startswith(('s_cmp', 's_bitcmp', 's_waitcnt', 's_barrier', 's_endpgm', 's_setprio', 's_sleep', 's_setpc')):
                for x in R: self.r |= set(x)
                return
            if R: self.w = set(R[0])
            for x in R[1:]: self.r |= set(x)
            if 'saveexec' in op: self.w.add(('s', 'exec'))
            return
        raise ValueError('unknown instruction: ' + text)
def need(p, c):
    n = 0
    isv = lambda s: {x for x in s if x[0] in 'va'}
    iss = lambda s: {x for x in s if x[0] == 's'}
    if p.cls == 'valu':
        pv = isv(p.w); ps = iss(p.w)
        if c.cls == 'mfma' and pv & c.r: n = max(n, 2)
        if c.cls == 'valu':
            if c.dpp and pv & c.r: n = max(n, 2)
            if c.op.startswith('v_permlane') and pv & c.r: n = max(n, 2)
            if c.op.startswith(('v_readlane', 'v_readfirstlane')) and pv & c.r: n = max(n, 1)
            if p.trans and not c.trans and pv & c.r: n = max(n, 1)
            if ps & c.r: n = max(n, 4 if c.op.startswith(('v_readlane', 'v_writelane')) else 2)
        if p.trans and c.cls in ('vmem', 'ds') and pv & c.r: n = max(n, 1)
        if c.cls == 'vmem' and ps & c.r: n = max(n, 5)
        if c.cls == 'salu' and ps & c.r: n = max(n, 1)
    if p.cls == 'mfma':
        big = {4: 8, 8: 12}[p.passes]
        if c.cls == 'mfma':
            if p.w & c.ab: n = max(n, big)
            if p.w & c.srcc and not (p.w == c.srcc and p.passes == c.passes): n = max(n, p.passes + 2)
            if p.w & c.w and not (p.w & c.srcc): n = max(n, p.passes + 2)
        elif c.cls in ('valu', 'vmem', 'ds'):
            if p.w & (c.r | c.w): n = max(n, big)
            if c.cls == 'valu' and p.srcc & c.w: n = max(n, p.passes - 1)
    if p.cls == 'vmem' and p.wide_data and p.wide_data & c.w and c.cls in ('valu', 'mfma', 'ds', 'vmem'): n = max(n, 2)
    if p.cls == 'salu' and ('s', 'm0') in p.w and c.cls == 'vmem' and c.ldsdma: n = max(n, 1)
    return n
class Prog:
    def __init__(self): self.L = []
    def __call__(self, text):
        if isinstance(text, (list, tuple)):
            for t in text: self(t)
            return
        for line in text.split('\n'):
            line = line.strip()
            if line: self.L.append(line)
    def finish(self, verbose=False):
        I = [Ins(t) for t in self.L]
        out = []
        MAXD = 14
        total = 0
        for rnd in range(2):
            src = I if rnd == 0 else out
            branches = {}
            for k, x in enumerate(src):
                if x.target: branches.setdefault(x.target, []).append(k)
            pad = {}
            def lookback(k, c, dist, seen, after=None, nm=0):
                short = 0
                j = k - 1
                while j >= 0 and dist < MAXD:
                    x = src[j]
                    if x.label:
                        for b in branches.get(x.label, []):
                            if (b, dist) not in seen:
                                seen.add((b, dist))
                                short = max(short, lookback(b, c, dist + 1 + pad.get(b, 0), seen, after, nm))
                    elif x.op:
                        if x.op in ('s_branch', 's_endpgm', 's_setpc_b64'): return short
                        eff = dist
                        if x.cls == 'mfma':
                            if nm: eff = max(dist, 4*nm + after)
                            if after is None: after = dist
                            nm += 1
                        short = max(short, need(x, c) - eff)
                        dist += x.states + pad.get(j, 0)
                    j -= 1
                return short
            for k, c in enumerate(src):
                if not c.op or c.cls == 'none': continue
                s = lookback(k, c, 0, set())
                if s > 0: pad[k] = s; total += s
            new = []
            for k, c in enumerate(src):
                if k in pad:
                    new.append(Ins('s_nop %d' % (pad[k]-1)))
                    if verbose: print('pad', pad[k], 'before', c.text)
                new.append(c)
            out = new
        return '\n'.join(re.sub(r'\s+', ' ', x.text.replace(' offset:0 ', ' ')).replace(', ', ',').strip() for x in out) + '\n'
def vr(a, n=1): return 'v%d' % a if n == 1 else 'v[%d:%d]' % (a, a+n-1)
def ar(a, n=1): return 'a%d' % a if n == 1 else 'a[%d:%d]' % (a, a+n-1)
def sr(a, n=1): return 's%d' % a if n == 1 else 's[%d:%d]' % (a, a+n-1)
def weave(main, fill, start=0, every=1, per=1):
    out = []; fill = list(fill)
    for i, m in enumerate(main):
        out.append(m)
        if i >= start and (i - start) % every == 0:
            for _ in range(per):
                if fill:
                    f = fill.pop(0)
                    out.extend(f if isinstance(f, (list, tuple)) else [f])
    for f in fill: out.extend(f if isinstance(f, (list, tuple)) else [f])
    return out
```

```python
from asmlib import *
from genr import (S_WS, S_XCD, S_IDX, S_WAVE, S_BUD, S_DBG, V_LANE, ld, st, bits, ssum, setexec,
                  WS_FLAG, WS_KM, WS_VM, WS_KX, WS_VX)
WS_Q    = 0x3000000
WS_O    = 0x4000000
WS_OB   = 0x5000000
WS_KVP  = 0x5400000
WS_KVR  = 0x5800000
F_PROG = WS_FLAG
F_FIN  = WS_FLAG + 0x0800
F_BKV  = WS_FLAG + 0x1000
F_BRED = WS_FLAG + 0x1800
F_BQ   = WS_FLAG + 0x2000
F_OB   = WS_FLAG + 0x3000
F_O    = WS_FLAG + 0x4000
F_KV   = WS_FLAG + 0x8000
T_END, T_G1H, T_G1F, T_BKV, T_BQ, T_G3, T_RED, T_TAIL, T_WAIT, T_ATT = range(10)
S_TP = 18
S_D = 20
S_XS, S_WSRD, S_OS = 28, 32, 36
S_XO, S_WO, S_CNT, S_MX, S_MW, S_XSTEP, S_WSTEP, S_STR = 40, 41, 42, 43, 44, 45, 46, 47
S_G = 48
S_PTR = 60
S_WM, S_WN = 76, 77
S_VER = 78
S_C1, S_C2 = 80, 81
S_A = 82
P_AX, P_WQ, P_WK, P_WV, P_WO, P_BX, P_BW, P_BO = [S_PTR + 2*i for i in range(8)]
V_XD, V_WD, V_XA, V_WA, V_OO = 2, 10, 18, 20, 28
V_G = 30
V_F = 64
V_E = 192
XF = lambda b, t: V_F + b*64 + t*4
WF = lambda b, t: V_F + b*64 + 32 + t*4
lines = lambda t: [x.strip() for x in t.split('\n') if x.strip()]
LOG2E = 0x3fb8aa3b

def wait_flag(p, lbl, soff, sval, shift=0, mask=None):
    G = S_G
    p(f'''
    v_mov_b32 v{V_G}, 0
    {lbl}:
    {ld(1, V_G+1, V_G, soff)}
    s_sub_u32 s{S_BUD}, s{S_BUD}, 1
    s_max_i32 s{S_BUD}, s{S_BUD}, 0
    s_waitcnt vmcnt(0)
    v_readfirstlane_b32 s{G+10}, v{V_G+1}
    ''')
    if shift: p(f's_lshr_b32 s{G+10}, s{G+10}, {shift}')
    if mask is not None: p(f's_and_b32 s{G+10}, s{G+10}, {mask}')
    p(f'''
    s_cmp_ge_u32 s{G+10}, {sval if isinstance(sval, str) else "s%d" % sval}
    s_cbranch_scc1 {lbl}_ok
    s_cmp_eq_u32 s{S_BUD}, 0
    s_cbranch_scc1 {lbl}_ok
    s_sleep 2
    s_branch {lbl}
    {lbl}_ok:
    ''')
def signal(p, lbl, soff, val, lanes='1', stride=0):
    p(f'''
    s_waitcnt vmcnt(0)
    s_barrier
    s_cmp_eq_u32 s{S_WAVE}, 0
    s_cbranch_scc0 {lbl}
    v_mul_u32_u24 v{V_G}, {stride}, v{V_LANE}
    v_mov_b32 v{V_G+1}, {val}
    s_mov_b64 exec, {lanes}
    buffer_atomic_add v{V_G+1}, v{V_G}, {sr(S_WS,4)}, s{soff} offen sc1
    s_mov_b64 exec, -1
    {lbl}:
    ''')

def g_init(p, o):
    G = S_G
    p(f'''
    s_load_dwordx2 s[{P_AX}:{P_AX+1}], s[0:1], 0
    s_load_dwordx4 s[{G}:{G+3}], s[0:1], 16
    s_load_dwordx4 s[{G+4}:{G+7}], s[0:1], 32
    s_load_dwordx2 s[{P_BX}:{P_BX+1}], s[0:1], 56
    s_load_dwordx4 s[{P_BW}:{P_BW+3}], s[0:1], 64
    s_load_dwordx2 s[{S_OS}:{S_OS+1}], s[0:1], 80
    s_getpc_b64 s[{S_TP}:{S_TP+1}]
    G_pc:
    s_add_u32 s{S_TP}, s{S_TP}, G_table-G_pc
    s_addc_u32 s{S_TP+1}, s{S_TP+1}, 0
    s_sub_u32 s{G+8}, s{S_XCD}, 4
    s_lshl_b32 s{G+8}, s{G+8}, 5
    s_add_u32 s{G+8}, s{G+8}, s{S_IDX}
    s_mul_i32 s{G+8}, s{G+8}, {32*o['ntask']}
    s_add_u32 s{S_TP}, s{S_TP}, s{G+8}
    s_addc_u32 s{S_TP+1}, s{S_TP+1}, 0
    s_lshr_b32 s{S_WM}, s{S_WAVE}, 1
    s_and_b32 s{S_WN}, s{S_WAVE}, 1
    s_mov_b32 s{S_OS+2}, 0x800000
    s_mov_b32 s{S_OS+3}, 0x20000
    s_mov_b32 s{S_XS+3}, 0x20000
    s_mov_b32 s{S_WSRD+3}, 0x20000
    s_mov_b32 s{S_C1}, {LOG2E}
    s_mov_b32 s{S_C2}, 0x358637bd
    s_waitcnt lgkmcnt(0)
    s_mov_b64 s[{P_WQ}:{P_WQ+1}], s[{G}:{G+1}]
    s_mov_b64 s[{P_WK}:{P_WK+1}], s[{G+2}:{G+3}]
    s_mov_b64 s[{P_WV}:{P_WV+1}], s[{G+4}:{G+5}]
    s_mov_b64 s[{P_WO}:{P_WO+1}], s[{G+6}:{G+7}]
    s_mov_b64 s[{S_XS}:{S_XS+1}], s[{P_AX}:{P_AX+1}]
    s_mov_b32 s{S_XS+2}, 0x400000
    s_mov_b64 s[{S_WSRD}:{S_WSRD+1}], s[{P_WQ}:{P_WQ+1}]
    s_mov_b32 s{S_WSRD+2}, 0x800000
    ''')
    p(bits(V_OO, [(4, 2, 9), (0, 4, 4)], None, V_G))

def setup_w(p, TN, bkv=False, perm=False):
    G = S_G
    a, b, c, d = V_G, V_G+1, V_G+2, V_G+3
    rb = (5, 1) if TN == 8 else (4, 2)
    rows = 16 // TN
    p(ssum(G, [(S_WAVE, 4)])); p(bits(a, [rb + (0,)], G, c))
    p(f'v_mul_lo_u32 v{a}, v{a}, s{S_STR}')
    p(bits(b, [(0, 1, 4)], None, c)); p(f'v_add_u32 v{a}, v{a}, v{b}')
    p(bits(b, [(1, 4 if TN == 8 else 3, 0)], None, c)); p(bits(c, [rb + (0,)], None, d)); p(f'v_xor_b32 v{b}, v{b}, v{c}')
    for j in range(TN):
        k0 = rows*j
        f = (k0 & 7) if perm else ((k0 & 3) | ((k0 >> 3) << 2))
        p(f'v_xor_b32 v{c}, {f}, v{b}')
        if bkv:
            p(bits(d, [(1, 1, 11), (2, 2, 6), (0, 1, 5)], None, V_G+4, src=c)); p(f'v_add_u32 v{c}, v{d}, v{a}')
        else: p(f'v_lshl_add_u32 v{c}, v{c}, 5, v{a}')
        p(f's_mul_i32 s{G}, s{S_STR}, {k0}\ns_sub_u32 s{G}, s{G}, {1024*(j&3)}\nv_add_u32 v{V_WD+j}, s{G}, v{c}')
    p(f's_lshl_b32 s{S_WSTEP}, s{S_STR}, 6')
    p(f's_mul_i32 s{S_MW}, s{S_WAVE}, {TN*1024}\ns_add_u32 s{S_MW}, s{S_MW}, 65536')
    lg = 9 if TN == 8 else 8
    p(bits(a, [(4, 2, lg + (2 if perm else 3)), (2, 2, lg), (0, 2, 3)], ('lit', 65536), c))
    p(bits(b, [(2, 2, 0), (4, 1, 2)], None, c))
    p(f's_mul_i32 s{G}, s{S_WN}, {TN}\nv_xor_b32 v{b}, s{G}, v{b}')
    for ct in range(TN): p(f'v_xor_b32 v{c}, {ct}, v{b}\nv_lshl_add_u32 v{V_WA+ct}, v{c}, 5, v{a}')
def setup_x(p, TM, unit, sblk=None):
    G = S_G
    a, b, c = V_G, V_G+1, V_G+2
    p(f's_mul_i32 s{S_MX}, s{S_WAVE}, {TM*1024}')
    if not unit:
        p(f's_mul_i32 s{G}, s{S_WAVE}, {8*TM*2048}')
        p(bits(a, [(3, 3, 11)], G, c))
        p(bits(b, [(0, 3, 0)], None, c)); p(bits(c, [(4, 2, 0)], None, V_G+3)); p(f'v_xor_b32 v{b}, v{b}, v{c}')
        for j in range(TM):
            p(f'v_xor_b32 v{c}, {4*(j&1)}, v{b}\nv_lshl_add_u32 v{c}, v{c}, 4, v{a}\nv_add_u32 v{V_XD+j}, {j*8*2048 - 1024*(j&3)}, v{c}')
        p(f's_mul_i32 s{G}, s{S_WM}, {TM*2048}')
        p(bits(a, [(0, 4, 7)], G, c))
        p(bits(b, [(1, 3, 0)], None, c)); p(bits(c, [(4, 2, 0)], None, V_G+3)); p(f'v_xor_b32 v{b}, v{b}, v{c}')
        for s_ in range(2): p(f'v_xor_b32 v{c}, {4*s_}, v{b}\nv_lshl_add_u32 v{V_XA+s_}, v{c}, 4, v{a}')
        p(f's_mov_b32 s{S_XSTEP}, 128')
    else:
        nb = TM // 4
        p(f's_mul_i32 s{G}, s{S_WAVE}, s{sblk}')
        if nb == 2: p(f's_lshl_b32 s{G}, s{G}, 1')
        p(bits(V_XD, [(0, 6, 4)], G, c))
        if nb == 2: p(f'v_add_u32 v{V_XD+1}, s{sblk}, v{V_XD}')
        p(f's_mul_i32 s{G}, s{S_WM}, {TM*2048}')
        p(f'v_add_u32 v{V_XA}, s{G}, v{V_OO}')
        p(f's_mov_b32 s{S_XSTEP}, 4096')

def core(p, name, TM, TN, NB, unit, swap, xfl='', hook=None, last=None, wfl='', pre=None, wrap=False, stamp=None):
    xs = S_WS if unit else S_XS
    XS, WS_ = TM*4096, TN*4096
    RB = TN*64
    QO = (16 if unit else 4)*RB
    nd = TM + TN
    def dma(buf):
        out = []
        for j in range(TM):
            v = V_XD + (j >> 2 if unit else j)
            i = [f'buffer_load_dwordx4 v{v}, {sr(xs,4)}, s{S_XO} offen offset:{1024*(j&3)} {xfl} lds']
            if j % 4 == 0: i = [f's_add_u32 m0, s{S_MX}, {buf*XS + (j//4)*4096}', 's_nop 0'] + i
            if j == TM-1: i += [f's_add_u32 s{S_XO}, s{S_XO}, s{S_XSTEP}'] + ([f's_bitset0_b32 s{S_XO}, 11'] if wrap else [])
            out.append(i)
        for j in range(TN):
            i = [f'buffer_load_dwordx4 v{V_WD+j}, {sr(S_WSRD,4)}, s{S_WO} offen offset:{1024*(j&3)} {wfl} lds']
            if j % 4 == 0: i = [f's_add_u32 m0, s{S_MW}, {buf*WS_ + (j//4)*4096}', 's_nop 0'] + i
            if j == TN-1: i += [f's_add_u32 s{S_WO}, s{S_WO}, s{S_WSTEP}'] + ([f's_bitset0_b32 s{S_WO}, 23'] if wrap else [])
            out.append(i)
        return out
    def reads(buf, s, fb):
        out = []
        for t in range(max(TM, TN)):
            if t < TN:
                out.append(f'ds_read_b64_tr_b16 {vr(WF(fb,t),2)}, v{V_WA+t} offset:{buf*WS_ + 32*RB*s}')
                out.append(f'ds_read_b64_tr_b16 {vr(WF(fb,t)+2,2)}, v{V_WA+t} offset:{buf*WS_ + 32*RB*s + QO}')
            if t < TM:
                if unit: out.append(f'ds_read_b128 {vr(XF(fb,t),4)}, v{V_XA} offset:{buf*XS + (t>>1)*4096 + 2048*s + (t&1)*256}')
                else: out.append(f'ds_read_b128 {vr(XF(fb,t),4)}, v{V_XA+s} offset:{buf*XS + 2048*t}')
        return out
    NM = TM*TN
    def step(fb, first, rd, dm):
        out = []; rd = list(rd); dm = list(dm)
        rsp = 2 if NM == 64 else 1
        dpos = [1 + (k*(NM-2))//max(len(dm), 1) for k in range(len(dm))]
        i = 0
        for tt in range(TM):
            for ct in (range(TN) if tt % 2 == 0 else range(TN-1, -1, -1)):
                a = (tt*TN+ct)*4
                c = '0' if first else ar(a, 4)
                A, B = vr(WF(fb,ct),4), vr(XF(fb,tt),4)
                if swap: A, B = B, A
                out.append(f'v_mfma_f32_16x16x32_bf16 {ar(a,4)}, {A}, {B}, {c}')
                if i % rsp == 0 and rd: out.append(rd.pop(0))
                while dpos and dpos[0] <= i: dpos.pop(0); out += dm.pop(0)
                i += 1
        assert not rd and not dm
        return out
    n1 = nd if NB == 2 else TM
    def stage(buf, first=False, rem=99, carry=True):
        prev = dma((buf - 1) % NB)[n1:] if (carry and rem >= NB-1) else []
        out = step(0, first, reads(buf, 1, 1), prev)
        if rem:
            out += [f's_waitcnt vmcnt({nd*min(NB-2, rem-1)}) lgkmcnt(0)', 's_barrier']
            extra = [[x] for x in last] if (last and rem == 1) else []
            out += step(1, False, reads((buf+1) % NB, 0, 0), dma(buf)[:n1] if rem >= NB else extra)
            out += ['s_waitcnt lgkmcnt(0)']
        else:
            out += ['s_waitcnt lgkmcnt(0)']
            out += step(1, False, [], [])
        return out
    if stamp: stamp()
    p('s_barrier')
    for b in range(NB):
        for d in dma(b): p(d)
    ne = pre(p) if pre else 0
    p(f's_waitcnt vmcnt({nd*(NB-1) + ne})\ns_barrier')
    if hook: hook(p)
    if stamp: stamp()
    p(reads(0, 0, 0)); p('s_waitcnt lgkmcnt(0)')
    for b in range(NB): p(stage(b, b == 0, carry=b > 0))
    if stamp: stamp()
    p(f's_sub_u32 s{S_CNT}, s{S_CNT}, 2\n{name}_k:')
    for b in range(NB): p(stage(b))
    p(f's_sub_u32 s{S_CNT}, s{S_CNT}, 1\ns_cmp_lg_u32 s{S_CNT}, 0\ns_cbranch_scc1 {name}_k')
    if stamp: stamp()
    for b in range(NB): p(stage(b, rem=NB-1-b))
    if stamp: stamp()

def epi_units(p, TM, TN):
    G = S_G
    p(ssum(G, [(S_WM, 18 + (2 if TM == 8 else 1)), (S_WN, 13 if TN == 8 else 12), (S_D+3, 0)], 0, G+1))
    n = 0
    for tt in range(TM):
        for u in range(TN//2):
            a = (tt*TN+2*u)*4
            t0 = V_E + (n % 4)*12; n += 1
            for r in range(8): p(f'v_accvgpr_read_b32 v{t0+r}, a{a+r}')
            for r in range(4): p(f'v_cvt_pk_bf16_f32 v{t0+8+r}, v{t0+2*r}, v{t0+2*r+1}')
            if u == 2: p(f's_add_u32 s{G}, s{G}, 4096')
            p(st(4, t0+8, V_OO, G, (u&1)*2048 + (tt&1)*256, 'sc1'))
        d = (0x40000 if tt&1 else 0) - (4096 if TN == 8 else 0)
        if d: p(f's_add_u32 s{G}, s{G}, {d}')

def phi(src_a, dst, n, tmp):
    out = []
    t, e = tmp, tmp+n
    for k in range(n): out.append(f'v_accvgpr_read_b32 v{t+k}, a{src_a[k]}')
    for k in range(0, n, 2): out.append(f'v_pk_mul_f32 {vr(e+k,2)}, {vr(t+k,2)}, {sr(S_C1,2)} op_sel_hi:[1,0]')
    for k in range(n): out += [f'v_exp_f32 v{e+k}, v{e+k} clamp', f'v_max_f32 v{t+k}, 0, v{t+k}']
    for k in range(0, n, 2): out.append(f'v_pk_add_f32 {vr(e+k,2)}, {vr(e+k,2)}, {vr(t+k,2)}')
    for k in range(0, n, 2): out.append(f'v_pk_add_f32 {vr(e+k,2)}, {vr(e+k,2)}, {sr(S_C1,2)} op_sel:[0,1]')
    for k in range(0, n, 2): out.append(f'v_cvt_pk_bf16_f32 v{dst+k//2}, v{e+k}, v{e+k+1}')
    return out

def epi_bkv(p):
    G = S_G
    ONES = V_F; KV = V_F + 4
    PK = V_F + 28; VV = V_F + 36; TMP = V_F + 44
    for k in range(4): p(f'v_mov_b32 v{ONES+k}, 0x3f803f80')
    p(f's_mul_i32 s{G}, s{S_WM}, {32*6144}\ns_mul_i32 s{G+1}, s{S_WN}, {2*6144}\ns_add_u32 s{G}, s{G}, s{G+1}\ns_add_u32 s{G}, s{G}, s{S_D+3}')
    p(bits(V_G, [(0, 6, 4)], None, V_G+1))
    for hd in range(2):
        for m in range(4):
            acc = lambda ct: [((2*m+h)*8 + ct)*4 + r for h in range(2) for r in range(4)]
            for dt in range(2): p(phi(acc(4*hd+dt), PK+4*dt, 8, TMP))
            for et in range(2):
                src = acc(4*hd+2+et)
                for k in range(8): p(f'v_accvgpr_read_b32 v{TMP+k}, a{src[k]}')
                for k in range(4): p(f'v_cvt_pk_bf16_f32 v{VV+4*et+k}, v{TMP+2*k}, v{TMP+2*k+1}')
            for op in (2, 0, 1):
                for dt in range(2):
                    d = KV + (op*2+dt)*4
                    p(f'v_mfma_f32_16x16x32_bf16 {vr(d,4)}, {vr(PK+4*dt,4)}, {vr(ONES if op == 2 else VV+4*op,4)}, {"0" if m == 0 else vr(d,4)}')
        for op in (2, 0, 1):
            for dt in range(2):
                off = hd*6144 + op*2048 + dt*1024
                p(f's_add_u32 s{G+1}, s{G}, {off & ~4095}')
                p(st(4, KV + (op*2+dt)*4, V_G, G+1, off & 4095, 'sc1'))

def task_red(p):
    G = S_G
    a, b, c = V_G, V_G+1, V_G+2
    p(f's_cmp_eq_u32 s{S_WAVE}, 3\ns_cbranch_scc1 G_red_done')
    p(ssum(G, [(S_WAVE, 11)]))
    p(bits(b, [(0, 6, 4)], None, c))
    p(f'v_add_u32 v{a}, s{G}, v{b}')
    p(f's_mov_b32 s{G}, s{S_D+1}')
    for blk in range(16):
        for dt in range(2): p(ld(4, V_F + (blk*2+dt)*4, a, G, dt*1024))
        p(f's_add_u32 s{G}, s{G}, {32*6144}')
    for blk in range(1, 16):
        p(f's_waitcnt vmcnt({30-2*blk})')
        for k in range(0, 8, 2): p(f'v_pk_add_f32 {vr(V_F+k,2)}, {vr(V_F+k,2)}, {vr(V_F+8*blk+k,2)}')
    for k in range(4): p(f'v_cvt_pk_bf16_f32 v{V_E+k}, v{V_F+2*k}, v{V_F+2*k+1}')
    p(ssum(G, [(S_WAVE, 10), (S_D+3, 0)], 0, G+1))
    p(st(4, V_E, b, G, 0, 'sc1'))
    p('G_red_done:')

def epi_bq(p):
    G = S_G
    KVR = V_F
    PQ = V_F + 48
    N = V_F + 56
    TMP = V_F + 80
    U = V_F + 104
    p(f's_mul_i32 s{G}, s{S_WN}, {4*3072}\ns_add_u32 s{G}, s{G}, s{S_D+7}')
    p(bits(V_G, [(0, 6, 4)], None, V_G+1))
    for hd in range(4):
        for op in range(3): p(ld(4, KVR + (hd*3+op)*4, V_G, G, op*1024))
        p(f's_add_u32 s{G}, s{G}, 3072')
    p(ssum(G, [(S_WM, 18), (S_WN, 13), (S_D+3, 0)], 0, G+1))
    items = [(tt, hd) for tt in range(8) for hd in range(4)]
    def front(k):
        tt, hd = items[k]
        src = [(tt*8 + 2*hd + dt)*4 + r for dt in range(2) for r in range(4)]
        out = phi(src, PQ + 4*(k & 1), 8, TMP)
        if k == 0: out.append('s_waitcnt vmcnt(0)')
        for op in (2, 0, 1):
            out.append(f'v_mfma_f32_16x16x32_bf16 {vr(N + 12*(k&1) + 4*op,4)}, {vr(KVR + (hd*3+op)*4,4)}, {vr(PQ + 4*(k&1),4)}, 0')
        return out
    def back(k):
        tt, hd = items[k]
        n = N + 12*(k & 1); u = U + 4*(k & 1)
        out = [f'v_add_f32 v{n+8}, s{S_C2}, v{n+8}', f'v_rcp_f32 v{n+8}, v{n+8}']
        for r in range(0, 8, 2): out.append(f'v_pk_mul_f32 {vr(n+r,2)}, {vr(n+r,2)}, {vr(n+8,2)} op_sel_hi:[1,0]')
        for r in range(4): out.append(f'v_cvt_pk_bf16_f32 v{u+r}, v{n+2*r}, v{n+2*r+1}')
        out.append(f's_add_u32 s{G+1}, s{G}, {(tt>>1)*0x10000 + (hd>>1)*4096}')
        out.append(st(4, u, V_OO, G+1, (hd&1)*2048 + (tt&1)*256, 'sc1'))
        return out
    for k in range(len(items) + 1):
        if k < len(items): p(front(k))
        if k > 0: p(back(k-1))

def epi_out(p, TM, TN):
    G = S_G
    p(bits(V_G, [(0, 4, 12), (4, 1, 5), (5, 1, 4)], None, V_G+1))
    p(f's_mul_i32 s{G}, s{S_WM}, {TM*16*4096}')
    p(f's_mul_i32 s{G+1}, s{S_WN}, {TN*32}\ns_add_u32 s{G}, s{G}, s{G+1}\ns_add_u32 s{G}, s{G}, s{S_D+3}')
    n = 0
    pend = []
    for tt in range(TM):
        for u in range(TN//2):
            a = (tt*TN+2*u)*4
            t0 = V_E + (n % 4)*12; n += 1
            for r in range(8): p(f'v_accvgpr_read_b32 v{t0+r}, a{a+r}')
            p(pend)
            for r in range(4): p(f'v_cvt_pk_bf16_f32 v{t0+8+r}, v{t0+2*r}, v{t0+2*r+1}')
            pend = [f'v_permlane16_swap_b32 v{t0+8}, v{t0+10}', f'v_permlane16_swap_b32 v{t0+9}, v{t0+11}',
                    st(4, t0+8, V_G, G, u*64, '', S_OS)]
            if u == TN//2-1: pend.append(f's_add_u32 s{G}, s{G}, {16*4096}')
    p(pend)

S_SEG, S_HD = S_A+8, S_A+9
LDS_ATT = 131072
def attention(p, o):
    G = S_G
    a, b, c = V_G, V_G+1, V_G+2
    VL, VKM, VVM, VTR = V_G+3, V_G+4, V_G+5, V_G+6
    Qf, Kf, KMf, VMf = 64, 96, 128, 144
    Sr = 160
    P = 184
    VA = 194
    mx, mt, rc = 226, 228, 230
    Or = 64
    U = 232
    NEG = V_G+7
    p(ssum(G, [(S_SEG, 18), (S_HD, 13)], 0, G+1))
    p(ssum(G+2, [(S_SEG, 16), (S_HD, 11)], 0, G+1))
    p(bits(VL, [(0, 6, 4)], None, c))
    p(bits(VKM, [(4, 2, 7), (0, 3, 4)], None, c))
    p(bits(VVM, [(2, 2, 7), (0, 2, 4), (4, 1, 3)], None, c))
    p(ssum(G+3, [(S_WAVE, 13)], LDS_ATT))
    p(bits(VTR, [(0, 2, 9), (4, 2, 6), (2, 2, 4)], G+3, c))
    p(f's_add_u32 s{G+4}, s{G+2}, {WS_KM}')
    for u in range(4): p(ld(4, KMf+4*u, VKM, G+4, u*512))
    for h in range(2):
        p(f's_add_u32 s{G+4}, s{G}, {WS_Q + h*4096}\ns_add_u32 s{G+5}, s{G}, {WS_KX + h*4096}')
        for u in (2*h, 2*h+1):
            for t in range(2):
                p(ld(4, Qf+(t*4+u)*4, V_OO, G+4, (u&1)*2048 + t*256))
                p(ld(4, Kf+(t*4+u)*4, V_OO, G+5, (u&1)*2048 + t*256))
    for h in range(2):
        p(f's_add_u32 s{G+4}, s{G}, {WS_VX + h*4096}\ns_add_u32 m0, s{G+3}, {h*4096}\ns_nop 0')
        for j in range(4): p(f'buffer_load_dwordx4 v{VL}, {sr(S_WS,4)}, s{G+4} offen offset:{1024*j} sc1 lds')
    p(f's_add_u32 s{G+4}, s{G+2}, {WS_VM}')
    for E in range(8): p(ld(2, VMf+2*E, VVM, G+4, (E>>1)*512 + (E&1)*64))
    p(bits(a, [(4, 2, 2)], None, c)); p(bits(b, [(0, 4, 0)], None, c))
    p(f'v_sub_u32 v{a}, v{b}, v{a}\nv_mov_b32 v{NEG}, 0xff800000')
    for r in range(4): p(f'v_cmp_le_i32 {sr(S_A+2*r,2)}, {r}, v{a}')
    p(f's_mov_b32 s{G+6}, -1\ns_mov_b32 s{G+7}, 0\ns_mov_b32 s{G+8}, 0x{o["scl"]:08x}')
    S_ = lambda t, k: Sr + (t*3+k)*4
    tiles = [(0, 0), (0, 1), (1, 0), (1, 1), (1, 2)]
    for u in range(4):
        p(f's_waitcnt vmcnt({16 + 4*(3-u)})')
        for t, k in tiles:
            A = KMf+4*u if k == 0 else Kf+((k-1)*4+u)*4
            p(f'v_mfma_f32_16x16x32_bf16 {vr(S_(t,k),4)}, {vr(A,4)}, {vr(Qf+(t*4+u)*4,4)}, {"0" if u == 0 else vr(S_(t,k),4)}')
    p('s_waitcnt vmcnt(8)')
    for E in range(8):
        for T_ in range(2): p(f'ds_read_b64_tr_b16 {vr(VA+4*E+2*T_,2)}, v{VTR} offset:{(E>>1)*2048 + (E&1)*8 + T_*256}')
    for t in range(2):
        for r in range(4): p(f'v_cndmask_b32 v{S_(t,0)+r}, v{NEG}, v{S_(t,0)+r}, {sr(G+6,2)}')
        for r in range(4): p(f'v_cndmask_b32 v{S_(t,t+1)+r}, v{NEG}, v{S_(t,t+1)+r}, {sr(S_A+2*r,2)}')
    nval = [8, 12]
    def allred(op, base):
        for sw in ('16', '32'):
            for t in range(2): p(f'v_mov_b32 v{mt+t}, v{base+t}')
            for t in range(2): p(f'v_permlane{sw}_swap_b32 v{base+t}, v{mt+t}')
            for t in range(2): p(f'{op} v{base+t}, v{base+t}, v{mt+t}')
    for t in range(2):
        s0 = S_(t, 0)
        p(f'v_max3_f32 v{mx+t}, v{s0}, v{s0+1}, v{s0+2}')
        for k in range(3, nval[t]-1, 2): p(f'v_max3_f32 v{mx+t}, v{mx+t}, v{s0+k}, v{s0+k+1}')
        p(f'v_max_f32 v{mx+t}, v{mx+t}, v{s0+nval[t]-1}')
    allred('v_max_f32', mx)
    for t in range(2): p(f'v_mul_f32 v{mx+t}, s{G+8}, v{mx+t}')
    for t in range(2):
        s0 = S_(t, 0)
        for k in range(nval[t]): p(f'v_fma_f32 v{s0+k}, v{s0+k}, s{G+8}, -v{mx+t}')
        for k in range(nval[t]): p(f'v_exp_f32 v{s0+k}, v{s0+k}')
    P0x, P0m, P1x, P1m = P, P+2, P+4, P+8
    for dst, src, n in [(P0m, S_(0,0), 2), (P0x, S_(0,1), 2), (P1m, S_(1,0), 2), (P1x, S_(1,1), 4)]:
        for k in range(n): p(f'v_cvt_pk_bf16_f32 v{dst+k}, v{src+2*k}, v{src+2*k+1}')
    for t in range(2):
        s0 = S_(t, 0)
        for k in range(2, nval[t], 2): p(f'v_pk_add_f32 {vr(s0,2)}, {vr(s0,2)}, {vr(s0+k,2)}')
        p(f'v_add_f32 v{rc+t}, v{s0}, v{s0+1}')
    p('s_waitcnt vmcnt(0) lgkmcnt(0)')
    O_ = lambda E, t: Or + (E*2+t)*4
    for E in range(8):
        p(f'v_mfma_f32_16x16x16_bf16 {vr(O_(E,0),4)}, {vr(VMf+2*E,2)}, {vr(P0m,2)}, 0')
        p(f'v_mfma_f32_16x16x16_bf16 {vr(O_(E,1),4)}, {vr(VMf+2*E,2)}, {vr(P1m,2)}, 0')
        p(f'v_mfma_f32_16x16x16_bf16 {vr(O_(E,0),4)}, {vr(VA+4*E,2)}, {vr(P0x,2)}, {vr(O_(E,0),4)}')
        p(f'v_mfma_f32_16x16x32_bf16 {vr(O_(E,1),4)}, {vr(VA+4*E,4)}, {vr(P1x,4)}, {vr(O_(E,1),4)}')
        if E == 0:
            allred('v_add_f32', rc)
            for t in range(2): p(f'v_rcp_f32 v{rc+t}, v{rc+t}')
    n = 0
    for u in range(4):
        if u % 2 == 0: p(f's_add_u32 s{G+4}, s{G}, {WS_O + (u>>1)*4096}')
        for t in range(2):
            u0 = U + 4*(n % 4); n += 1
            for pp in range(2):
                d = O_(2*u+pp, t)
                for r in (0, 2): p(f'v_pk_mul_f32 {vr(d+r,2)}, {vr(d+r,2)}, {vr(rc,2)} op_sel:[0,{t}] op_sel_hi:[1,{t}]')
                for r in range(2): p(f'v_cvt_pk_bf16_f32 v{u0+2*pp+r}, v{d+2*r}, v{d+2*r+1}')
            p(st(4, u0, V_OO, G+4, (u&1)*2048 + t*256, 'sc1'))

def prog_target(p, seg, v, so, sv):
    p(f'''
    s_lshl_b32 s{so}, s{v}, 8
    s_add_u32 s{sv}, s{seg}, 2
    s_cmp_ge_u32 s{seg}, 62
    s_cselect_b32 s{sv}, 16, s{sv}
    s_cselect_b32 s{S_G+11}, {F_FIN - F_PROG}, 0
    s_add_u32 s{so}, s{so}, s{S_G+11}
    s_add_u32 s{so}, s{so}, {F_PROG}
    ''')

def att_task(p, o, lbl):
    G = S_G; SV = S_A+10
    prog_target(p, S_SEG, SV, G, G+1)
    wait_flag(p, lbl + '_w1', G, G+1)
    p(f's_lshr_b32 s{G}, s{S_SEG}, 2'); p(ssum(G, [(G, 11), (SV, 8)], F_KV, G+1))
    wait_flag(p, lbl + '_w2', G, '4', 8)
    p(f's_lshl2_add_u32 s{S_HD}, s{SV}, s{S_WAVE}')
    attention(p, o)
    p(f's_lshr_b32 s{G}, s{S_SEG}, 4'); p(ssum(G, [(G, 2), (SV, 8)], F_O, G+1))
    p(f's_lshr_b32 s{G+1}, s{S_SEG}, 2'); p(ssum(G+1, [(G+1, 8)], F_OB))
    p(f's_sub_u32 s{G+2}, s{G}, s{G+1}\ns_and_b32 s{G+3}, s{S_SEG}, 15')
    p(f'v_mul_u32_u24 v{V_G+2}, s{G+3}, v{V_LANE}\nv_lshlrev_b32 v{V_G+2}, v{V_G+2}, 1')
    signal(p, lbl + '_s', G+1, f'v{V_G+2}', '3', f's{G+2}')

def task_tail(p, o):
    G = S_G
    SV, SB, SJ, SDONE, SMY = S_A+10, S_A+11, S_A+12, S_A+13, S_A+14
    SXG = S_A+15
    c = V_G+2
    off = V_G+8
    p(f's_mov_b64 s[{S_WSRD}:{S_WSRD+1}], s[{P_WO}:{P_WO+1}]\ns_mov_b32 s{S_WSRD+2}, 0x800000')
    p(ssum(G, [(S_WAVE, 21), (S_IDX, 6)], 0, G+1))
    p(bits(off, [(4, 2, 13), (0, 4, 2)], G, c))
    p(f's_mov_b32 s{G+2}, 0x05040100\ns_mov_b32 s{G+3}, 0x07060302')
    batches = []
    for b in range(16):
        sb = 64 + 16*(b % 4)
        loads = []; fin = []
        for h in range(2):
            ks = 2*b + h
            for vv in range(4):
                loads.append(f's_mov_b32 s{G}, {(32*ks + 16*(vv>>1) + 2*(vv&1))*2048}')
                r0 = sb + 8*h + 2*vv
                for d in range(2): loads.append(ld(1, r0+d, off, G, 2048*d, '', S_WSRD))
                fin += [f'v_perm_b32 v{V_E}, v{r0+1}, v{r0}, s{G+2}', f'v_perm_b32 v{V_E+1}, v{r0+1}, v{r0}, s{G+3}',
                        f'v_accvgpr_write_b32 a{ks*4+vv}, v{V_E}', f'v_accvgpr_write_b32 a{(32+ks)*4+vv}, v{V_E+1}']
        batches.append((loads, fin))
    for b in range(18):
        if b < 16: p(batches[b][0])
        if b >= 2:
            p(f's_waitcnt vmcnt({16*(min(b, 15) - (b-2))})'); p(batches[b-2][1])
    p(f'''
    s_and_b32 s{SV}, s{S_IDX}, 7
    s_lshr_b32 s{SMY}, s{S_IDX}, 3
    s_sub_u32 s{SXG}, s{S_XCD}, 4
    s_mov_b32 s{SB}, s{S_D+1}
    GT_blk:
    s_mov_b32 s{SJ}, 0
    s_mov_b32 s{SDONE}, 0
    GT_j:
    s_cmp_lg_u32 s{SDONE}, 0
    s_cbranch_scc1 GT_ws
    s_lshl2_add_u32 s{S_SEG}, s{SMY}, s{SXG}
    s_add_u32 s{S_SEG}, s{S_SEG}, s{SB}
    s_cmp_eq_u32 s{SJ}, s{SMY}
    s_cbranch_scc1 GT_att
    ''')
    prog_target(p, S_SEG, SV, G, G+1)
    p(f'''
    v_mov_b32 v{V_G}, 0
    s_cmp_eq_u32 s{S_WAVE}, 0
    s_cbranch_scc0 GT_nb
    {ld(1, V_G+1, V_G, G)}
    s_waitcnt vmcnt(0)
    ds_write_b32 v{V_G}, v{V_G+1} offset:40960
    s_waitcnt lgkmcnt(0)
    GT_nb:
    s_barrier
    ds_read_b32 v{V_G+1}, v{V_G} offset:40960
    s_waitcnt lgkmcnt(0)
    v_readfirstlane_b32 s{G+2}, v{V_G+1}
    s_barrier
    s_cmp_ge_u32 s{G+2}, s{G+1}
    s_cbranch_scc0 GT_ws
    GT_att:
    ''')
    att_task(p, o, 'GT_a')
    p(f'''
    s_mov_b32 s{SDONE}, 1
    GT_ws:
    s_lshl2_add_u32 s{S_SEG}, s{SJ}, s{SXG}
    s_add_u32 s{S_SEG}, s{S_SEG}, s{SB}
    ''')
    p(ssum(G, [(S_SEG, 8)], F_O))
    wait_flag(p, 'GT_wo', G, '8')
    RING = 40; ACC = V_G + 10
    p(ssum(G, [(S_SEG, 18), (S_WAVE, 16)], WS_O, G+1))
    def load(n):
        ks, t = n >> 1, n & 1
        out = []
        if n and n % 4 == 0: out.append(f's_add_u32 s{G}, s{G}, 4096')
        out.append(ld(4, 64 + 4*(n % RING), V_OO, G, (ks&1)*2048 + t*256))
        return out
    for n in range(RING): p(load(n))
    for n in range(64):
        ks, t = n >> 1, n & 1
        p(f's_waitcnt vmcnt({min(RING-1, 63-n)})')
        for pp in range(2):
            d = ACC + (t*2+pp)*4
            p(f'v_mfma_f32_16x16x32_bf16 {vr(d,4)}, {ar((pp*32+ks)*4,4)}, {vr(64 + 4*(n % RING),4)}, {"0" if ks == 0 else vr(d,4)}')
        if n + RING < 64: p(load(n + RING))
    a, b = V_G+3, V_G+4
    p(f's_and_b32 s{G+2}, s{SJ}, 1'); p(ssum(G+3, [(G+2, 14), (S_WAVE, 12)], 0, G+1))
    p(bits(a, [(0, 6, 4)], G+3, c))
    for k in range(4): p(f'ds_write_b128 v{a}, {vr(ACC+4*k,4)} offset:{1024*k}')
    p(ssum(G+3, [(G+2, 14), (S_WAVE, 11)], 0, G+1)); p(bits(a, [(0, 6, 4)], G+3, c))
    p(bits(b, [(0, 4, 12), (4, 2, 4)], None, c))
    p(ssum(G+3, [(S_SEG, 17), (S_WAVE, 16), (S_IDX, 6)], 0, G+1))
    p(f's_cmp_ge_u32 s{S_WAVE}, 2\ns_waitcnt lgkmcnt(0)\ns_barrier\ns_cbranch_scc1 GT_nx')
    for w in range(4):
        for pp in range(2): p(f'ds_read_b128 {vr(64 + 8*w + 4*pp,4)}, v{a} offset:{4096*w + 1024*pp}')
    for w in range(1, 4):
        p(f's_waitcnt lgkmcnt({6-2*w})')
        for k in range(0, 8, 2): p(f'v_pk_add_f32 {vr(64+k,2)}, {vr(64+k,2)}, {vr(64+8*w+k,2)}')
    for r in range(4): p(f'v_cvt_pk_bf16_f32 v{V_E+40+r}, v{64+r}, v{68+r}')
    p(st(4, V_E+40, b, G+3, 0, '', S_OS))
    p(f'''
    GT_nx:
    s_add_u32 s{SJ}, s{SJ}, 1
    s_cmp_lt_u32 s{SJ}, 4
    s_cbranch_scc1 GT_j
    s_add_u32 s{SB}, s{SB}, 16
    s_cmp_lt_u32 s{SB}, 64
    s_cbranch_scc1 GT_blk
    ''')

def far(lbl):
    G = S_G
    return f's_getpc_b64 s[{G}:{G+1}]\n{lbl}_pc{far.n}:\ns_add_u32 s{G}, s{G}, {lbl}-{lbl}_pc{far.n}\ns_addc_u32 s{G+1}, s{G+1}, -1\ns_setpc_b64 s[{G}:{G+1}]'
far.n = 0

def g_role(p, o, verify):
    G = S_G; D = S_D
    g_init(p, o)
    def stamp():
        if o.get('gtrace'):
            p(f'''
            s_memrealtime s[{G}:{G+1}]
            s_add_u32 s98, s98, 4
            s_waitcnt lgkmcnt(0)
            v_mov_b32 v{V_G}, s{G}
            v_mov_b32 v{V_G+1}, 0
            {st(1, V_G, V_G+1, 98)}
            ''')
    fine = lambda k: (stamp if o.get('fine') == k else None)
    fs = lambda k: (stamp() if o.get('fine') == k else None)
    if o.get('gtrace'): p(ssum(98, [(S_XCD, 15), (S_IDX, 10), (S_WAVE, 8)], 0xF800000 - 4, G))
    p(f'''
    {'s_endpgm' if o.get('nog') else ''}
    G_next:
    s_load_dwordx8 s[{D}:{D+7}], s[{S_TP}:{S_TP+1}], 0
    s_add_u32 s{S_TP}, s{S_TP}, 32
    s_addc_u32 s{S_TP+1}, s{S_TP+1}, 0
    ''')
    stamp()
    p(f'''
    s_waitcnt lgkmcnt(0)
    s_cmp_eq_u32 s{D}, {T_END}
    s_cbranch_scc1 G_end
    s_cmp_eq_u32 s{D}, {T_BQ}
    s_cbranch_scc1 G_nowait
    s_cmp_eq_u32 s{D+5}, 0
    s_cbranch_scc1 G_nowait
    ''')
    wait_flag(p, 'G_w', D+4, D+5, 0, 0xff)
    p(f'''
    G_nowait:
    s_mov_b32 s{S_XO}, s{D+1}
    s_mov_b32 s{S_WO}, s{D+2}
    s_mov_b32 s{S_CNT}, 8
    s_cmp_eq_u32 s{D}, {T_WAIT}
    s_cbranch_scc1 G_next
    s_cmp_eq_u32 s{D}, {T_RED}
    s_cbranch_scc1 G_red
    s_cmp_eq_u32 s{D}, {T_G3}
    s_cbranch_scc1 G_g3
    s_cmp_eq_u32 s{D}, {T_TAIL}
    s_cbranch_scc1 G_tail
    s_cmp_eq_u32 s{D}, {T_ATT}
    s_cbranch_scc1 G_att
    ; ---- K = 1024 projections: choose the operands
    s_cmp_ge_u32 s{D}, {T_BKV}
    s_cselect_b64 s[{S_XS}:{S_XS+1}], s[{P_BX}:{P_BX+1}], s[{P_AX}:{P_AX+1}]
    s_cselect_b32 s{S_STR}, 6144, 8192
    s_cselect_b32 s{S_WSRD+2}, 0x600000, 0x800000
    s_cselect_b64 s[{S_WSRD}:{S_WSRD+1}], s[{P_BW}:{P_BW+1}], s[{P_WQ}:{P_WQ+1}]
    s_cselect_b32 s{G}, 0, s{D+7}
    s_and_b32 s{G}, s{G}, 3
    s_cmp_eq_u32 s{G}, 1
    s_cselect_b64 s[{S_WSRD}:{S_WSRD+1}], s[{P_WK}:{P_WK+1}], s[{S_WSRD}:{S_WSRD+1}]
    s_cmp_eq_u32 s{G}, 2
    s_cselect_b64 s[{S_WSRD}:{S_WSRD+1}], s[{P_WV}:{P_WV+1}], s[{S_WSRD}:{S_WSRD+1}]
    s_cmp_eq_u32 s{D}, {T_BKV}
    s_cbranch_scc1 G_bkv
    '''.replace('s_cselect_b32 s%d, 6144, 8192' % S_STR, 's_mov_b32 s%d, 8192\ns_cselect_b32 s%d, 6144, s%d' % (S_STR, S_STR, S_STR))
       .replace('s_cselect_b32 s%d, 0x600000, 0x800000' % (S_WSRD+2), 's_mov_b32 s%d, 0x800000\ns_cselect_b32 s%d, 0x600000, s%d' % (S_WSRD+2, S_WSRD+2, S_WSRD+2)))
    p(f's_cmp_eq_u32 s{D}, {T_G1H}\ns_cbranch_scc0 G_g1f')
    sigval = lambda w: f's_and_b32 s{G+2}, s{D+7}, 3\ns_cselect_b32 s{G+2}, {w}, {w << 8}'
    def touch(p):
        b = V_G+9
        p(f's_and_b32 s{G+2}, s{S_IDX}, 15\ns_and_b32 s{G}, s{D+1}, 0xfffff000'); p(ssum(G+2, [(G+2, 14), (S_WAVE, 12), (G, 0)], 0, G+1))
        p(f's_bitcmp1_b32 s{D+7}, 3\ns_cselect_b32 s{G+2}, s{G+2}, 0x40000000')
        p(bits(b, [(0, 5, 7), (5, 1, 19)], G+2, V_G+10))
        p(ld(1, V_G+10, b, '0', 0, '', S_XS))
        return 1
    p(f's_mov_b32 s{S_CNT}, 4')
    PF = V_G + 8
    share = f'''
    s_sub_u32 s{G}, s{S_XCD}, 4
    s_lshl_b32 s{G}, s{G}, 5
    s_add_u32 s{G}, s{G}, s{S_IDX}
    s_lshl2_add_u32 s{G}, s{G}, s{S_WAVE}
    s_lshl_b32 s{G}, s{G}, 13
    s_bitcmp1_b32 s{D+7}, 2
    s_cselect_b32 s{G}, s{G}, 0x40000000
    v_lshl_add_u32 v{PF}, v{V_LANE}, 7, s{G}
    '''
    p(share)
    setup_w(p, 4); setup_x(p, 4, False); core(p, 'G1H', 4, 4, 4, False, False, '', o['hook_reg'], wfl=o.get('ntq', ''), wrap=True, pre=touch, last=[ld(1, PF+1, PF, '0', 0, '', S_XS)], stamp=fine('q'))
    verify(p, 'GV1'); fs('q')
    epi_units(p, 4, 4); fs('q')
    p(sigval(1)); signal(p, 'G1H_s', D+6, f's{G+2}')
    p('s_branch G_next\nG_red:')
    task_red(p); signal(p, 'G_red_s', D+6, 1)
    p('s_branch G_next\nG_att:')
    p(f's_mov_b32 s{S_SEG}, s{D+1}\ns_mov_b32 s{S_A+10}, s{D+2}\nG_attl:')
    att_task(p, o, 'GA')
    p(f's_add_u32 s{S_SEG}, s{S_SEG}, s{D+7}\ns_cmp_lt_u32 s{S_SEG}, s{D+3}\ns_cbranch_scc1 G_attl')
    p('s_branch G_next\nG_g3:')
    p(f'''
    s_cmp_eq_u32 s{D+7}, 0
    s_cselect_b64 s[{S_WSRD}:{S_WSRD+1}], s[{P_BO}:{P_BO+1}], s[{P_WO}:{P_WO+1}]
    s_mov_b32 s{S_WSRD+2}, 0x800000
    s_cselect_b32 s{S_WSRD+2}, 0x200000, s{S_WSRD+2}
    s_cselect_b32 s{S_CNT}, 4, 16
    s_mov_b32 s{G+9}, 0x40000
    s_cselect_b32 s{G+9}, 0x10000, s{G+9}
    s_mov_b32 s{S_STR}, 2048
    ''')
    setup_w(p, 4, perm=True); setup_x(p, 4, True, G+9); core(p, 'G3', 4, 4, 4, True, False, 'sc1')
    epi_out(p, 4, 4)
    p('s_branch G_next\nG_g1f:')
    setup_w(p, 8); setup_x(p, 8, False)
    p(share)
    A = S_A + 2
    last = []
    for ptr, size, so in [(P_BX, 0x400000, '0'), (P_BW, 0x600000, '0'), (P_BW, 0x600000, A+4), (P_BO, 0x200000, '0')]:
        last.append(f's_mov_b64 {sr(A,2)}, {sr(ptr,2)}\ns_mov_b32 s{A+2}, {size}\ns_mov_b32 s{A+3}, 0x20000\ns_mov_b32 s{A+4}, 0x400000\n' + ld(1, PF+1, PF, so, 0, '', A))
    core(p, 'G1F', 8, 8, 2, False, False, last=last, stamp=fine('F'))
    p(f's_cmp_eq_u32 s{D}, {T_BQ}\ns_cbranch_scc1 G_bq')
    epi_units(p, 8, 8); fs('F')
    p(sigval(2)); signal(p, 'G1F_s', D+6, f's{G+2}', '3', 2048)
    p('s_branch G_next\nG_bq:')
    wait_flag(p, 'G_bqw', D+4, D+5)
    epi_bq(p); fs('F'); signal(p, 'G_bq_s', D+6, 1)
    p('s_branch G_next\nG_bkv:')
    setup_w(p, 8, True); setup_x(p, 8, False); core(p, 'GKV', 8, 8, 2, False, True)
    epi_bkv(p); signal(p, 'G_bkv_s', D+6, 1)
    p('s_branch G_next\nG_tail:')
    p(f's_mov_b64 s[{S_WSRD}:{S_WSRD+1}], s[{P_BO}:{P_BO+1}]\ns_mov_b32 s{S_WSRD+2}, 0x200000\ns_mov_b32 s{G+9}, 0x10000\ns_mov_b32 s{S_STR}, 2048')
    setup_w(p, 8, perm=True); setup_x(p, 8, True, G+9); core(p, 'G3F', 8, 8, 2, True, False, 'sc1')
    epi_out(p, 8, 8)
    p('s_branch G_next\nG_end:')

def t_proj(mat, row0, nt, pf=0):
    base = [WS_Q, WS_KX, WS_VX][mat]
    return [T_G1F, row0*2048, nt*512, base + (row0//32)*0x40000 + nt*2*8192, 0, 0, F_KV + (row0//128)*2048 + (nt//2)*256, mat + 4*pf]
def t_projq(mat, blk, h, rot=0, cold=0, pf=0):
    base = [WS_Q, WS_KX, WS_VX][mat]
    return [T_G1H, blk*128*2048 + rot*128, h*256 + rot*64*8192, base + blk*4*0x40000 + h*8192, 0, 0, F_KV + blk*2048 + (h//4)*256, mat + 8*cold + 4*pf]
def t_bkv(mt, nt): return [T_BKV, mt*256*2048, 2048 + nt*256, WS_KVP + (2*mt*32 + 4*nt)*6144, 0, 0, F_BKV + nt*256, 0]
def t_red(h): return [T_RED, WS_KVP + h*6144, 0, WS_KVR + h*3072, F_BKV + (h//4)*256, 8, F_BRED + (h//8)*256, 0]
def t_bq(mt, nt): return [T_BQ, mt*256*2048, nt*512, WS_OB + mt*8*0x10000 + nt*32*512, F_BRED + nt*256, 8, F_BQ + mt*256, WS_KVR + nt*8*3072]
def t_bwo(blk, n8): return [T_G3, WS_OB + blk*4*0x10000, n8*256, blk*128*4096 + 2048 + n8*256, F_BQ + (blk//2)*256, 4, 0, 0]
def t_wo(blk, n8): return [T_G3, WS_O + blk*4*0x40000, n8*256, blk*128*4096 + n8*256, F_OB + blk*256, 32, 0, 1]
def t_wait(off, val): return [T_WAIT, 0, 0, 0, off, val, 0, 0]
def t_att(seg0, seg1, v, step=1): return [T_ATT, seg0, v, seg1, 0, 0, 0, step]
def t_bwof(mt, nt): return [T_TAIL, WS_OB + mt*8*0x10000, nt*512, mt*256*4096 + 2048 + nt*512, F_BQ + mt*256, 4, 0, 0]
def schedule(o):
    import sched_g
    return sched_g.schedule(o)
def table(lists, ntask):
    out = ['.p2align 6', '.type G_table,@object', 'G_table:']
    for L in lists:
        assert len(L) < ntask
        for t in L + [[0]*8]*(ntask - len(L)):
            out.append('.long ' + ','.join(hex(x) if x > 9 else str(x) for x in t))
    return '\n'.join(out) + '\n'
```

```python
from asmlib import *
import math
WS_B    = 0x0000000
WS_M2   = 0x0200000
M2_A    = 0x10000
WS_FLAG = 0x0400000
WS_KM   = 0x0800000
WS_VM   = 0x0C00000
WS_KX   = 0x1000000
WS_VX   = 0x2000000
WS_TRACE = 0xF000000
WS_SIZE = 0x10000000 - 0x200000
NSEG = 64
S_WS = 8
S_XCD, S_IDX, S_WAVE = 12, 13, 14
S_BUD = 15
S_DBG = 16
S_V, S_C, S_J, S_H = 20, 21, 22, 23
S_STEP, S_CUR, S_NXT, S_RST = 24, 25, 26, 27
S_KXO, S_VXO, S_WUO, S_KMO = 28, 29, 30, 31
S_SRD = 32
S_T = 36
S_M_LO8, S_M_HI8, S_M_SM, S_M_C, S_M_32 = 44, 46, 48, 50, 52
S_SCL = 54
S_PERM0, S_PERM1 = 55, 56
S_POL = 57
S_NOCHK = 58
S_PRV = 59
S_PVX = 95
S_JV = 89
S_M_F = 100
S_KVF, S_KVO = 18, 19
F_KV_ = WS_FLAG + 0x8000
F_FIN_ = WS_FLAG + 0x0800
F_OV_ = WS_FLAG + 0x4000
F_P_ = WS_FLAG + 0x5000
WS_O_ = 0x4000000
WS_PART = 0x6000000
S_ST = 60
S_TAG, S_PFV, S_PFK, S_FBO, S_JUNK, S_SPIN = 86, 88, 89, 92, 93, 94
S_FB = 96
M2_F = 0x50000
B_F = 0x40000
V_LANE = 1
(V_CLD, V_CST, V_ALD, V_ALM, V_ALV, V_P0, V_P1, V_BST, V_BLD, V_KX, V_VX0, V_VX1, V_WU,
 V_L1W, V_L1WK, V_L1WV, V_L1R, V_L1R2, V_L2W0, V_L2W1, V_L2R, V_IDX1, V_IDX2, V_PST) = range(2, 26)
V_SELM = 26
V_SENT = 28
V_ONES = 32
V_BW = 40
V_VXD = 72
V_KXD = 104
V_ACC1 = 112
V_VWM = 136
V_FIN = 152
V_KEEP = 172
V_P = 176
V_SELA = 180
V_SELB = 184
V_T = 188
V_FA, V_TAG = 252, 253
V_KXA = 0
A_W1 = 0
A_WO = 192
W1 = lambda mat, tq, i: A_W1 + ((mat*2 + tq)*4 + i)*8
WO = lambda tq, ks: A_WO + (tq*2 + ks)*8
LDS1 = 0
LDS2 = 12288

def ld(n, dst, voff, soff, imm=0, fl='sc1', srd=S_WS):
    suf = {1: 'dword', 2: 'dwordx2', 4: 'dwordx4'}[n]
    d = dst if isinstance(dst, str) else vr(dst, n)
    so = soff if isinstance(soff, str) else sr(soff)
    return f'buffer_load_{suf} {d}, {vr(voff)}, {sr(srd,4)}, {so} offen offset:{imm} {fl}'
def st(n, src, voff, soff, imm=0, fl='', srd=S_WS):
    suf = {1: 'dword', 2: 'dwordx2', 4: 'dwordx4'}[n]
    so = soff if isinstance(soff, str) else sr(soff)
    return f'buffer_store_{suf} {vr(src, n)}, {vr(voff)}, {sr(srd,4)}, {so} offen offset:{imm} {fl}'
def zero(base, n): return [f'v_mov_b64 {vr(base+i,2)}, 0' for i in range(0, n, 2)]
def setexec(m): return f's_mov_b64 exec, {sr(m,2)}' if m is not None else 's_mov_b64 exec, -1'
def bits(dst, terms, base=None, tmp=None, src=V_LANE):
    out = []
    first = True
    for lo, w, sh in terms:
        if first:
            out.append(f'v_bfe_u32 v{dst}, v{src}, {lo}, {w}')
            if sh: out.append(f'v_lshlrev_b32 v{dst}, {sh}, v{dst}')
            first = False
        else:
            out.append(f'v_bfe_u32 v{tmp}, v{src}, {lo}, {w}')
            out.append(f'v_lshl_add_u32 v{dst}, v{tmp}, {sh}, v{dst}')
    if base is not None:
        out.append(f'v_add_u32 v{dst}, {base[1] if isinstance(base, tuple) else "s%d" % base}, v{dst}')
    return out
def ssum(dst, terms, lit=0, tmp=None):
    out = []
    first = True
    for s_, sh in terms:
        if first: out.append(f's_lshl_b32 s{dst}, s{s_}, {sh}'); first = False
        else: out += [f's_lshl_b32 s{tmp}, s{s_}, {sh}', f's_add_u32 s{dst}, s{dst}, s{tmp}']
    if lit: out.append(f's_add_u32 s{dst}, s{dst}, {lit}')
    return out

def r_setup(p, o):
    T = S_T
    a, b, c_ = V_T+5, V_T+6, V_T+7
    L = V_LANE
    B = lambda dst, terms, base=None: p(bits(dst, terms, base, c_))
    S = lambda terms, lit=0, dst=T+1: p(ssum(dst, terms, lit, T+3))
    p(f'''
    s_lshr_b32 s{T}, s{S_IDX}, 4
    s_lshl1_add_u32 s{S_V}, s{S_XCD}, s{T}
    s_and_b32 s{S_C}, s{S_IDX}, 15
    s_and_b32 s{S_J}, s{S_C}, 3
    s_xor_b32 s{S_JV}, s{S_J}, 2
    s_lshr_b32 s{T}, s{S_C}, 2
    s_lshl2_add_u32 s{S_H}, s{S_V}, s{T}
    s_lshl2_add_u32 s{T+4}, s{S_V}, s{S_WAVE}
    s_mov_b32 s{S_M_LO8}, 0x00ff00ff
    s_mov_b32 s{S_M_LO8+1}, 0x00ff00ff
    s_mov_b32 s{S_M_HI8}, 0xff00ff00
    s_mov_b32 s{S_M_HI8+1}, 0xff00ff00
    s_mov_b32 s{S_M_SM}, 0
    s_mov_b32 s{S_M_SM+1}, 0x00ff00ff
    s_mov_b32 s{S_M_C}, 0x00ff00ff
    s_mov_b32 s{S_M_C+1}, 0
    s_mov_b32 s{S_M_32}, -1
    s_mov_b32 s{S_M_32+1}, 0
    s_mov_b32 s{S_SCL}, 0x{o['scl']:08x}
    s_mov_b32 s{S_PERM0}, 0x05040100
    s_mov_b32 s{S_PERM1}, 0x07060302
    ''')
    S([(S_XCD, 14), (S_WAVE, 12)], WS_M2); B(V_CLD, [(0, 6, 4)], T+1)
    S([(S_XCD, 14), (S_IDX, 9), (S_WAVE, 7)], WS_M2); B(V_CST, [(0, 3, 4), (4, 1, 3)], T+1)
    p(f's_lshr_b32 s{T}, s{S_IDX}, 1\ns_and_b32 s{T+2}, s{S_IDX}, 1')
    S([(T, 14), (T+2, 12), (S_WAVE, 10)]); B(V_BLD, [(0, 6, 4)], T+1)
    S([(S_C, 14), (S_WAVE, 11), (S_V, 7)]); B(V_BST, [(0, 4, 3), (4, 1, 10)], T+1)
    S([(T+4, 13)], WS_M2 + M2_A); B(V_ALD, [(0, 6, 4)], T+1)
    p(f'v_add_u32 v{V_ALV}, 3072, v{V_ALD}')
    S([(T+4, 13)], WS_M2 + M2_A + 2048); B(V_ALM, [(0, 6, 3)], T+1)
    S([(T+4, 13)], WS_VX); B(V_VX0, [(4, 2, 9), (3, 1, 8), (1, 1, 6), (2, 1, 5), (0, 1, 4)], T+1)
    p(f'v_add_u32 v{V_VX1}, 4096, v{V_VX0}')
    S([(T+4, 13), (S_C, 9)], WS_VX, S_PFV)
    p(f's_lshr_b32 s{T}, s{S_WAVE}, 1\ns_and_b32 s{T+2}, s{S_WAVE}, 1')
    S([(T, 14), (T+2, 12), (S_IDX, 7), (S_XCD, 2)], B_F)
    p(f'v_mov_b32 v{V_WU}, s{T+1}')
    S([(S_XCD, 9), (S_IDX, 4), (S_WAVE, 2)], WS_M2 + M2_F)
    p(f'v_mov_b32 v{a}, s{T+1}\nv_mov_b32 v{b}, 0x7ffffff0\nv_cmp_eq_u32 vcc, 0, v{L}\nv_cndmask_b32 v{V_FA}, v{b}, v{a}, vcc')
    p(f's_lshr_b32 s{T}, s{S_XCD}, 1\ns_and_b32 s{T+2}, s{S_XCD}, 1')
    S([(T, 14), (T+2, 12), (S_IDX, 7)], B_F, S_FBO)
    S([(S_H, 13), (S_J, 11)], WS_KX); B(V_KX, [(4, 2, 9), (0, 4, 4)], T+1)
    p(f's_cmp_eq_u32 s{S_WAVE}, 0\ns_cselect_b32 s{T}, 0, 0x40000000\nv_add_u32 v{V_KXA}, s{T}, v{V_KX}')
    p(f'''
    v_and_b32 v{a}, 2, v{L}
    v_cmp_eq_u32 vcc, 0, v{a}
    v_mov_b32 v{a}, 0x4444
    v_mov_b32 v{b}, 0xeeee
    v_cndmask_b32 v{V_IDX1}, v{b}, v{a}, vcc
    v_mov_b32 v{a}, 0xe484
    v_mov_b32 v{b}, 0xee9e
    v_cndmask_b32 v{V_IDX2}, v{b}, v{a}, vcc
    v_mov_b32 v{a}, 0x84e4
    v_mov_b32 v{b}, 0x9eee
    v_cndmask_b32 v{a}, v{b}, v{a}, vcc
    v_cmp_gt_u32 vcc, 32, v{L}
    v_cndmask_b32 v{V_IDX2}, v{a}, v{V_IDX2}, vcc
    ''')
    for k in range(4): p(f'v_mov_b32 v{V_SENT+k}, -1')
    for k in range(8): p(f'v_mov_b32 v{V_ONES+k}, {"0" if k % 4 == 3 else "0x3f803f80"}')
    for tq in range(4): p(f'v_mov_b32 v{V_BW+8*tq+3}, 0\nv_mov_b32 v{V_BW+8*tq+7}, 0')
    B(a, [(0, 1, 4)]); p(f'v_mov_b32 v{b}, 0x3f80\nv_lshlrev_b32 v{a}, v{a}, v{b}')
    B(b, [(1, 3, 0)])
    for k in range(8): p(f'v_cmp_eq_u32 vcc, {k}, v{b}\nv_cndmask_b32 v{V_SELA+k}, 0, v{a}, vcc')
    B(a, [(3, 1, 4)]); p(f'v_mov_b32 v{b}, 0x3f80\nv_lshlrev_b32 v{a}, v{a}, v{b}')
    B(b, [(2, 1, 0)])
    for k in range(2): p(f'v_cmp_eq_u32 vcc, {k}, v{b}\nv_cndmask_b32 v{V_SELM+k}, 0, v{a}, vcc')
    S([(S_WAVE, 10)], LDS1); B(a, [(4, 2, 8), (1, 3, 4), (0, 1, 3)], T+1)
    B(b, [(4, 2, 5)])
    p(f'v_xor_b32 v{V_L1W}, v{a}, v{b}\nv_xor_b32 v{V_L1WK}, 16, v{V_L1W}\nv_add_u32 v{V_L1WK}, 4096, v{V_L1WK}')
    B(b, [(4, 1, 6), (5, 1, 5)])
    p(f'v_xor_b32 v{V_L1WV}, v{a}, v{b}\nv_add_u32 v{V_L1WV}, 8192, v{V_L1WV}')
    S([(S_WAVE, 11)], LDS2); B(a, [(4, 2, 9), (0, 4, 4)], T+1)
    B(b, [(4, 2, 6)])
    p(f'v_xor_b32 v{V_L2W0}, v{a}, v{b}\nv_xor_b32 v{V_L2W1}, 32, v{V_L2W0}')
    S([(S_WAVE, 6)], LDS2); B(a, [(3, 2, 9), (1, 1, 8), (2, 1, 5), (0, 1, 4)], T+1)
    B(b, [(3, 2, 6), (1, 1, 5)])
    p(f'v_xor_b32 v{V_L2R}, v{a}, v{b}')
    S([(S_H, 13)], WS_M2 + M2_A, T+5)
    p(f'''
    s_cmp_eq_u32 s{S_WAVE}, 1
    s_cbranch_scc1 R_su1
    s_cmp_eq_u32 s{S_WAVE}, 2
    s_cbranch_scc1 R_su2
    s_cmp_eq_u32 s{S_WAVE}, 3
    s_cbranch_scc1 R_su3
    ''')
    B(a, [(3, 1, 12), (0, 3, 7), (4, 2, 5)], ('lit', LDS1) if LDS1 else None)
    B(b, [(1, 2, 5), (3, 1, 4)])
    p(f'v_xor_b32 v{V_L1R}, v{a}, v{b}\nv_xor_b32 v{V_L1R2}, 16, v{V_L1R}')
    S([(T+5, 0), (S_J, 8)]); B(V_P0, [(5, 1, 10), (1, 2, 6), (4, 1, 5), (0, 1, 4)], T+1)
    S([(T+5, 0), (S_J, 7)], 2048); B(V_P1, [(1, 2, 5), (4, 1, 4), (0, 1, 3)], T+1)
    S([(S_H, 11), (S_J, 9)], WS_KM); B(V_PST, [(4, 2, 7), (0, 3, 4)], T+1)
    p('s_branch R_sud\nR_su1:')
    p(f'v_cmp_gt_u32 vcc, 32, v{L}')
    S([(T+5, 0), (S_J, 8)]); B(a, [(4, 1, 10), (0, 4, 4)], T+1)
    S([(T+5, 0), (S_JV, 9)], 3072); B(b, [(0, 5, 4)], T+1)
    p(f'v_cndmask_b32 v{V_P0}, v{b}, v{a}, vcc')
    S([(S_XCD, 14), (S_IDX, 9)], WS_M2); B(a, [(0, 5, 4)], T+1)
    S([(T+5, 0), (S_J, 7)], 2048); B(b, [(0, 3, 4)], T+1)
    p(f'v_cndmask_b32 v{V_P1}, v{b}, v{a}, vcc')
    S([(S_V, 8)], WS_FLAG)
    p(f'v_mov_b32 v{V_PST}, s{T+1}')
    S([(S_C, 14), (S_V, 7)]); B(V_KX, [(0, 4, 3), (4, 2, 10)], T+1)
    S([(S_XCD, 9)], WS_M2 + M2_F); B(V_L1R2, [(0, 6, 3)], T+1)
    p(f'v_mov_b32 v{V_L1R}, 0\nv_mov_b32 v{V_KEEP}, -1\nv_mov_b32 v{V_KEEP+1}, -1\ns_branch R_sud\nR_su2:')
    B(a, [(5, 1, 6), (2, 1, 5), (3, 2, 3), (1, 1, 2), (0, 1, 9)], ('lit', LDS1 + 8192))
    B(b, [(0, 1, 5)])
    p(f'v_xor_b32 v{V_L1R}, v{a}, v{b}\nv_xor_b32 v{V_L1R2}, 64, v{V_L1R}')
    S([(S_H, 11), (S_JV, 9)], WS_VM); B(V_PST, [(0, 6, 3)], T+1)
    p(f'v_mov_b32 v{V_P0}, 0\nv_mov_b32 v{V_P1}, 0\ns_branch R_sud\nR_su3:')
    B(a, [(1, 1, 9), (3, 2, 7), (5, 1, 6), (2, 1, 5), (0, 1, 4)], ('lit', LDS1 + 8192))
    B(b, [(4, 1, 6), (1, 1, 5)])
    p(f'v_xor_b32 v{V_L1R}, v{a}, v{b}')
    S([(T+5, 0), (S_JV, 9)], 3072); B(V_P0, [(0, 6, 3)], T+1)
    S([(S_C, 14), (S_V, 7)], 4096); B(V_KX, [(0, 4, 3), (4, 2, 10)], T+1)
    p(f'v_mov_b32 v{V_L1R2}, 0\nv_mov_b32 v{V_P1}, 0\nv_mov_b32 v{V_PST}, 0\nR_sud:')

def r_weights(p, o):
    T = S_T
    c_ = V_T+7
    W1o, WOo, WVo = V_T+24, V_T+28, V_T+32
    lqk, lv_, lo, ad = V_T+8, V_T+9, V_T+10, V_T+11
    hq, ho = V_T+36, V_T+37
    B = lambda dst, terms, base=None: p(bits(dst, terms, base, c_))
    NS = o.get('NS', 8)
    SO, SM = S_KXO, S_VXO
    p(f"""
    s_load_dwordx2 s[{T}:{T+1}], s[0:1], 16
    s_load_dwordx2 s[{T+2}:{T+3}], s[0:1], 24
    s_load_dwordx2 s[{T+4}:{T+5}], s[0:1], 32
    s_load_dwordx2 s[{T+6}:{T+7}], s[0:1], 40
    s_mul_i32 s{SM}, s{S_WAVE}, {NS*4096}
    """)
    p(ssum(S_SRD, [(S_WAVE, 21), (S_H, 8), (S_J, 6)], 0, S_SRD+1))
    B(W1o, [(2, 4, 13), (0, 2, 4)], S_SRD)
    for j in range(1, 4): p(f'v_add_u32 v{W1o+j}, {j*16*8192 - 1024*j}, v{W1o}')
    for j in range(4): p(f'v_xor_b32 v{WVo+j}, 128, v{W1o+j}')
    p(ssum(S_SRD, [(S_V, 20), (S_WAVE, 18), (S_C, 7)], 0, S_SRD+1))
    B(WOo, [(3, 3, 11), (0, 3, 4)], S_SRD)
    for j in range(1, 4): p(f'v_add_u32 v{WOo+j}, {j*8*2048 - 1024*j}, v{WOo}')
    p(f's_mov_b32 s{S_SRD+2}, 0x800000\ns_mov_b32 s{S_SRD+3}, 0x20000\ns_waitcnt lgkmcnt(0)')
    order = [(m, i) for pr in o.get('word', ((1, 2), (0, 3))) for i in range(4) for m in pr]
    def issue1(k, j):
        mat, i = order[k]
        return [f's_mov_b32 s{S_SRD}, s{T+2*mat}\ns_mov_b32 s{S_SRD+1}, s{T+2*mat+1}', f's_add_u32 m0, s{SM}, {(k % NS)*4096}',
                f's_mov_b32 s{SO}, {64*i*8192 if mat < 3 else 32*i*2048}',
                f'buffer_load_dwordx4 v{[W1o, W1o, WVo, WOo][mat]+j}, {sr(S_SRD,4)}, s{SO} offen offset:{1024*j} {o.get("ntw", [""]*4)[mat]} lds']
    def issue(k):
        return [x for kk in (k, k+1) for j in range(4) for x in (issue1(kk, j) if j == 0 else issue1(kk, j)[-1:])]
    if o.get('help', 1):
        p(ssum(SO, [(S_IDX, 18), (S_WAVE, 16), (S_XCD, 11)], 0x180, S_WUO)); B(hq, [(1, 3, 13), (0, 1, 10)], SO)
        p(ssum(SO, [(S_XCD, 21), (S_IDX, 16), (S_WAVE, 14)], 0x180, S_WUO)); B(ho, [(0, 4, 10)], SO)
    def helper(mats):
        p('s_mov_b64 exec, 0xffff')
        for mat in mats: p(f's_mov_b32 s{S_SRD}, s{T+2*mat}\ns_mov_b32 s{S_SRD+1}, s{T+2*mat+1}\n' + ld(1, V_T+38, hq if mat < 3 else ho, '0', 0, '', S_SRD))
        p('s_mov_b64 exec, -1')
    assert NS == 8
    p(f's_buffer_load_dword s{S_JUNK}, {sr(S_WS,4)}, 0x7f000')
    helper((1, 2))
    for k in range(0, NS, 2):
        if k == o.get('help2', 6): helper((0, 3))
        p(issue(k))
    B(lqk, [(5, 1, 10), (4, 1, 8), (1, 1, 5), (2, 2, 3), (0, 1, 2)], SM)
    B(lv_, [(5, 1, 10), (4, 1, 8), (0, 1, 5), (3, 1, 4), (1, 1, 3), (2, 1, 2)], SM)
    B(lo, [(4, 2, 9), (0, 4, 3)], SM)
    if o.get('hook_race'): o['hook_race'](p, 4*NS + 4)
    sb = 72
    for k in range(16):
        mat, i = order[k]
        if k % 2 == 0: p(f's_waitcnt vmcnt({4*(min(k+NS-1, 15) - k - 1) + (4 if k + NS > 16 else 0)})')
        for R in range(2):
            p(f'v_add_u32 v{ad}, {(k % NS)*4096 + R*2048}, v{[lqk, lqk, lv_, lo][mat]}')
            if mat < 3:
                for vv in range(4):
                    o0 = 128*(vv & 1) + 32*(vv >> 1)
                    p(f'ds_read2_b32 {vr(sb+2*(4*R+vv),2)}, v{ad} offset0:{o0} offset1:{o0+16}')
            else:
                for v1 in range(2): p(f'ds_read2_b64 {vr(sb+4*(2*R+v1),4)}, v{ad} offset0:{32*v1} offset1:{32*v1+16}')
        p('s_waitcnt lgkmcnt(0)')
        if k % 2 == 1 and k + NS < 16: p(issue(k - 1 + NS))
        if k + NS == 16:
            p(f's_load_dwordx2 s[{T}:{T+1}], s[0:1], 8\ns_lshl_b32 s{SO}, s{S_WAVE}, 9')
            B(W1o, [(2, 2, 12), (0, 1, 11), (4, 2, 5), (1, 1, 4)])
            p(f's_waitcnt lgkmcnt(0)\ns_mov_b32 s{S_SRD}, s{T}\ns_mov_b32 s{S_SRD+1}, s{T+1}\ns_mov_b32 s{S_SRD+2}, 16384')
            for q in range(4): p(ld(4, V_T+40+4*q, W1o, SO, 128*q, '', S_SRD))
        if mat < 3:
            for v in range(8):
                p(f'v_perm_b32 v{V_T+12}, v{sb+2*v+1}, v{sb+2*v}, s{S_PERM0}\nv_perm_b32 v{V_T+13}, v{sb+2*v+1}, v{sb+2*v}, s{S_PERM1}')
                p(f'v_accvgpr_write_b32 a{W1(mat,0,i)+v}, v{V_T+12}\nv_accvgpr_write_b32 a{W1(mat,1,i)+v}, v{V_T+13}')
        else:
            ks, R = i >> 1, i & 1
            for vv in range(4):
                for tq in range(4): p(f'v_perm_b32 v{V_T+12+tq}, v{sb+4*vv+2+(tq>>1)}, v{sb+4*vv+(tq>>1)}, s{S_PERM0 + (tq&1)}')
                for tq in range(4): p(f'v_accvgpr_write_b32 a{WO(tq,ks)+4*R+vv}, v{V_T+12+tq}')
    p('s_barrier')

def vwx_groups(reload_so):
    ACC = V_T
    out = []
    for T_ in range(2):
        for u in range(4):
            grp = []
            q = V_VXD + (T_*4+u)*4
            for tq in range(4):
                d = ACC + (T_*4+tq)*4
                grp.append(f'v_mfma_f32_16x16x32_bf16 {vr(d,4)}, {vr(q,4)}, {ar(WO(tq,u>>1)+4*(u&1),4)}, {"0" if u == 0 else vr(d,4)}')
            grp.append(ld(4, q, V_VX0 + (u >> 1), reload_so, (u & 1)*2048 + T_*128))
            out.append(grp)
    return out
def vwx_cvt(T_):
    ACC = V_T; out = []
    for tq in range(4):
        d = ACC + (T_*4+tq)*4
        out.append(f'v_cvt_pk_bf16_f32 v{V_BW+8*tq+4*T_}, v{d}, v{d+1}')
        out.append(f'v_cvt_pk_bf16_f32 v{V_BW+8*tq+4*T_+1}, v{d+2}, v{d+3}')
    return out
def delay(n):
    out = []
    while n > 0:
        k = min(n, 16); out.append('s_nop %d' % (k-1)); n -= k
    return out
def budget(): return f's_sub_u32 s{S_BUD}, s{S_BUD}, 1\ns_max_i32 s{S_BUD}, s{S_BUD}, 0'

def r_loop(p, o, sfx='', pl=''):
    T = S_T
    def stamp(k):
        if o.get('trace'): p(f's_mem{"real" if o["trace"] == 1 else ""}time s[{S_ST+2*k}:{S_ST+2*k+1}]')
        if o.get('trace') == 2 and k == 6: p(f's_memrealtime s[{S_ST+20}:{S_ST+21}]')
    def count(k):
        if o.get('counts'): p(f's_add_u32 s{S_ST+16+k}, s{S_ST+16+k}, 1')
    MEM = V_T
    a = V_T+36
    if o.get('kvwait'):
        p(f'''
        v_mov_b32 v{a}, 0
        R_kv0{sfx}:
        v_readfirstlane_b32 s{S_KVF}, v{a+1}
        s_and_b32 s{T}, s{S_KVF}, 0xff
        s_cmp_ge_u32 s{T}, 8
        s_cbranch_scc1 R_kv0k{sfx}
        s_cmp_eq_u32 s{S_BUD}, 0
        s_cbranch_scc1 R_kv0k{sfx}
        {ld(1, a+1, a, S_KVO)}
        {budget()}
        s_waitcnt vmcnt(0)
        s_branch R_kv0{sfx}
        R_kv0k{sfx}:
        ''')
    p(f's_mov_b32 s{S_VXO}, 0')
    for T_ in range(2):
        for u in range(4): p(ld(4, V_VXD+(T_*4+u)*4, V_VX0+(u>>1), S_VXO, (u&1)*2048 + T_*128))
    for T_ in range(2): p(ld(4, V_KXD+4*T_, V_KXA, S_VXO, T_*256))
    p(zero(V_ACC1, 60))
    p(f's_mov_b32 s{S_VXO}, 0x40000')
    for k, grp in enumerate(vwx_groups(S_VXO)): p('s_waitcnt vmcnt(9)'); p(grp)
    p(vwx_cvt(0)); p(vwx_cvt(1))
    for k in range(0, 16, 2): p(f'v_mov_b64 {vr(MEM+k,2)}, {vr(V_T+40+k,2)}')
    p(f'''
    s_mov_b32 s{S_STEP}, 0
    s_mov_b32 s{S_CUR}, 0
    s_mov_b32 s{S_NXT}, 0x80000
    s_mov_b32 s{S_RST}, 0x100000
    s_mov_b32 s{S_KXO}, 0x40000
    s_mov_b32 s{S_VXO}, 0x80000
    s_mov_b32 s{S_WUO}, 0xc0000
    s_mov_b32 s{S_KMO}, 0
    s_lshl_b32 s{T}, s{S_POL}, 13
    v_add_u32 v{V_BST}, s{T}, v{V_BST}
    v_add_u32 v{V_BLD}, s{T}, v{V_BLD}
    v_add_u32 v{V_WU}, s{T}, v{V_WU}
    v_mov_b32 v{a}, 0x7ffffff0
    v_cmp_eq_u32 vcc, 0, v{V_LANE}
    v_cndmask_b32 v{V_WU}, v{a}, v{V_WU}, vcc
    s_lshl2_add_u32 s{T+1}, s{S_C}, s{S_WAVE}
    s_cmp_eq_u32 s{T+1}, 1
    s_cselect_b32 s{T+1}, 1, 64
    v_cmp_eq_u32 vcc, s{T+1}, v{V_LANE}
    v_cndmask_b32 v{V_WU}, v{V_WU}, v{V_PST}, vcc
    v_mov_b32 v{V_TAG}, 1
    s_bitcmp1_b32 s{S_WAVE}, 0
    s_cselect_b32 s{T+1}, s{T}, 0
    v_add_u32 v{V_KX}, s{T+1}, v{V_KX}
    s_add_u32 s{S_FBO}, s{S_FBO}, s{T}
    s_mov_b32 s{S_TAG}, 1
    s_mov_b32 s{S_TAG+1}, 1
    s_mov_b64 s[{S_FB}:{S_FB+1}], -1
    s_mov_b64 s[{S_FB+2}:{S_FB+3}], -1
    s_mov_b32 s{S_PVX}, 0x40000
    ''')
    if o.get('trace'):
        p(f's_lshl2_add_u32 s{T}, s2, s{S_WAVE}\ns_lshl_b32 s{T}, s{T}, 12\ns_add_u32 s{T}, s{T}, {WS_TRACE}\nv_lshl_add_u32 v254, v{V_LANE}, 2, s{T}\nv_mov_b32 v255, 0')
    if o.get('trace') or o.get('counts'):
        for k in range(0, 20): p(f's_mov_b32 s{S_ST+k}, 0')
    if o.get('total'): p(f's_memtime s[{S_ST+22}:{S_ST+23}]\ns_memrealtime s[{S_ST+24}:{S_ST+25}]')
    p(f's_waitcnt lgkmcnt(0)\ns_mov_b32 s{S_NOCHK}, 0\ns_branch R_cw0{sfx}')
    r_body(p, o, sfx, pl, stamp, count)


def r_body(p, o, sfx, pl, stamp, count):
    T = S_T
    MEM = V_T
    X = V_T + 32
    c0, c1 = V_T+62, V_T+63
    CK = V_T + 58
    lines = lambda t: [x.strip() for x in t.split('\n') if x.strip()]
    sd = o.get('side', 'A'); kx = o.get('kx', 'P')
    side = lines(f"""
    s_bitcmp1_b32 s{S_WAVE}, 0
    s_cbranch_scc0 R_b1{sfx}
    {st(2, V_SENT, V_KX, S_RST, 0, 'sc1')}
    s_branch R_b3{sfx}
    R_b1{sfx}:
    s_cmp_eq_u32 s{S_WAVE}, 2
    s_cbranch_scc0 R_b2{sfx}
    {st(2, V_KEEP, V_PST, S_KMO, 0, 'sc1')}
    s_branch R_b3{sfx}
    R_b2{sfx}:
    {setexec(S_M_HI8)}
    {st(4, V_KEEP, V_PST, S_KMO, 0, 'sc1')}
    {setexec(None)}
    R_b3{sfx}:
    """)
    kxl = lines(f"""
    s_cmp_eq_u32 s{S_WAVE}, 0
    s_cbranch_scc0 R_b0{sfx}
    {ld(4, V_KXD, V_KX, S_KXO, 0)}
    {ld(4, V_KXD+4, V_KX, S_KXO, 256)}
    R_b0{sfx}:
    """)
    pf = [f's_add_u32 s{T}, s{S_PFV}, s{S_WUO}']
    for k in range(4): pf += [f's_buffer_load_dwordx2 {sr(S_M_F,2)}, {sr(S_WS,4)}, s{T} offset:{128*k+60}']
    wu = o.get('wu', 'v')
    if wu != 's': pf = []
    vpf = [f's_add_u32 s{T}, s{S_PFV}, s{S_WUO}', f'v_lshlrev_b32 v{c1}, 7, v{V_LANE}', 's_mov_b64 exec, 15', ld(1, c1, c1, T), 's_mov_b64 exec, -1'] if wu == 'v' else []
    kxp = [ld(4, V_KXD, V_KXA, S_KXO, 0), ld(4, V_KXD+4, V_KXA, S_KXO, 256)] if kx == 'P' else []
    postA = st(1, V_TAG, V_FA, '0', 0, pl); pA = o.get('pA', 1)
    postB = st(1, V_TAG, V_WU, '0', 0, 'sc1'); pB = o.get('posB', 0)
    order = [4, 5, 0, 1, 2, 3]
    mf = lambda i: [f'v_smfmac_f32_16x16x64_bf16 {vr(V_ACC1+t6*4,4)}, {vr(MEM+4*i,4)}, {ar(W1(t6>>1,t6&1,i),8)}, v{V_IDX1}' for t6 in order]
    def chk(i): return [f'v_max3_u32 v{CK+i}, v{MEM+4*i}, v{MEM+4*i+1}, v{MEM+4*i+2}', f'v_max_u32 v{CK+i}, v{CK+i}, v{MEM+4*i+3}', f'v_cmp_eq_u32 vcc, -1, v{CK+i}']
    def s1_red(mat):
        D0, D1 = V_ACC1+mat*8, V_ACC1+mat*8+4
        R = X + 4*mat
        ad = [V_L1W, V_L1WK, V_L1WV][mat]
        return [f'v_pk_add_f32 {vr(R,2)}, {vr(D0,2)}, {vr(D0+2,2)}', f'v_pk_add_f32 {vr(R+2,2)}, {vr(D1,2)}, {vr(D1+2,2)}',
                f'ds_write2_b32 v{ad}, v{R}, v{R+2} offset0:0 offset1:1', f'ds_write2_b32 v{ad}, v{R+1}, v{R+3} offset0:32 offset1:33']
    grps = vwx_groups(S_VXO)
    nvx = o.get('nvx', 4)
    vx2 = [g[-1].replace(f', s{S_VXO} ', f', s{S_PVX} ') for g in grps[8-nvx:]] if nvx else []
    if o.get('noVX'): vx2 = []
    vxp = o.get('vxp', (0, 2))
    upd2 = lines(f"""
    s_add_u32 s{S_STEP}, s{S_STEP}, 1
    s_add_u32 s{S_KXO}, s{S_KXO}, 0x40000
    s_add_u32 s{S_TAG}, s{S_TAG}, 1
    s_mov_b32 s{S_TAG+1}, s{S_TAG}
    v_mov_b32 v{V_TAG}, s{S_TAG}
    s_mov_b32 s{S_PVX}, s{S_VXO}
    s_add_u32 s{S_VXO}, s{S_VXO}, 0x40000
    s_min_u32 s{S_VXO}, s{S_VXO}, {(NSEG-1) << 18}
    s_add_u32 s{S_WUO}, s{S_WUO}, 0x40000
    s_min_u32 s{S_WUO}, s{S_WUO}, {(NSEG-1) << 18}
    s_add_u32 s{S_KMO}, s{S_KMO}, 0x10000
    s_add_u32 s{S_NXT}, s{S_NXT}, 0x80000
    s_and_b32 s{S_NXT}, s{S_NXT}, 0x180000
    s_xor_b32 s{S_RST}, s{S_CUR}, 0x100000
    s_mov_b32 s{S_NOCHK}, s{S_BUD}
    """)
    cwork = vwx_cvt(1) + upd2 + zero(V_VWM, 36)
    for i in range(4):
        p(f'R_cr{i}{sfx}:')
        p(f's_cmp_eq_u32 s{S_NOCHK}, 0\ns_cbranch_scc1 R_cg{i}{sfx}')
        for k in range(i, 4): p(ld(4, MEM+4*k, V_CLD, S_CUR, 1024*k))
        count(0); p(budget())
        p(f's_mov_b32 s{S_NOCHK}, s{S_BUD}\ns_waitcnt vmcnt({3-i})'); p(chk(i))
        p(f's_cbranch_vccz R_cg{i}{sfx}\ns_branch R_cr{i}{sfx}')
    p(f'R_step{sfx}:')
    def take(n):
        k = min(n, len(cwork)); p(cwork[:k]); del cwork[:k]; p(delay(n - k))
    take(o.get('dC', 30))
    for i in range(4):
        p(ld(4, MEM+4*i, V_CLD, S_CUR, 1024*i))
        if i < 3: take(o.get('gC', 0))
    p(cwork)
    p(f'R_cw0{sfx}:\ns_waitcnt vmcnt(3)'); p(chk(0))
    for i in range(4):
        p(f's_cbranch_vccnz R_cr{i}{sfx}\nR_cg{i}{sfx}:')
        m = mf(i)
        if i < 3:
            ck = chk(i+1)
            p(m[:3] + [f's_waitcnt vmcnt({2-i})', m[3], ck[0], m[4], ck[1], m[5], ck[2]])
        else:
            stamp(0)
            rv = s1_red(2)
            p([m[0]] + ([postA] if pA == 0 else []) + [m[1], m[2], rv[0], m[3], rv[1], m[4], rv[2], m[5], rv[3]])
    Q = V_T + 16
    if pA == 1: p(postA)
    p(s1_red(0))
    p(f's_cmp_eq_u32 s{S_WAVE}, 3')
    if pA == 2: p(postA)
    p(s1_red(1))
    if pA == 3: p(postA)
    p(f's_waitcnt lgkmcnt(4)\ns_barrier\ns_cbranch_scc0 R_e3{sfx}')
    for wv in range(4): p(f'ds_read_b128 {vr(Q+4*wv,4)}, v{V_L1R} offset:{wv*1024}')
    p(f's_waitcnt lgkmcnt(4)\ns_barrier\ns_branch R_w3{sfx}\nR_e3{sfx}:')
    p(f"""
    s_cmp_eq_u32 s{S_WAVE}, 0
    s_waitcnt lgkmcnt(0)
    s_barrier
    """)
    stamp(1)
    GV = V_T + 44
    lv = [ld(4, GV, V_ALV, S_CUR, 0), ld(4, GV+4, V_ALV, S_CUR, 1024)]
    vpre = o.get('vpre', 0)
    Q0 = V_T
    p(f's_cbranch_scc0 R_wn{sfx}')
    for wv in range(4):
        p(f'ds_read_b128 {vr(Q0+8*wv,4)}, v{V_L1R} offset:{wv*1024}\nds_read_b128 {vr(Q0+8*wv+4,4)}, v{V_L1R2} offset:{wv*1024}')
    p('s_waitcnt lgkmcnt(4)')
    for k in range(0, 8, 2): p(f'v_pk_add_f32 {vr(Q0+k,2)}, {vr(Q0+k,2)}, {vr(Q0+8+k,2)}')
    p('s_waitcnt lgkmcnt(2)')
    for k in range(0, 8, 2): p(f'v_pk_add_f32 {vr(Q0+k,2)}, {vr(Q0+k,2)}, {vr(Q0+16+k,2)}')
    p('s_waitcnt lgkmcnt(1)')
    for k in range(0, 4, 2): p(f'v_pk_add_f32 {vr(Q0+k,2)}, {vr(Q0+k,2)}, {vr(Q0+24+k,2)}')
    for k in range(2): p(f'v_cvt_pk_bf16_f32 v{V_KEEP+k}, v{Q0+2*k}, v{Q0+2*k+1}')
    p('s_waitcnt lgkmcnt(0)')
    for k in range(4, 8, 2): p(f'v_pk_add_f32 {vr(Q0+k,2)}, {vr(Q0+k,2)}, {vr(Q0+24+k,2)}')
    for k in range(2, 4): p(f'v_cvt_pk_bf16_f32 v{V_KEEP+k}, v{Q0+2*k}, v{Q0+2*k+1}')
    S = V_T + 32
    SP = V_T + 52
    p(f"""
    s_cmp_eq_u32 s{S_STEP}, {NSEG-1}
    v_mfma_f32_16x16x32_bf16 {vr(S+4,4)}, {vr(V_KXD,4)}, {vr(V_KEEP,4)}, 0
    v_mfma_f32_16x16x32_bf16 {vr(S+8,4)}, {vr(V_KXD+4,4)}, {vr(V_KEEP,4)}, 0
    v_mfma_f32_16x16x32_bf16 {vr(S,4)}, {vr(V_KEEP,4)}, {vr(V_KEEP,4)}, 0
    {setexec(S_M_LO8)}
    v_cvt_pk_bf16_f32 v{SP}, v{S+4}, v{S+5}
    v_cvt_pk_bf16_f32 v{SP+1}, v{S+6}, v{S+7}
    v_cvt_pk_bf16_f32 v{SP+2}, v{S+8}, v{S+9}
    v_cvt_pk_bf16_f32 v{SP+3}, v{S+10}, v{S+11}
    {st(4, SP, V_P0, S_CUR, 0, pl)}
    v_cvt_pk_bf16_f32 v{SP+4}, v{S}, v{S+1}
    v_cvt_pk_bf16_f32 v{SP+5}, v{S+2}, v{S+3}
    {setexec(S_M_SM)}
    {st(2, SP+4, V_P1, S_CUR, 0, pl)}
    {setexec(None)}
    {kxl[2] if kx == 'w0' else ''}
    {kxl[3] if kx == 'w0' else ''}
    R_wj{sfx}:
    s_barrier
    s_cbranch_scc1 R_last{sfx}
    """)
    stamp(2)
    p(lv)
    p(delay(o.get('dA', 0)))
    GX = V_T
    SX, SM = V_T+20, V_T+24
    mx, mt = V_T+30, V_T+31
    ls = [ld(4, GX, V_ALD, S_CUR, 0), ld(4, GX+4, V_ALD, S_CUR, 1024), ld(2, GX+8, V_ALM, S_CUR, 0)]
    p(ls)
    ex = 0
    if sd == 'A': p(delay(o.get('dS', 0))); p(side); ex += 1
    p(vx2[:vxp[0]]); ex += len(vx2[:vxp[0]])
    p(zero(V_ACC1, 24))
    vwm = [f'v_smfmac_f32_16x16x64_bf16 {vr(V_VWM+4*tq,4)}, {vr(GV+4*ks,4)}, {ar(WO(tq,ks),8)}, v{V_IDX1}' for tq in range(4) for ks in range(2)]
    vwm_cvt = []
    for tq in range(4):
        D = V_VWM+4*tq
        vwm_cvt.append([f'v_pk_add_f32 {vr(D,2)}, {vr(D,2)}, {vr(D+2,2)}', f'v_cvt_pk_bf16_f32 v{V_BW+8*tq+2}, v{D}, v{D+1}', f'v_cvt_pk_bf16_f32 v{V_BW+8*tq+6}, v{D}, v{D+1}'])
    p(f"""
    s_waitcnt vmcnt({3+ex})
    R_aw0{sfx}:
    v_max3_u32 v{c0}, v{GV}, v{GV+1}, v{GV+2}
    v_max3_u32 v{c1}, v{GV+3}, v{GV+4}, v{GV+5}
    v_max3_u32 v{c0}, v{c0}, v{GV+6}, v{GV+7}
    v_max_u32 v{c0}, v{c0}, v{c1}
    v_cmp_eq_u32 vcc, -1, v{c0}
    s_cbranch_vccnz R_ar0{sfx}
    R_ag0{sfx}:
    """)
    p(vwm[:4] + weave(vwm[4:], vwm_cvt[0] + vwm_cvt[1][:1]))
    late = vwm_cvt[1][1:] + vwm_cvt[2] + vwm_cvt[3]
    def asum(fill, ex):
        return [f's_waitcnt vmcnt({2+ex})',
        f'v_mfma_f32_16x16x32_bf16 {vr(SX,4)}, {vr(V_SELA,4)}, {vr(GX,4)}, 0',
        f's_waitcnt vmcnt({1+ex})',
        f'v_mfma_f32_16x16x32_bf16 {vr(SX,4)}, {vr(V_SELB,4)}, {vr(GX+4,4)}, {vr(SX,4)}',
        f's_waitcnt vmcnt({ex})',
        f'v_mfma_f32_16x16x16_bf16 {vr(SM,4)}, {vr(V_SELM,2)}, {vr(GX+8,2)}, 0'] + fill[:5] + [
        f'v_max3_f32 v{mx}, v{SX}, v{SX+1}, v{SX+2}'] + fill[5:] + [
        f'v_cmp_u_f32 vcc, v{SX}, v{SM}',
        f'v_max3_f32 v{mx}, v{mx}, v{SX+3}, v{SM}']
    p(asum(late[:7], ex))
    p(f's_cbranch_vccnz R_ar1{sfx}\nR_ag1{sfx}:')
    stamp(3)
    E = V_T + 32
    src = [SX, SX+1, SM, SX+2, SX+3]
    pre = [f'v_mul_f32 v{E+k}, s{S_SCL}, v{src[k]}' for k in range(5)]
    p(f"""
    {postB if pB == 0 else ''}
    {pre[4]}
    v_max_f32_dpp v{mt}, v{mx}, v{mx} quad_perm:[2,3,0,1] row_mask:0xf bank_mask:0xf
    v_max_f32_dpp v{mx}, v{mx}, v{mx} quad_perm:[2,3,0,1] row_mask:0xf bank_mask:0xf
    {pre[0]}
    {pre[1]}
    v_permlane16_swap_b32 v{mx}, v{mt}
    v_max_f32 v{c0}, v{mx}, v{mt}
    v_max_f32 v{c1}, v{mx}, v{mt}
    {pre[2]}
    {pre[3]}
    v_permlane32_swap_b32 v{c0}, v{c1}
    v_max_f32 v{mx}, v{c0}, v{c1}
    {postB if pB == 1 else ''}
    """)
    fm = [f'v_fma_f32 v{E+k}, -v{mx}, s{S_SCL}, v{E+k}' for k in range(5)]
    p(f"""
    {fm[0]}
    {fm[1]}
    v_exp_f32 v{E}, v{E}
    {fm[2]}
    v_exp_f32 v{E+1}, v{E+1}
    {fm[3]}
    v_exp_f32 v{E+2}, v{E+2}
    {fm[4]}
    v_exp_f32 v{E+3}, v{E+3}
    v_cvt_pk_bf16_f32 v{V_P}, v{E}, v{E+1}
    v_exp_f32 v{E+4}, v{E+4}
    v_cvt_pk_bf16_f32 v{V_P+1}, v{E+2}, 0
    v_cvt_pk_bf16_f32 v{V_P+3}, v{E+2}, 0
    v_cvt_pk_bf16_f32 v{V_P+2}, v{E+3}, v{E+4}
    {late[7]}
    {postB if pB == 2 else ''}
    """)
    fin = [f'v_smfmac_f32_16x16x64_bf16 {vr(V_FIN,4)}, {vr(V_P,4)}, {vr(V_ONES,8)}, v{V_IDX2}'] + \
          [f'v_smfmac_f32_16x16x64_bf16 {vr(V_FIN+4+4*tq,4)}, {vr(V_P,4)}, {vr(V_BW+8*tq,8)}, v{V_IDX2}' for tq in range(4)]
    O = V_T + 40
    rc = V_T + 48
    D = V_FIN
    p(weave(fin[:2], vx2[vxp[0]:vxp[0]+vxp[1]]) + [fin[2]])
    p(f"""
    v_pk_add_f32 {vr(rc,2)}, {vr(D,2)}, {vr(D+2,2)}
    {fin[3]}
    v_rcp_f32 v{rc}, v{rc}
    {fin[4]}
    v_rcp_f32 v{rc+1}, v{rc+1}
    {postB if pB == 3 else ''}
    """)
    for tq in range(4):
        D = V_FIN + 4 + 4*tq
        p(f'v_pk_add_f32 {vr(D,2)}, {vr(D,2)}, {vr(D+2,2)}\nv_mul_f32 v{O+tq}, v{D}, v{rc}')
        if tq < 3: p(f'v_mul_f32 v{O+4+tq}, v{D+1}, v{rc+1}')
    p(f"""
    ds_write_b128 v{V_L2W0}, {vr(O,4)}
    v_mul_f32 v{O+7}, v{D+1}, v{rc+1}
    ds_write_b128 v{V_L2W1}, {vr(O+4,4)} offset:256
    {postB if pB == 4 else ''}
    """)
    p(vx2[vxp[0]+vxp[1]:])
    nb = o.get('nB', 16)
    sB = o.get('syncB', 1)
    if sd == 'gap': p(side)
    if kx == 'gap': p(kxl)
    p(setexec(S_M_32))
    p('s_waitcnt lgkmcnt(0)\ns_barrier')
    stamp(4)
    Z = V_T + 32
    for wv in range(4): p(f'ds_read_b128 {vr(Z+4*wv,4)}, v{V_L2R} offset:{wv*2048}')
    p(f's_cmp_eq_u32 s{S_WAVE}, 3')
    for wv in range(1, 4):
        p(f's_waitcnt lgkmcnt({3-wv})')
        for k in (0, 2): p(f'v_pk_add_f32 {vr(Z+k,2)}, {vr(Z+k,2)}, {vr(Z+4*wv+k,2)}')
    p(f'v_cvt_pk_bf16_f32 v{Z+4}, v{Z}, v{Z+1}\nv_cvt_pk_bf16_f32 v{Z+5}, v{Z+2}, v{Z+3}')
    p(st(2, Z+4, V_BST, S_CUR, 0, 'sc1'))
    p(setexec(None))
    stamp(5)
    grps = [g[:-1] if (k >= 8-nvx or o.get('noVX')) else g for k, g in enumerate(grps)]
    GB = V_T + 48
    BS = V_T + 56
    flat = []
    for k, grp in enumerate(grps): flat += grp
    nmf = lambda l: sum(1 for x in l if x.startswith('v_mfma'))
    def pos(n):
        for i in range(len(flat)):
            if nmf(flat[:i]) >= n and flat[i].startswith('v_mfma'): return i
        return len(flat)
    FL = f's_buffer_load_dwordx4 {sr(S_FB,4)}, {sr(S_WS,4)}, s{S_FBO} glc'
    p0 = pos(nb)
    pre_ = flat[:p0]
    first_def = 4*(8-nvx)
    def guard(seq, base, extra):
        out = []; c = base; nafter = extra
        for x in seq:
            if x.startswith('v_mfma'):
                if vx2 and c == first_def: out.append(f's_waitcnt vmcnt({nafter})')
                c += 1
            if x.startswith('buffer_'): nafter += 1
            out.append(x)
        return out, nafter
    younger = 1 + (sd == 'gap')
    if len(vx2) <= vxp[0]: younger += 1
    elif len(vx2) <= vxp[0] + vxp[1]: younger += (pB >= 3)
    pre_, nafter = guard(pre_, 0, younger)
    if sB:
        withpoll = [FL]; c = 0
        for x in pre_:
            withpoll.append(x)
            if x.startswith('v_mfma'):
                c += 1
                if c % o.get('pB', 4) == 0: withpoll.append(FL)
        p(f's_cbranch_scc1 R_fb{sfx}')
        if kx == 'B': p(kxl)
        p(pre_)
        p(f'R_fbb{sfx}:\ns_barrier')
        p(delay(o.get('dB2', 0)))
        KVL = f's_buffer_load_dword s{S_KVF}, {sr(S_WS,4)}, s{S_KVO} glc'
        kvo = lines(f'''
        s_add_u32 s{S_KVO}, s{S_STEP}, 4
        s_min_u32 s{S_KVO}, s{S_KVO}, 63
        s_lshr_b32 s{S_KVO}, s{S_KVO}, 2
        s_lshl3_add_u32 s{S_KVO}, s{S_KVO}, s{S_V}
        s_lshl_b32 s{S_KVO}, s{S_KVO}, 8
        s_add_u32 s{S_KVO}, s{S_KVO}, {F_KV_}
        ''') if o.get('kvwait') else []
        withpoll = weave(withpoll, kvo, 1, 1)
        fbcode = [f'R_fb{sfx}:', f's_min_u32 s{S_SPIN}, s{S_BUD}, 2000'] + withpoll + lines(f"""
        R_fbl{sfx}:
        s_mov_b32 s{T}, {o.get('qB', 1)}
        R_fbi{sfx}:
        s_cmp_eq_u64 {sr(S_FB,2)}, {sr(S_TAG,2)}
        s_cselect_b64 {sr(T+2,2)}, {sr(S_FB+2,2)}, 0
        s_cmp_eq_u64 {sr(T+2,2)}, {sr(S_TAG,2)}
        s_cbranch_scc1 R_fbj{sfx}
        s_sub_u32 s{T}, s{T}, 1
        s_cbranch_scc0 R_fbi{sfx}
        {FL}
        s_sub_u32 s{S_SPIN}, s{S_SPIN}, 1
        s_cbranch_scc0 R_fbl{sfx}
        R_fbj{sfx}:
        s_and_b32 s{T}, s{S_STEP}, 3
        s_cbranch_scc1 R_fbb{sfx}
        {KVL if o.get('kvwait') else ''}
        s_branch R_fbb{sfx}
        """)
    else:
        if kx == 'B': p(kxl)
        p(pre_); fbcode = []
    seq = [ld(4, GB, V_BLD, S_CUR, 0)]
    if o.get('trace'): seq.append(f's_mem{"real" if o["trace"] == 1 else ""}time s[{S_ST+14}:{S_ST+15}]')
    seq += kxp + vpf
    tail, _ = guard(flat[p0:], nmf(pre_), nafter + 1 + len(kxp) + (wu == 'v'))
    fill = ([] if o.get('trace') else pf) + [f's_mov_b32 s{S_PRV}, s{S_CUR}', f's_mov_b32 s{S_CUR}, s{S_NXT}']
    c = nmf(pre_); cv = vwx_cvt(0)
    for x in tail:
        seq.append(x)
        if x.startswith('v_mfma'):
            c += 1
            for _ in range(2):
                if c >= 18 and cv: seq.append(cv.pop(0))
                elif fill: seq.append(fill.pop(0))
    seq += cv + fill
    if o.get('trace'):
        seq.append('s_waitcnt lgkmcnt(0)')
        for k in range(8): seq.append(f'v_writelane_b32 v255, s{S_ST+2*k}, {k}')
        for k in range(3): seq.append(f'v_writelane_b32 v255, s{S_ST+16+k}, {8+k}')
        seq.append(f'v_writelane_b32 v255, s{S_ST+20}, 11')
        seq += [f's_lshl_b32 s{T}, s{S_STEP}, 6', 's_mov_b64 exec, 0xffff', st(1, 255, 254, T), 's_mov_b64 exec, -1'] + pf
    n0 = sum(1 for x in seq[1:] if x.startswith('buffer_'))
    p(seq)
    bsum = [f'v_mfma_f32_16x16x32_bf16 {vr(BS,4)}, {vr(V_SELA,4)}, {vr(GB,4)}, 0']
    bsum += [f'v_add_f32_dpp v{BS+k}, v{BS+k}, v{BS+k} row_ror:8 row_mask:0xf bank_mask:0xf' for k in range(4)]
    bsum += [f'v_cmp_u_f32 vcc, v{BS}, v{BS}', f'v_cvt_pk_bf16_f32 v{BS+4}, v{BS}, v{BS+1}', f'v_cvt_pk_bf16_f32 v{BS+5}, v{BS+2}, v{BS+3}']
    if sd == 'post': p(side)
    p(f's_waitcnt vmcnt({n0 + (sd == "post")})\nR_chkB{sfx}:')
    p(bsum)
    p(f"""
    s_cbranch_vccnz R_br{sfx}
    R_bg{sfx}:
    {setexec(S_M_C)}
    {st(2, BS+4, V_CST, S_CUR, 0, pl)}
    {setexec(None)}
    """)
    stamp(6)
    p(f's_branch R_step{sfx}')
    p(fbcode)
    KVC = f'''
    R_kvc{sfx}:
    s_and_b32 s{T}, s{S_KVF}, 0xff
    s_cmp_ge_u32 s{T}, 8
    s_cbranch_scc1 R_wv{sfx}
    s_cmp_eq_u32 s{S_BUD}, 0
    s_cbranch_scc1 R_wv{sfx}
    s_sleep 4
    s_buffer_load_dword s{S_KVF}, {sr(S_WS,4)}, s{S_KVO} glc
    {budget()}
    s_waitcnt lgkmcnt(0)
    s_branch R_kvc{sfx}
    ''' if o.get('kvwait') else ''
    p(f"""
    R_wn{sfx}:
    s_cmp_eq_u32 s{S_WAVE}, 2
    s_cbranch_scc1 R_w2{sfx}
    """)
    rst = [st(4, V_SENT, V_P0, S_RST, 0, pl), st(4, V_SENT, V_P1, S_RST, 0, pl)]
    if o.get('syncA', 1):
        FA = ld(2, V_KEEP, V_L1R2, '0', 0)
        p([FA, rst[0], FA, rst[1]])
        p(f"""
        s_min_u32 s{S_SPIN}, s{S_BUD}, 4000
        R_fa{sfx}:
        {FA}
        s_sub_u32 s{S_SPIN}, s{S_SPIN}, 1
        s_cbranch_scc1 R_fa_ok{sfx}
        s_waitcnt vmcnt({o.get('wA', 8)})
        v_min_i32 v{c0}, v{V_KEEP}, v{V_KEEP+1}
        v_cmp_gt_i32 vcc, s{S_TAG}, v{c0}
        s_cbranch_vccnz R_fa{sfx}
        R_fa_ok{sfx}:
        """)
    else: p(rst)
    p(delay(o.get('dV1', 0)))
    p(f's_branch R_wv{sfx}\nR_w2{sfx}:')
    for r in range(4):
        ad = V_L1R if r < 2 else V_L1R2
        for wv in range(4): p(f'ds_read_b32 v{Q+4*wv+r}, v{ad} offset:{wv*1024 + r*128}')
    p('s_waitcnt lgkmcnt(0)')
    for wv in range(1, 4):
        for k in (0, 2): p(f'v_pk_add_f32 {vr(Q+k,2)}, {vr(Q+k,2)}, {vr(Q+4*wv+k,2)}')
    p(f"""
    v_cvt_pk_bf16_f32 v{V_KEEP}, v{Q}, v{Q+1}
    v_cvt_pk_bf16_f32 v{V_KEEP+1}, v{Q+2}, v{Q+3}
    s_branch R_wv{sfx}
    R_w3{sfx}:
    """)
    stamp(1)
    for wv in range(1, 4):
        p(f's_waitcnt lgkmcnt({3-wv})')
        for k in (0, 2): p(f'v_pk_add_f32 {vr(Q+k,2)}, {vr(Q+k,2)}, {vr(Q+4*wv+k,2)}')
    p(f"""
    v_cvt_pk_bf16_f32 v{Q+4}, v{Q}, v{Q+1}
    v_cvt_pk_bf16_f32 v{Q+5}, v{Q+2}, v{Q+3}
    {st(2, Q+4, V_P0, S_CUR, 0, pl)}
    {KVC}
    R_wv{sfx}:
    s_cmp_eq_u32 s{S_STEP}, {NSEG-1}
    s_branch R_wj{sfx}
    R_ar0{sfx}:
    s_cmp_eq_u32 s{S_BUD}, 0
    s_cbranch_scc1 R_ag0{sfx}
    """)
    p(lv + ls); count(1); p(budget())
    p(f"""
    s_waitcnt vmcnt(0)
    s_branch R_aw0{sfx}
    R_ar1{sfx}:
    s_cmp_eq_u32 s{S_BUD}, 0
    s_cbranch_scc1 R_ag1{sfx}
    """)
    p(ls); count(1); p(budget())
    p(asum([], 0))
    p(f"""
    s_cbranch_vccz R_ag1{sfx}
    s_branch R_ar1{sfx}
    R_br{sfx}:
    s_cmp_eq_u32 s{S_BUD}, 0
    s_cbranch_scc1 R_bg{sfx}
    {ld(4, GB, V_BLD, S_PRV, 0)}
    """)
    count(2); p(budget())
    p(f"""
    s_waitcnt vmcnt(0)
    s_branch R_chkB{sfx}
    R_last{sfx}:
    s_cmp_eq_u32 s{S_WAVE}, 0
    s_cbranch_scc0 R_l1{sfx}
    {setexec(S_M_HI8)}
    {st(4, V_KEEP, V_PST, S_KMO, 0, 'sc1')}
    {setexec(None)}
    R_l1{sfx}:
    s_cmp_eq_u32 s{S_WAVE}, 2
    s_cbranch_scc0 R_l2{sfx}
    {st(2, V_KEEP, V_PST, S_KMO, 0, 'sc1')}
    R_l2{sfx}:
    s_waitcnt vmcnt(0) lgkmcnt(0)
    s_barrier
    s_cmp_eq_u32 s{S_WAVE}, 0
    s_cbranch_scc0 R_l3{sfx}
    s_lshl_b32 s{T}, s{S_V}, 8
    s_add_u32 s{T}, s{T}, {F_FIN_}
    v_mov_b32 v{c0}, 0
    v_mov_b32 v{c1}, 1
    s_mov_b64 exec, 1
    buffer_atomic_add v{c1}, v{c0}, {sr(S_WS,4)}, s{T} offen sc1
    s_mov_b64 exec, -1
    R_l3{sfx}:
    """)

def r_tail(p, o):
    T = S_T
    S0 = o.get('S0', 52); NS = 64 - S0; NI = NS // 2
    assert S0 >= 48 and NS % 4 == 0
    a, b, c_ = 2, 3, 4
    VL, VF, VO, VZ, FL = 5, 6, 7, 8, 9
    SL = 10
    ACC = 16
    PK = 32
    FR = [40, 104, 168]
    SFO, SPO, SOO, SMK = 28, 29, 30, 31
    B = lambda dst, terms, base=None: p(bits(dst, terms, base, c_))
    def tst():
        if o.get('ttrace'): p(f's_memrealtime s[60:61]\ns_waitcnt lgkmcnt(0)\ns_mov_b32 m0, s62\nv_writelane_b32 v250, s60, m0\ns_add_u32 s62, s62, 1')
    if o.get('ttrace'): p('s_mov_b32 s62, 0\nv_mov_b32 v250, 0')
    tst()
    p(ssum(SFO, [(S_V, 8)], F_OV_ + 12))
    p(f'v_mov_b32 v{VZ}, 0'); p(ld(1, FL, VZ, SFO))
    p(f's_load_dwordx2 s[{S_SRD}:{S_SRD+1}], s[0:1], 80')
    p(ssum(T, [(S_WAVE, 14)])); B(VL, [(0, 6, 4)]); p(f'v_add_u32 v{a}, s{T}, v{VL}')
    for q in range(16): p(f'ds_write_b128 v{a}, {ar(A_WO + 4*q,4)} offset:{q*1024}')
    B(VF, [(4, 2, 9), (0, 4, 4)])
    p(f's_lshr_b32 s{T+2}, s{S_WAVE}, 1\ns_and_b32 s{T+3}, s{S_WAVE}, 1')
    p(ssum(SOO, [(T+2, 18), (S_V, 15), (T+3, 8)], WS_O_ + (S0 << 18), T))
    p(ssum(SPO, [(S_WAVE, 18), (S_C, 14), (S_V, 11)], WS_PART, T))
    p(f's_lshl_b32 s{SMK}, {1 << (S0-48)}, s{T+2}')
    def need(j):
        return f"""
        s_lshl_b32 s{T+1}, s{SMK}, {2*j}
        RT_n{j}:
        v_readfirstlane_b32 s{T}, v{FL}
        s_and_b32 s{T}, s{T}, s{T+1}
        s_cbranch_scc1 RT_k{j}
        s_cmp_eq_u32 s{S_BUD}, 0
        s_cbranch_scc1 RT_k{j}
        {ld(1, FL, VZ, SFO)}
        {budget()}
        s_waitcnt vmcnt(0)
        s_branch RT_n{j}
        RT_k{j}:
        """
    def load(j, k):
        out = [f's_add_u32 s{T+1}, s{SOO}, {(j << 19) + (k >> 1)*4096}'] if k % 2 == 0 else []
        return out + [ld(4, FR[j % 3] + 4*k, VF, T+1, (k & 1)*2048)]
    p('s_waitcnt lgkmcnt(0)\ns_barrier')
    rd = [f'ds_read_b128 {ar(4*q,4)}, v{VL} offset:{q*1024}' for q in range(64)]
    p(rd[:16]); p('s_waitcnt vmcnt(0)')
    p(need(0))
    for k in range(16): p(load(0, k)); p(rd[16+3*k:19+3*k])
    B(a, [(0, 1, 4)]); p(f'v_mov_b32 v{b}, 0x3f80\nv_lshlrev_b32 v{a}, v{a}, v{b}')
    B(b, [(1, 3, 0)]); B(VO, [(4, 2, 1)]); p(f'v_sub_u32 v{b}, v{b}, v{VO}')
    for k in range(2): p(f'v_cmp_eq_u32 vcc, {k}, v{b}\nv_cndmask_b32 v{SL+2+k}, 0, v{a}, vcc')
    for k in (0, 1, 4, 5): p(f'v_mov_b32 v{SL+k}, 0')
    B(VO, [(0, 4, 12), (4, 2, 5)])
    p('s_waitcnt lgkmcnt(0)')
    tst()
    q_ = [('l', 0, k) for k in range(16)]
    ahead = {0: [1, 2]}
    for j in range(1, NI-1): ahead[j] = [j+2] if j+2 < NI-1 else ([NI-1] if j == NI-2 else [])
    for j in range(NI):
        nx = ahead.get(j, [])
        for n_ in nx: p(need(n_))
        todo = [(n_, k) for n_ in nx for k in range(16)]
        for k in range(16):
            i = q_.index(('l', j, k)); del q_[:i+1]
            p(f's_waitcnt vmcnt({len(q_)})')
            for tq in range(4):
                d = ACC + 4*tq
                p(f'v_mfma_f32_16x16x32_bf16 {vr(d,4)}, {ar((k >> 2)*64 + (tq*4 + (k & 3))*4,4)}, {vr(FR[j % 3] + 4*k,4)}, {"0" if k == 0 else vr(d,4)}')
                if todo and (tq == 0 or (tq == 2 and (len(nx) == 2 or j == NI-2))):
                    x = todo.pop(0); p(load(*x)); q_.append(('l',) + x)
        p(f's_add_u32 s{T+1}, s{SPO}, {j << 20}')
        for h in range(2):
            for r in range(4): p(f'v_cvt_pk_bf16_f32 v{PK+2*r+h}, v{ACC+8*h+r}, v{ACC+8*h+4+r}')
        for h in range(2): p(st(4, PK+4*h, VL, T+1, 1024*h, 'sc1')); q_.append(('s', j, h))
        tst()
    p(ssum(T+2, [(S_C, 8)], F_P_)); p(ssum(T+3, [(S_V, 2), (T+2, 0)], 0, T))
    B(a, [(0, 3, 2)])
    nw = 2*NS // 8
    p(f"""
    s_mov_b32 s{S_SRD+2}, 0x800000
    s_mov_b32 s{S_SRD+3}, 0x20000
    s_mul_i32 s{T+4}, s{S_V}, {nw}
    s_add_u32 s{T+4}, s{T+4}, s{S_WAVE}
    v_mov_b32 v{b}, 1
    s_waitcnt vmcnt(0)
    s_barrier
    s_cmp_eq_u32 s{S_WAVE}, 3
    s_cbranch_scc0 RT_q
    s_mov_b64 exec, 1
    {st(1, b, a, T+3, 0, 'sc1')}
    s_mov_b64 exec, -1
    RT_q:
    s_cmp_ge_u32 s{S_WAVE}, {nw}
    s_cbranch_scc1 RT_end
    """)
    p(ssum(SPO, [(T+4, 18), (S_C, 14)], WS_PART, T))
    p(ssum(SOO, [(T+4, 16), (S_C, 7)], S0 << 17, T))
    p(f"""
    RT_p:
    {ld(1, b, a, T+2)}
    {budget()}
    s_waitcnt vmcnt(0)
    v_cmp_ne_u32 vcc, 1, v{b}
    s_cbranch_vccz RT_pk
    s_cmp_lg_u32 s{S_BUD}, 0
    s_cbranch_scc1 RT_p
    RT_pk:
    """)
    tst()
    for k in range(16):
        if k % 4 == 0: p(f's_add_u32 s{T+1}, s{SPO}, {k*1024}')
        p(ld(4, FR[0] + 4*k, VL, T+1, (k & 3)*1024))
    for k in range(16):
        p(f's_waitcnt vmcnt({15-k})')
        for t in range(2):
            d = ACC + 8*(k & 1) + 4*t
            p(f'v_mfma_f32_16x16x32_bf16 {vr(d,4)}, {vr(SL + 2 - 2*t,4)}, {vr(FR[0] + 4*k,4)}, {"0" if k < 2 else vr(d,4)}')
    for k in range(8): p(f'v_cvt_pk_bf16_f32 v{PK+k}, v{ACC+2*k}, v{ACC+2*k+1}')
    for h in range(2): p(st(4, PK+4*h, VO, SOO, 16*h, '', S_SRD))
    tst()
    p('RT_end:')
    if o.get('ttrace'):
        p(ssum(T, [(2, 10), (S_WAVE, 8)], 0xFA00000, T+1)); B(a, [(0, 6, 2)]); p(st(1, 250, a, T))
```

```python
from geng import *
def schedule(o):
    lists = []
    S0 = o.get('S0', 52)
    for xg in range(4):
        for i in range(32):
            L = []
            j = i & 15
            mq, h = 1 + (j >> 3), 8*xg + (j & 7)
            m, nt = 1 + ((j >> 2) & 1), 4*xg + (j & 3)
            v = 2*xg + (j & 1)
            kv = lambda mt, pf=0: t_proj(m, 256*(mt + (j >> 3)), nt, pf)
            q = lambda mt: t_proj(0, 256*(mt + (j >> 2)), nt)
            L.append(t_projq(mq, i >> 4, h, 0, 1, pf=1))
            if i < 16:
                L += [t_projq(mq, 2, h), t_projq(mq, 3, h), kv(4, 1), t_bkv(j >> 1, v)]
                if j < 8:
                    L += [t_bq(j, xg), t_bwof(j, xg), t_att(52 + (j >> 1), 64, v, 4)]
                else:
                    k = j - 8
                    L += [t_red(8*xg + k), t_wo(k >> 1, v), t_wo(4 + (k >> 1), v)]
                    if k < 2: L.append(t_wo(12, v))
            else:
                L += [kv(2, 1), q(0), t_att(j >> 1, 16, v, 8), kv(6)]
                if j < 8: L += [t_proj(0, 256*(4 + (j >> 2)), nt), t_att(32 + (j >> 1), 48, v, 4), t_wo(8 + (j >> 1), v)]
                else: L += [t_att(16 + ((j - 8) >> 1), 32, v, 4), t_proj(0, 256*(4 + (j >> 2)), nt), t_att(48 + ((j - 8) >> 1), 52, v, 4)]
            lists.append(L)
    return lists
```

```python
import sys, struct, math
from asmlib import *
from genr import *
import geng
NAME = 'concat_heads__memory_aug_recurrent_mem_tr__linear_attn_block__prompt'
KN = NAME + '_kernel'
def f2u(x): return struct.unpack('<I', struct.pack('<f', x))[0]
S_REG = 99
S_MODE, S_VERI, S_POLV = 3, 4, 5
LDS_MISC = 163840 - 64
RDEF = dict(dA=16, dC=50, nB=16, posB=4, pA=2, dV1=0, gC=6, nvx=4, vxp=(0, 2), side='gap', wu='s', dB2=0, pB=4, qB=1, kvwait=1)
def gen(o=None):
    o = dict(RDEF, **(o or {})); o['scl'] = f2u(math.log2(math.e)/math.sqrt(128))
    lists = geng.schedule(o); o['ntask'] = max(len(l) for l in lists) + 1
    p = Prog()
    T = 40; a, b, c = 40, 41, 42
    p(f'''
    s_cmp_ge_u32 s2, 256
    s_cbranch_scc1 L_exit
    s_getpc_b64 s[6:7]
    L_pc0:
    s_load_dwordx2 s[{S_WS}:{S_WS+1}], s[0:1], 96
    s_load_dwordx2 s[{S_DBG}:{S_DBG+1}], s[0:1], 88
    s_getreg_b32 s{S_XCD}, hwreg(HW_REG_XCC_ID, 0, 3)
    s_lshr_b32 s{S_IDX}, s2, 3
    v_lshrrev_b32 v1, 6, v0
    v_readfirstlane_b32 s{S_WAVE}, v1
    v_and_b32 v1, 63, v0
    s_mov_b32 s{S_BUD}, {o.get('budget', 400000)}
    s_mov_b32 s{S_MODE}, 0
    s_mov_b32 s{S_VERI}, 0
    s_mov_b32 s{S_POLV}, 0
    s_mov_b32 s{S_REG}, 0
    ''')
    if o.get('total') or o.get('gtrace'): p('s_memrealtime s[90:91]')
    if o.get('warm', 1):
        p(ssum(T, [(S_IDX, 9), (S_WAVE, 7)], 0, T+1)); p(bits(a, [(0, 4, 14)], T, c))
        p(f's_mov_b32 s{T}, L_codeend-L_pc0-4\nv_min_u32 v{a}, s{T}, v{a}\ns_mov_b64 exec, 0xffff\nglobal_load_dword v56, v{a}, s[6:7]\ns_mov_b64 exec, -1')
    if o.get('scramble'): p(f's_and_b32 s{S_IDX}, s2, 31')
    for k in range(4): p(f'v_mov_b32 v{44+k}, -1\nv_mov_b32 v{48+k}, 0')
    p(f'''
    v_mov_b32 v{c}, {LDS_MISC}
    ds_write_b64 v{c}, v[48:49]
    s_waitcnt lgkmcnt(0)
    s_add_u32 s{S_WS}, s{S_WS}, 0x1fffff
    s_addc_u32 s{S_WS+1}, s{S_WS+1}, 0
    s_and_b32 s{S_WS}, s{S_WS}, 0xffe00000
    s_mov_b32 s{S_WS+2}, {WS_SIZE}
    s_mov_b32 s{S_WS+3}, 0x20000
    s_barrier
    ''')
    p(ssum(T, [(S_WAVE, 19), (2, 10)], 0, T+1)); p(bits(a, [(0, 6, 4)], None, c))
    p(st(4, 44, a, T, 0, 'sc1'))
    p(f's_add_u32 s{T}, s{T}, {WS_M2 + M2_A}'); p(st(4, 44, a, T, 0, 'sc1'))
    p(ssum(T, [(S_WAVE, 19), (2, 8)], WS_M2, T+1)); p(bits(b, [(0, 4, 4)], T, c))
    p(ssum(T, [(2, 7)], B_F)); p(bits(52, [(0, 3, 4)], T, c))
    p(f's_and_b32 s{T}, s2, 15'); p(ssum(T, [(T, 7)], WS_M2 + M2_F)); p(bits(53, [(0, 3, 4)], T, c))
    p(f'''
    v_cmp_gt_u32 vcc, 24, v1
    v_cndmask_b32 v52, v53, v52, vcc
    v_cmp_gt_u32 vcc, 16, v1
    v_cndmask_b32 v{b}, v52, v{b}, vcc
    s_lshl_b32 s{T}, s{S_WAVE}, 19
    s_lshl_b32 s{T+1}, s2, 7
    s_add_u32 s{T}, s{T}, s{T+1}
    s_and_b32 s{T+1}, s{T}, 0x6000
    s_add_u32 s{T}, s{T}, s{T+1}
    s_add_u32 s{T}, s{T}, 0x50000
    v_and_b32 v52, 1, v1
    v_lshl_add_u32 v52, v52, 13, s{T}
    v_cmp_gt_u32 vcc, 32, v1
    v_cndmask_b32 v{b}, v52, v{b}, vcc
    s_bfm_b64 exec, 34, 0
    {st(4, 44, b, '0', 0, 'sc1')}
    s_mov_b64 exec, 15
    ''')
    p(ssum(T, [(2, 8), (S_WAVE, 6)], WS_FLAG, T+1)); p(st(4, 48, a, T, 0, 'sc1'))
    p(f'''
    s_mov_b64 exec, -1
    L_role:
    s_cmp_ge_u32 s{S_XCD}, 4
    s_cbranch_scc1 L_G
    ''')
    def register(p, SB, VB):
        p(f'''
        s_mov_b32 s{S_REG}, 1
        s_lshl_b32 s{SB}, 1, s{S_IDX}
        s_lshl_b32 s{SB+2}, s{S_XCD}, 5
        v_mov_b32 v{VB+2}, s{SB}
        v_mov_b32 v{VB+3}, s{SB+1}
        v_mov_b32 v{VB}, s{SB+2}
        s_mov_b64 exec, 1
        global_atomic_add_x2 v[254:255], v{VB}, v[{VB+2}:{VB+3}], s[{S_DBG}:{S_DBG+1}] sc0 sc1
        s_mov_b64 exec, -1
        ''')
    def greg(p):
        p(f's_add_u32 s48, s{S_WAVE}, s{S_VERI}\ns_cmp_eq_u32 s48, 0\ns_cbranch_scc0 G_reg\ns_mov_b32 s49, 0x100')
        register(p, 48, 30); p('G_reg:')
    NR = 1
    def race(p, nout):
        SB = 60; VB = V_T + 20
        p(f's_cmp_lg_u32 s{S_VERI}, 0\ns_cbranch_scc1 R_race_end')
        p(ssum(SB, [(S_WAVE, 19), (2, 7)], 0, SB+1))
        p(f'''
        s_and_b32 s{SB+1}, s{SB}, 0x6000
        s_add_u32 s{SB}, s{SB}, s{SB+1}
        s_add_u32 s{SB}, s{SB}, 0x50000
        s_and_b32 s{SB+4}, s{S_WAVE}, 1
        s_lshl_b32 s{SB+1}, s{SB+4}, 13
        s_add_u32 s{SB}, s{SB}, s{SB+1}
        s_xor_b32 s{SB+1}, s{SB}, 0x2000
        s_mov_b64 s[{SB+2}:{SB+3}], 0
        s_mov_b32 s{SB+5}, 2000
        s_waitcnt vmcnt({nout}) lgkmcnt(0)
        s_buffer_load_dword s{SB+2}, {sr(S_WS,4)}, s{SB} glc
        s_buffer_load_dword s{SB+3}, {sr(S_WS,4)}, s{SB+1} glc
        R_race0:
        s_mov_b64 s[{SB+6}:{SB+7}], s[{SB+2}:{SB+3}]
        s_sub_u32 s{SB+5}, s{SB+5}, 1
        s_cselect_b64 s[{SB+6}:{SB+7}], -1, s[{SB+6}:{SB+7}]
        s_cmp_eq_u64 s[{SB+6}:{SB+7}], 0
        s_cbranch_scc1 R_race0
        s_sub_u32 s{SB+6}, s{SB+6}, s{SB+7}
        s_sub_u32 s{SB+7}, 0, s{SB+6}
        s_cmp_eq_u32 s{SB+4}, 0
        s_cselect_b32 s{SB+6}, s{SB+6}, s{SB+7}
        s_add_u32 s{SB+6}, s{SB+6}, 0x101
        v_mov_b32 v{VB}, {LDS_MISC}
        v_mov_b32 v{VB+1}, s{SB+6}
        s_mov_b64 exec, 1
        ds_add_rtn_u32 v{VB+1}, v{VB}, v{VB+1}
        s_waitcnt lgkmcnt(0)
        v_readfirstlane_b32 s{SB+7}, v{VB+1}
        s_mov_b64 exec, -1
        s_add_u32 s{SB+6}, s{SB+6}, s{SB+7}
        s_cmp_lt_u32 s{SB+6}, 0x400
        s_cbranch_scc1 R_race_end
        s_and_b32 s{SB+6}, s{SB+6}, 0xff
        s_lshl_b32 s{SB+1}, s{SB+6}, 18
        s_add_u32 s{SB+1}, s{SB+1}, 0x100
        ''')
        register(p, SB, VB)
        p('R_race_end:')
    o['hook_race'] = race
    o['hook_reg'] = greg
    def verify(p, lbl, SB=48, VB=30, also=''):
        p(f'''
        s_cmp_lg_u32 s{S_VERI}, 0
        s_cbranch_scc1 {lbl}_ok
        v_and_b32 v{VB}, 7, v1
        v_lshlrev_b32 v{VB}, 5, v{VB}
        {lbl}:
        global_load_dwordx2 v[{VB+2}:{VB+3}], v{VB}, s[{S_DBG}:{S_DBG+1}] sc1
        {budget()}
        s_mov_b32 s{SB}, 0
        s_waitcnt vmcnt(0)
        ''')
        for k in range(8): p(f'v_readlane_b32 s{SB+1}, v{VB+3}, {k}\ns_lshr_b32 s{SB+1}, s{SB+1}, 8\ns_add_u32 s{SB}, s{SB}, s{SB+1}')
        p(f'''
        s_and_b32 s{SB+1}, s{SB}, 0x3ff
        s_cmp_ge_u32 s{SB+1}, 256
        s_cbranch_scc1 {lbl}_all
        s_cmp_eq_u32 s{S_BUD}, 0
        s_cbranch_scc1 {lbl}_all
        s_sleep 2
        s_branch {lbl}
        {lbl}_all:
        s_mov_b32 s{S_VERI}, 1
        s_lshr_b32 s{SB}, s{SB}, 10
        s_cmp_gt_u32 s{SB}, {512*NR}
        s_cselect_b32 s{S_POLV}, 1, 0
        v_bfe_u32 v{VB+1}, v{VB+3}, 8, 10
        v_cmp_ne_u32 s[{SB+2}:{SB+3}], 32, v{VB+1}
        v_and_b32 v{VB+1}, 0xff, v{VB+3}
        v_cmp_ne_u32 s[{SB+4}:{SB+5}], 0, v{VB+1}
        v_cmp_ne_u32 vcc, -1, v{VB+2}
        s_or_b64 s[{SB+4}:{SB+5}], s[{SB+4}:{SB+5}], s[{SB+2}:{SB+3}]
        s_or_b64 vcc, vcc, s[{SB+4}:{SB+5}]
        {'s_mov_b64 vcc, -1' if o.get('forceslow') else ''}
        s_cbranch_vccz {lbl}_ok
        v_mov_b32 v{VB}, {LDS_MISC + 8}
        s_waitcnt vmcnt(0) lgkmcnt(0)
        s_cmp_eq_u32 s{S_REG}, 1
        s_cbranch_scc0 {lbl}_t
        s_mov_b64 exec, 1
        ds_write_b32 v{VB}, v255
        s_mov_b64 exec, -1
        s_waitcnt lgkmcnt(0)
        {lbl}_t:
        s_barrier
        ds_read_b32 v{VB+1}, v{VB}
        s_waitcnt lgkmcnt(0)
        v_readfirstlane_b32 s{S_IDX}, v{VB+1}
        s_bfe_u32 s{S_IDX}, s{S_IDX}, 0x50008
        s_cmp_eq_u64 s[{SB+2}:{SB+3}], 0
        {'s_cmp_eq_u32 s2, -1' if o.get('forceslow') else ''}
        s_cbranch_scc1 L_role
        s_mov_b32 s{S_MODE}, 1
        s_and_b32 s{S_XCD}, s2, 7
        s_lshr_b32 s{S_IDX}, s2, 3
        {f's_lshr_b32 s{S_XCD}, s2, 5' if o.get('forceslow') == 2 else ''}
        {f's_and_b32 s{S_IDX}, s2, 31' if o.get('forceslow') == 2 else ''}
        s_branch L_role
        {lbl}_ok:
        ''')
    r_setup(p, o); r_weights(p, o)
    if o.get('total'): p('s_memrealtime s[6:7]')
    p(ssum(S_KVO, [(S_V, 8)], F_KV_)); p(f'v_mov_b32 v{V_T+36}, 0\nv_mov_b32 v{V_T+37}, 0')
    verify(p, 'RV', S_T, V_T+20)
    p(f's_mov_b32 s{S_POL}, {o["pol"] if "pol" in o else "s%d" % S_POLV}')
    p(f's_cmp_lg_u32 s{S_MODE}, 0\ns_cbranch_scc1 L_Rslow')
    def rstat():
        if not o.get('total'): return
        S = S_ST
        p(f'''
        s_memtime s[{S}:{S+1}]
        s_memrealtime s[{S+2}:{S+3}]
        s_waitcnt lgkmcnt(0)
        s_mov_b32 s{S+5}, s{S+2}
        s_sub_u32 s{S}, s{S}, s{S+22}
        s_sub_u32 s{S+1}, s{S+2}, s{S+24}
        s_mov_b32 s{S+2}, s{S_BUD}
        s_mov_b32 s{S+3}, s90
        s_mov_b32 s{S+4}, s{S+24}
        s_mov_b32 s{S+6}, s{S_POL}
        s_mov_b32 s{S+7}, s{S_MODE}
        s_mov_b32 s{S+8}, s6
        s_lshl2_add_u32 s36, s2, s{S_WAVE}
        s_lshl_b32 s36, s36, 7
        s_add_u32 s36, s36, {0xF900000}
        v_mov_b32 v2, 0
        ''')
        for k in range(20): p(f'v_mov_b32 v{4+k}, s{S+k}')
        for k in range(5): p(st(4, 4+4*k, 2, 36, 16*k))
    r_loop(p, o, '', '')
    p('L_Rtail:'); rstat()
    r_tail(p, o)
    if o.get('total'):
        p(f's_memrealtime s[60:61]\ns_lshl2_add_u32 s36, s2, s{S_WAVE}\ns_lshl_b32 s36, s36, 7\ns_add_u32 s36, s36, {0xF900000 + 36}\nv_mov_b32 v2, 0\ns_waitcnt lgkmcnt(0)\nv_mov_b32 v4, s60\n' + st(1, 4, 2, 36))
    p('s_endpgm\nL_Rslow:')
    r_loop(p, dict(o, trace=0), 's', 'sc1')
    p('s_branch L_Rtail\nL_exit:\ns_endpgm\nL_G:')
    geng.g_role(p, o, verify)
    body = p.finish(o.get('verbose'))
    hdr = open('cdna_kernels/' + NAME + '.s.ref').read().split('; Override launch')[0] if not o.get('nohdr') else ''
    src = hdr + '; @launch grid=(256,1,1) block=(256,1,1) lds=163840\n'
    src += f'.amdgcn_target "amdgcn-amd-amdhsa--gfx950"\n.text\n.globl {KN}\n.p2align 8\n.type {KN},@function\n{KN}:\n'
    src += body + 's_endpgm\n' + geng.table(lists, o['ntask']) + 'L_codeend:\n'
    src += f'''.section .rodata,"a"
.p2align 6
.amdhsa_kernel {KN}
  .amdhsa_next_free_vgpr 512
  .amdhsa_next_free_sgpr 102
  .amdhsa_accum_offset 256
  .amdhsa_group_segment_fixed_size 0
  .amdhsa_kernarg_size 104
  .amdhsa_user_sgpr_count 2
  .amdhsa_user_sgpr_kernarg_segment_ptr 1
  .amdhsa_system_sgpr_workgroup_id_x 1
  .amdhsa_float_denorm_mode_32 3
.end_amdhsa_kernel
'''
    return src
if __name__ == '__main__':
    src = gen(eval(sys.argv[1]) if len(sys.argv) > 1 else None)
    open('cdna_kernels/' + NAME + '.s', 'w').write(src)
    print(len(src), 'bytes')
```

```python
from asmlib import *
import math
WS_B    = 0x0000000
WS_M2   = 0x0200000
M2_A    = 0x10000
WS_FLAG = 0x0400000
WS_KM   = 0x0800000
WS_VM   = 0x0C00000
WS_KX   = 0x1000000
WS_VX   = 0x2000000
WS_TRACE = 0xF000000
WS_SIZE = 0x10000000 - 0x200000
NSEG = 64
S_WS = 8
S_XCD, S_IDX, S_WAVE = 12, 13, 14
S_BUD = 15
S_DBG = 16
S_V, S_C, S_J, S_H = 20, 21, 22, 23
S_STEP, S_CUR, S_NXT, S_RST = 24, 25, 26, 27
S_KXO, S_VXO, S_WUO, S_KMO = 28, 29, 30, 31
S_SRD = 32
S_T = 36
S_M_LO8, S_M_HI8, S_M_SM, S_M_C, S_M_32 = 44, 46, 48, 50, 52
S_SCL = 54
S_PERM0, S_PERM1 = 55, 56
S_POL = 57
S_NOCHK = 58
S_PRV = 59
S_PVX = 95
S_JV = 92
S_CU1 = 96
S_M_F = 100
S_KVF, S_KVO = 18, 19
F_KV_ = WS_FLAG + 0x8000
F_FIN_ = WS_FLAG + 0x0800
F_OV_ = WS_FLAG + 0x4000
F_P_ = WS_FLAG + 0x5000
WS_O_ = 0x4000000
WS_PART = 0x6000000
S_ST = 60
S_TAG, S_PFV, S_PFK, S_FBO, S_JUNK, S_SPIN = 86, 88, 89, 92, 93, 94
S_FB = 96
M2_F = 0x50000
B_F = 0x40000
V_LANE = 1
(V_CLD, V_CST, V_ALD, V_ALM, V_ALV, V_P0, V_P1, V_BST, V_BLD, V_KX, V_VX0, V_VX1, V_WU,
 V_L1W, V_L1WK, V_L1WV, V_L1R, V_L1R2, V_L2W0, V_L2W1, V_L2R, V_IDX1, V_IDX2, V_PST) = range(2, 26)
V_SELM = 26
V_SENT = 28
V_ONES = 32
V_BW = 40
V_VXD = 72
V_KXD = 104
V_ACC1 = 112
V_VWM = 136
V_FIN = 152
V_KEEP = 172
V_P = 176
V_SELA = 180
V_SELB = 184
V_T = 188
V_FA, V_TAG = 252, 253
V_FAV, V_FCV, V_FAL, V_FCL = V_T+60, V_T+61, V_T+62, V_T+63
V_PRG = 0
V_TB, V_LC = V_T+56, V_T+57
S_FB8, S_TB, S_FBO2 = 44, 97, 98
LDS3 = 20480
OOB = 0x7ffffff0
A_W1 = 0
A_WO = 192
W1 = lambda mat, tq, i: A_W1 + ((mat*2 + tq)*4 + i)*8
WO = lambda tq, ks: A_WO + (tq*2 + ks)*8
LDS1 = 0
LDS2 = 12288

def ld(n, dst, voff, soff, imm=0, fl='sc1', srd=S_WS):
    suf = {1: 'dword', 2: 'dwordx2', 4: 'dwordx4'}[n]
    d = dst if isinstance(dst, str) else vr(dst, n)
    so = soff if isinstance(soff, str) else sr(soff)
    return f'buffer_load_{suf} {d}, {vr(voff)}, {sr(srd,4)}, {so} offen offset:{imm} {fl}'
def st(n, src, voff, soff, imm=0, fl='', srd=S_WS):
    suf = {1: 'dword', 2: 'dwordx2', 4: 'dwordx4'}[n]
    so = soff if isinstance(soff, str) else sr(soff)
    return f'buffer_store_{suf} {vr(src, n)}, {vr(voff)}, {sr(srd,4)}, {so} offen offset:{imm} {fl}'
def zero(base, n): return [f'v_mov_b64 {vr(base+i,2)}, 0' for i in range(0, n, 2)]
def setexec(m): return f's_mov_b64 exec, {sr(m,2)}' if m is not None else 's_mov_b64 exec, -1'
def bits(dst, terms, base=None, tmp=None, src=V_LANE):
    out = []
    first = True
    for lo, w, sh in terms:
        if first:
            out.append(f'v_bfe_u32 v{dst}, v{src}, {lo}, {w}')
            if sh: out.append(f'v_lshlrev_b32 v{dst}, {sh}, v{dst}')
            first = False
        else:
            out.append(f'v_bfe_u32 v{tmp}, v{src}, {lo}, {w}')
            out.append(f'v_lshl_add_u32 v{dst}, v{tmp}, {sh}, v{dst}')
    if base is not None:
        out.append(f'v_add_u32 v{dst}, {base[1] if isinstance(base, tuple) else "s%d" % base}, v{dst}')
    return out
def ssum(dst, terms, lit=0, tmp=None):
    out = []
    first = True
    for s_, sh in terms:
        if first: out.append(f's_lshl_b32 s{dst}, s{s_}, {sh}'); first = False
        else: out += [f's_lshl_b32 s{tmp}, s{s_}, {sh}', f's_add_u32 s{dst}, s{dst}, s{tmp}']
    if lit: out.append(f's_add_u32 s{dst}, s{dst}, {lit}')
    return out

def r_setup(p, o):
    T = S_T
    a, b, c_ = V_T+5, V_T+6, V_T+7
    L = V_LANE
    B = lambda dst, terms, base=None: p(bits(dst, terms, base, c_))
    S = lambda terms, lit=0, dst=T+1: p(ssum(dst, terms, lit, T+3))
    p(f'''
    s_lshr_b32 s{T}, s{S_IDX}, 4
    s_lshl1_add_u32 s{S_V}, s{S_XCD}, s{T}
    s_and_b32 s{S_C}, s{S_IDX}, 15
    s_and_b32 s{S_J}, s{S_C}, 3
    s_xor_b32 s{S_JV}, s{S_J}, 2
    s_lshr_b32 s{T}, s{S_C}, 2
    s_lshl2_add_u32 s{S_H}, s{S_V}, s{T}
    s_lshl2_add_u32 s{T+4}, s{S_V}, s{S_WAVE}
    s_mov_b32 s{S_M_32}, -1
    s_mov_b32 s{S_M_32+1}, 0
    s_mov_b32 s{S_SCL}, 0x{o['scl']:08x}
    s_mov_b32 s{S_PERM0}, 0x05040100
    s_mov_b32 s{S_PERM1}, 0x07060302
    ''')
    S([(S_XCD, 14), (S_WAVE, 12)], WS_M2); B(V_CLD, [(0, 6, 4)], T+1)
    S([(S_XCD, 14), (S_IDX, 9), (S_WAVE, 7)], WS_M2); B(V_CST, [(0, 3, 4), (4, 1, 3)], T+1)
    p(f's_lshr_b32 s{T}, s{S_IDX}, 1\ns_and_b32 s{T+2}, s{S_IDX}, 1')
    S([(T, 14), (T+2, 12), (S_WAVE, 10)]); B(V_BLD, [(0, 6, 4)], T+1)
    sB = o.get('syncB', 1)
    if sB: S([(S_C, 14), (S_WAVE, 12), (S_V, 7)]); B(V_BST, [(0, 4, 3), (4, 2, 10)], T+1)
    else: S([(S_C, 14), (S_WAVE, 11), (S_V, 7)]); B(V_BST, [(0, 4, 3), (4, 1, 10), (5, 1, 18)], T+1)
    S([(T+4, 13)], WS_M2 + M2_A); B(V_ALD, [(0, 6, 4)], T+1)
    p(f'v_add_u32 v{V_ALV}, 3072, v{V_ALD}')
    S([(T+4, 13)], WS_M2 + M2_A + 2048); B(V_ALM, [(0, 6, 3)], T+1)
    S([(T+4, 13)], WS_VX); B(V_VX0, [(4, 2, 9), (3, 1, 8), (1, 1, 6), (2, 1, 5), (0, 1, 4)], T+1)
    p(f'v_add_u32 v{V_VX1}, 4096, v{V_VX0}')
    S([(T+4, 13), (S_C, 9)], WS_VX, S_PFV)
    S([(S_H, 13), (S_J, 11), (S_WAVE, 9)], WS_KX, S_PFK)
    def only(reg, cond):
        p(f'v_mov_b32 v{b}, {OOB}\n{cond}\nv_cndmask_b32 v{reg}, v{b}, v{reg}, vcc')
    p(f's_lshr_b32 s{T}, s{S_IDX}, 2')
    S([(S_XCD, 12), (T, 7), (S_J, 4), (S_WAVE, 2)], WS_M2 + M2_F); B(V_FA, [(0, 2, 10)], T+1)
    only(V_FA, f'v_cmp_gt_u32 vcc, 4, v{L}')
    p(f's_and_b32 s{T}, s{S_V}, 1')
    S([(S_XCD, 12), (T, 9), (S_WAVE, 7)], WS_M2 + M2_F); B(V_FAL, [(0, 4, 2)], T+1)
    S([(S_XCD, 12), (S_WAVE, 8)], WS_M2 + M2_F + 16384); B(V_FCL, [(4, 1, 7), (0, 4, 2)], T+1)
    p(f'v_mov_b32 v{V_FAV}, -1\nv_mov_b32 v{V_FCV}, -1')
    S([(S_V, 8)], WS_FLAG); p(f'v_mov_b32 v{V_PRG}, s{T+1}\ns_lshl_b32 s{T+1}, s{S_C}, 6'); only(V_PRG, f'v_cmp_eq_u32 vcc, s{T+1}, v{L}')
    B(a, [(3, 1, 0), (5, 1, 1)]); only(V_CST, f'v_cmp_eq_u32 vcc, 0, v{a}')
    if not o.get('nB2') and not sB: only(V_BST, f'v_cmp_gt_u32 vcc, 32, v{L}')
    if o.get('two', 0):
        lg = o['two'].bit_length() - 1
        p(f's_and_b32 s{T}, s{S_V}, {(2 << lg) - 1}\ns_lshr_b32 s{T+2}, s{S_V}, {1 + lg}'); S([(T, 15), (S_C, 8), (T+2, 2)], B_F)
    else: S([(S_C, 8), (S_V, 2)], B_F)
    B(V_WU, [(2, 1, 14), (1, 1, 12), (0, 1, 7)], T+1)
    p(f'v_mov_b32 v{b}, 0x20000000\nv_cmp_gt_u32 vcc, 8, v{L}\nv_cndmask_b32 v{V_WU}, v{b}, v{V_WU}, vcc')
    p(f's_lshr_b32 s{T}, s{S_XCD}, 1\ns_and_b32 s{T+2}, s{S_XCD}, 1')
    S([(T, 14), (T+2, 12), (S_IDX, 7)], B_F, S_FBO2)
    if o.get('two', 0): p(f's_and_b32 s{T}, s{S_WAVE}, 1\ns_lshl_b32 s{T}, s{T}, 15\ns_add_u32 s{S_FBO2}, s{S_FBO2}, s{T}')
    B(V_LC, [(0, 6, 2)], ('lit', LDS3))
    S([(S_H, 13), (S_J, 11)], WS_KX); B(V_KX, [(4, 2, 9), (0, 4, 4)], T+1)
    p(f'''
    v_and_b32 v{a}, 2, v{L}
    v_cmp_eq_u32 vcc, 0, v{a}
    v_mov_b32 v{a}, 0x4444
    v_mov_b32 v{b}, 0xeeee
    v_cndmask_b32 v{V_IDX1}, v{b}, v{a}, vcc
    v_mov_b32 v{a}, 0xe484
    v_mov_b32 v{b}, 0xee9e
    v_cndmask_b32 v{V_IDX2}, v{b}, v{a}, vcc
    v_mov_b32 v{a}, 0x84e4
    v_mov_b32 v{b}, 0x9eee
    v_cndmask_b32 v{a}, v{b}, v{a}, vcc
    v_cmp_gt_u32 vcc, 32, v{L}
    v_cndmask_b32 v{V_IDX2}, v{a}, v{V_IDX2}, vcc
    ''')
    for k in range(4): p(f'v_mov_b32 v{V_SENT+k}, -1')
    for k in range(8): p(f'v_mov_b32 v{V_ONES+k}, {"0" if k % 4 == 3 else "0x3f803f80"}')
    for tq in range(4): p(f'v_mov_b32 v{V_BW+8*tq+3}, 0\nv_mov_b32 v{V_BW+8*tq+7}, 0')
    B(a, [(0, 1, 4)]); p(f'v_mov_b32 v{b}, 0x3f80\nv_lshlrev_b32 v{a}, v{a}, v{b}')
    B(b, [(1, 3, 0)])
    for k in range(8): p(f'v_cmp_eq_u32 vcc, {k}, v{b}\nv_cndmask_b32 v{V_SELA+k}, 0, v{a}, vcc')
    B(a, [(3, 1, 4)]); p(f'v_mov_b32 v{b}, 0x3f80\nv_lshlrev_b32 v{a}, v{a}, v{b}')
    B(b, [(2, 1, 0)])
    for k in range(2): p(f'v_cmp_eq_u32 vcc, {k}, v{b}\nv_cndmask_b32 v{V_SELM+k}, 0, v{a}, vcc')
    S([(S_WAVE, 10)], LDS1); B(a, [(4, 2, 8), (1, 3, 4), (0, 1, 3)], T+1)
    B(b, [(4, 2, 5)])
    p(f'v_xor_b32 v{V_L1W}, v{a}, v{b}\nv_xor_b32 v{V_L1WK}, 16, v{V_L1W}\nv_add_u32 v{V_L1WK}, 4096, v{V_L1WK}')
    B(b, [(4, 1, 6), (5, 1, 5)])
    p(f'v_xor_b32 v{V_L1WV}, v{a}, v{b}\nv_add_u32 v{V_L1WV}, 8192, v{V_L1WV}')
    S([(S_WAVE, 11)], LDS2); B(a, [(4, 2, 9), (0, 4, 4)], T+1)
    B(b, [(4, 2, 6)])
    p(f'v_xor_b32 v{V_L2W0}, v{a}, v{b}\nv_xor_b32 v{V_L2W1}, 32, v{V_L2W0}')
    if sB: p(f's_and_b32 s{T}, s{S_WAVE}, 1'); S([(T, 7)], LDS2); B(a, [(3, 2, 9), (1, 1, 8), (5, 1, 6), (2, 1, 5), (0, 1, 4)], T+1)
    else: S([(S_WAVE, 6)], LDS2); B(a, [(3, 2, 9), (1, 1, 8), (2, 1, 5), (0, 1, 4)], T+1)
    B(b, [(3, 2, 6), (1, 1, 5)])
    p(f'v_xor_b32 v{V_L2R}, v{a}, v{b}')
    S([(S_H, 13)], WS_M2 + M2_A, T+5)
    p(f'''
    s_cmp_eq_u32 s{S_WAVE}, 1
    s_cbranch_scc1 R_su1
    s_cmp_eq_u32 s{S_WAVE}, 2
    s_cbranch_scc1 R_su2
    s_cmp_eq_u32 s{S_WAVE}, 3
    s_cbranch_scc1 R_su3
    ''')
    B(a, [(3, 1, 12), (0, 3, 7), (4, 2, 5)], ('lit', LDS1) if LDS1 else None)
    B(b, [(1, 2, 5), (3, 1, 4)])
    p(f'v_xor_b32 v{V_L1R}, v{a}, v{b}\nv_xor_b32 v{V_L1R2}, 16, v{V_L1R}')
    S([(T+5, 0), (S_J, 8)]); B(V_P0, [(5, 1, 10), (1, 2, 6), (4, 1, 5), (0, 1, 4)], T+1)
    S([(T+5, 0), (S_J, 7)], 2048); B(V_P1, [(1, 2, 5), (4, 1, 4), (0, 1, 3)], T+1)
    S([(S_H, 11), (S_J, 9)], WS_KM); B(V_PST, [(4, 2, 7), (0, 3, 4)], T+1)
    B(a, [(3, 1, 0)]); only(V_P0, f'v_cmp_eq_u32 vcc, 0, v{a}'); only(V_PST, f'v_cmp_eq_u32 vcc, 1, v{a}')
    B(a, [(3, 1, 0), (5, 1, 1)]); only(V_P1, f'v_cmp_eq_u32 vcc, 2, v{a}')
    p('s_branch R_sud\nR_su1:')
    p(f'v_cmp_gt_u32 vcc, 32, v{L}')
    S([(T+5, 0), (S_J, 8)]); B(a, [(4, 1, 10), (0, 4, 4)], T+1)
    S([(T+5, 0), (S_JV, 9)], 3072); B(b, [(0, 5, 4)], T+1)
    p(f'v_cndmask_b32 v{V_P0}, v{b}, v{a}, vcc')
    S([(S_XCD, 14), (S_IDX, 9)], WS_M2); B(a, [(0, 5, 4)], T+1)
    S([(T+5, 0), (S_J, 7)], 2048); B(b, [(0, 3, 4)], T+1)
    p(f'v_cndmask_b32 v{V_P1}, v{b}, v{a}, vcc')
    S([(S_C, 14), (S_V, 7)]); B(V_KX, [(0, 3, 4), (3, 2, 10), (5, 1, 18)], T+1)
    if not o.get('nB2'): only(V_KX, f'v_cmp_gt_u32 vcc, 32, v{L}')
    p(f'v_mov_b32 v{V_PST}, 0\nv_mov_b32 v{V_L1R}, 0\nv_mov_b32 v{V_L1R2}, 0\ns_branch R_sud\nR_su2:')
    B(a, [(5, 1, 6), (2, 1, 5), (3, 2, 3), (1, 1, 2), (0, 1, 9)], ('lit', LDS1 + 8192))
    B(b, [(0, 1, 5)])
    p(f'v_xor_b32 v{V_L1R}, v{a}, v{b}\nv_xor_b32 v{V_L1R2}, 64, v{V_L1R}')
    S([(S_H, 11), (S_JV, 9)], WS_VM); B(V_PST, [(0, 6, 3)], T+1)
    p(f'v_mov_b32 v{V_P0}, 0\nv_mov_b32 v{V_P1}, 0\ns_branch R_sud\nR_su3:')
    B(a, [(1, 1, 9), (3, 2, 7), (5, 1, 6), (2, 1, 5), (0, 1, 4)], ('lit', LDS1 + 8192))
    B(b, [(4, 1, 6), (1, 1, 5)])
    p(f'v_xor_b32 v{V_L1R}, v{a}, v{b}')
    S([(T+5, 0), (S_JV, 9)], 3072); B(V_P0, [(0, 6, 3)], T+1)
    S([(S_C, 14), (S_V, 7)], 4096); B(V_KX, [(0, 3, 4), (3, 2, 10), (5, 1, 18)], T+1)
    if not o.get('nB2'): only(V_KX, f'v_cmp_gt_u32 vcc, 32, v{L}')
    p(f'v_mov_b32 v{V_L1R2}, 0\nv_mov_b32 v{V_P1}, 0\nv_mov_b32 v{V_PST}, 0\nR_sud:')

def r_weights(p, o):
    T = S_T
    c_ = V_T+7
    W1o, WOo, WVo = V_T+24, V_T+28, V_T+32
    lqk, lv_, lo, ad = V_T+8, V_T+9, V_T+10, V_T+11
    hq, ho = V_T+36, V_T+37
    B = lambda dst, terms, base=None: p(bits(dst, terms, base, c_))
    NS = o.get('NS', 8)
    SO, SM = S_KXO, S_VXO
    p(f"""
    s_load_dwordx2 s[{T}:{T+1}], s[0:1], 16
    s_load_dwordx2 s[{T+2}:{T+3}], s[0:1], 24
    s_load_dwordx2 s[{T+4}:{T+5}], s[0:1], 32
    s_load_dwordx2 s[{T+6}:{T+7}], s[0:1], 40
    s_mul_i32 s{SM}, s{S_WAVE}, {NS*4096}
    """)
    p(ssum(S_SRD, [(S_WAVE, 21), (S_H, 8), (S_J, 6)], 0, S_SRD+1))
    B(W1o, [(2, 4, 13), (0, 2, 4)], S_SRD)
    for j in range(1, 4): p(f'v_add_u32 v{W1o+j}, {j*16*8192 - 1024*j}, v{W1o}')
    for j in range(4): p(f'v_xor_b32 v{WVo+j}, 128, v{W1o+j}')
    p(ssum(S_SRD, [(S_V, 20), (S_WAVE, 18), (S_C, 7)], 0, S_SRD+1))
    B(WOo, [(3, 3, 11), (0, 3, 4)], S_SRD)
    for j in range(1, 4): p(f'v_add_u32 v{WOo+j}, {j*8*2048 - 1024*j}, v{WOo}')
    p(f's_mov_b32 s{S_SRD+2}, 0x800000\ns_mov_b32 s{S_SRD+3}, 0x20000\ns_waitcnt lgkmcnt(0)')
    order = [(m, i) for pr in o.get('word', ((1, 2), (0, 3))) for i in range(4) for m in pr]
    def issue1(k, j):
        mat, i = order[k]
        return [f's_mov_b32 s{S_SRD}, s{T+2*mat}\ns_mov_b32 s{S_SRD+1}, s{T+2*mat+1}', f's_add_u32 m0, s{SM}, {(k % NS)*4096}',
                f's_mov_b32 s{SO}, {64*i*8192 if mat < 3 else 32*i*2048}',
                f'buffer_load_dwordx4 v{[W1o, W1o, WVo, WOo][mat]+j}, {sr(S_SRD,4)}, s{SO} offen offset:{1024*j} {o.get("ntw", [""]*4)[mat]} lds']
    def issue(k):
        return [x for kk in (k, k+1) for j in range(4) for x in (issue1(kk, j) if j == 0 else issue1(kk, j)[-1:])]
    if o.get('help', 1):
        p(ssum(SO, [(S_IDX, 18), (S_WAVE, 16), (S_XCD, 11)], 0x180, S_WUO)); B(hq, [(1, 3, 13), (0, 1, 10)], SO)
        p(ssum(SO, [(S_XCD, 21), (S_IDX, 16), (S_WAVE, 14)], 0x180, S_WUO)); B(ho, [(0, 4, 10)], SO)
    def helper(mats):
        p('s_mov_b64 exec, 0xffff')
        for mat in mats: p(f's_mov_b32 s{S_SRD}, s{T+2*mat}\ns_mov_b32 s{S_SRD+1}, s{T+2*mat+1}\n' + ld(1, V_T+38, hq if mat < 3 else ho, '0', 0, '', S_SRD))
        p('s_mov_b64 exec, -1')
    assert NS == 8
    p(f's_buffer_load_dword s{S_JUNK}, {sr(S_WS,4)}, 0x7f000')
    helper((1, 2))
    for k in range(0, NS, 2):
        if k == o.get('help2', 6): helper((0, 3))
        p(issue(k))
    B(lqk, [(5, 1, 10), (4, 1, 8), (1, 1, 5), (2, 2, 3), (0, 1, 2)], SM)
    B(lv_, [(5, 1, 10), (4, 1, 8), (0, 1, 5), (3, 1, 4), (1, 1, 3), (2, 1, 2)], SM)
    B(lo, [(4, 2, 9), (0, 4, 3)], SM)
    if o.get('hook_race'): o['hook_race'](p, 4*NS + 4)
    sb = 72
    for k in range(16):
        mat, i = order[k]
        if k % 2 == 0: p(f's_waitcnt vmcnt({4*(min(k+NS-1, 15) - k - 1) + (4 if k + NS > 16 else 0)})')
        for R in range(2):
            p(f'v_add_u32 v{ad}, {(k % NS)*4096 + R*2048}, v{[lqk, lqk, lv_, lo][mat]}')
            if mat < 3:
                for vv in range(4):
                    o0 = 128*(vv & 1) + 32*(vv >> 1)
                    p(f'ds_read2_b32 {vr(sb+2*(4*R+vv),2)}, v{ad} offset0:{o0} offset1:{o0+16}')
            else:
                for v1 in range(2): p(f'ds_read2_b64 {vr(sb+4*(2*R+v1),4)}, v{ad} offset0:{32*v1} offset1:{32*v1+16}')
        p('s_waitcnt lgkmcnt(0)')
        if k % 2 == 1 and k + NS < 16: p(issue(k - 1 + NS))
        if k + NS == 16:
            p(f's_load_dwordx2 s[{T}:{T+1}], s[0:1], 8\ns_lshl_b32 s{SO}, s{S_WAVE}, 9')
            B(W1o, [(2, 2, 12), (0, 1, 11), (4, 2, 5), (1, 1, 4)])
            p(f's_waitcnt lgkmcnt(0)\ns_mov_b32 s{S_SRD}, s{T}\ns_mov_b32 s{S_SRD+1}, s{T+1}\ns_mov_b32 s{S_SRD+2}, 16384')
            for q in range(4): p(ld(4, V_T+40+4*q, W1o, SO, 128*q, '', S_SRD))
        if mat < 3:
            for v in range(8):
                p(f'v_perm_b32 v{V_T+12}, v{sb+2*v+1}, v{sb+2*v}, s{S_PERM0}\nv_perm_b32 v{V_T+13}, v{sb+2*v+1}, v{sb+2*v}, s{S_PERM1}')
                p(f'v_accvgpr_write_b32 a{W1(mat,0,i)+v}, v{V_T+12}\nv_accvgpr_write_b32 a{W1(mat,1,i)+v}, v{V_T+13}')
        else:
            ks, R = i >> 1, i & 1
            for vv in range(4):
                for tq in range(4): p(f'v_perm_b32 v{V_T+12+tq}, v{sb+4*vv+2+(tq>>1)}, v{sb+4*vv+(tq>>1)}, s{S_PERM0 + (tq&1)}')
                for tq in range(4): p(f'v_accvgpr_write_b32 a{WO(tq,ks)+4*R+vv}, v{V_T+12+tq}')
    p('s_barrier')

def vwx_groups(reload_so):
    ACC = V_T
    out = []
    for T_ in range(2):
        for u in range(4):
            grp = []
            q = V_VXD + (T_*4+u)*4
            for tq in range(4):
                d = ACC + (T_*4+tq)*4
                grp.append(f'v_mfma_f32_16x16x32_bf16 {vr(d,4)}, {vr(q,4)}, {ar(WO(tq,u>>1)+4*(u&1),4)}, {"0" if u == 0 else vr(d,4)}')
            grp.append(ld(4, q, V_VX0 + (u >> 1), reload_so, (u & 1)*2048 + T_*128))
            out.append(grp)
    return out
def vwx_cvt(T_):
    ACC = V_T; out = []
    for tq in range(4):
        d = ACC + (T_*4+tq)*4
        out.append(f'v_cvt_pk_bf16_f32 v{V_BW+8*tq+4*T_}, v{d}, v{d+1}')
        out.append(f'v_cvt_pk_bf16_f32 v{V_BW+8*tq+4*T_+1}, v{d+2}, v{d+3}')
    return out
def delay(n):
    out = []
    while n > 0:
        k = min(n, 16); out.append('s_nop %d' % (k-1)); n -= k
    return out
def budget(): return f's_sub_u32 s{S_BUD}, s{S_BUD}, 1\ns_max_i32 s{S_BUD}, s{S_BUD}, 0'

def r_loop(p, o, sfx='', pl=''):
    T = S_T
    def stamp(k):
        if o.get('trace'): p(f's_mem{"real" if o["trace"] == 1 else ""}time s[{S_ST+2*k}:{S_ST+2*k+1}]')
        if o.get('trace') == 2 and k == 6: p(f's_memrealtime s[{S_ST+20}:{S_ST+21}]')
    def count(k):
        if o.get('counts'): p(f's_add_u32 s{S_ST+16+k}, s{S_ST+16+k}, 1')
    MEM = V_T
    a = V_T+36
    if o.get('kvwait'):
        p(f'''
        v_mov_b32 v{a}, 0
        R_kv0{sfx}:
        v_readfirstlane_b32 s{S_KVF}, v{a+1}
        s_and_b32 s{T}, s{S_KVF}, 0xff
        s_cmp_ge_u32 s{T}, 8
        s_cbranch_scc1 R_kv0k{sfx}
        s_cmp_eq_u32 s{S_BUD}, 0
        s_cbranch_scc1 R_kv0k{sfx}
        {ld(1, a+1, a, S_KVO)}
        {budget()}
        s_waitcnt vmcnt(0)
        s_branch R_kv0{sfx}
        R_kv0k{sfx}:
        ''')
    p(f's_mov_b32 s{S_VXO}, 0')
    for T_ in range(2):
        for u in range(4): p(ld(4, V_VXD+(T_*4+u)*4, V_VX0+(u>>1), S_VXO, (u&1)*2048 + T_*128))
    for T_ in range(2): p(ld(4, V_KXD+4*T_, V_KX, S_VXO, T_*256))
    p(zero(V_ACC1, 60))
    p(f's_mov_b32 s{S_VXO}, 0x40000')
    for k, grp in enumerate(vwx_groups(S_VXO)): p('s_waitcnt vmcnt(9)'); p(grp)
    p(vwx_cvt(0)); p(vwx_cvt(1))
    for k in range(0, 16, 2): p(f'v_mov_b64 {vr(MEM+k,2)}, {vr(V_T+40+k,2)}')
    p(f'''
    s_mov_b32 s{S_STEP}, 0
    s_mov_b32 s{S_CUR}, 0
    s_mov_b32 s{S_NXT}, 0x80000
    s_mov_b32 s{S_RST}, 0x100000
    s_mov_b32 s{S_KXO}, 0x40000
    s_mov_b32 s{S_VXO}, 0x80000
    s_mov_b32 s{S_WUO}, 0xc0000
    s_mov_b32 s{S_KMO}, 0
    s_lshl_b32 s{T}, s{S_POL}, 13
    v_add_u32 v{V_BST}, s{T}, v{V_BST}
    v_add_u32 v{V_BLD}, s{T}, v{V_BLD}
    v_mov_b32 v{V_TAG}, 1
    v_add_u32 v{V_WU}, s{T}, v{V_WU}
    s_add_u32 s{S_FBO2}, s{S_FBO2}, s{T}
    s_mov_b32 s{S_TB}, 1
    v_mov_b32 v{V_TB}, 1
    ds_write_b32 v{V_LC}, v{V_TB}
    s_mov_b64 s[{S_FB8}:{S_FB8+1}], 0
    s_mov_b64 s[{S_FB8+2}:{S_FB8+3}], 0
    s_mov_b64 s[{S_FB8+4}:{S_FB8+5}], 0
    s_mov_b64 s[{S_FB8+6}:{S_FB8+7}], 0
    s_bitcmp1_b32 s{S_WAVE}, 0
    s_cselect_b32 s{T+1}, s{T}, 0
    v_add_u32 v{V_KX}, s{T+1}, v{V_KX}
    s_mov_b32 s{S_TAG}, 1
    s_mov_b32 s{S_PVX}, 0x40000
    ''')
    if o.get('trace'):
        p(f's_lshl2_add_u32 s{T}, s2, s{S_WAVE}\ns_lshl_b32 s{T}, s{T}, 12\ns_add_u32 s{T}, s{T}, {WS_TRACE}\nv_lshl_add_u32 v254, v{V_LANE}, 2, s{T}\nv_mov_b32 v255, 0')
    if o.get('trace') or o.get('counts'):
        for k in range(0, 20): p(f's_mov_b32 s{S_ST+k}, 0')
    if o.get('total'): p(f's_memtime s[{S_ST+22}:{S_ST+23}]\ns_memrealtime s[{S_ST+24}:{S_ST+25}]')
    p(f's_waitcnt lgkmcnt(0)\ns_mov_b32 s{S_NOCHK}, 0')
    for w in range(1, 4): p(f's_cmp_eq_u32 s{S_WAVE}, {w}\ns_cbranch_scc1 R_cw0{sfx}{w}')
    p(f's_branch R_cw0{sfx}0')
    for w in range(4): r_body(p, o, sfx + str(w), pl, stamp, count, w, f'R_fin{sfx}')
    c0, c1 = V_T, V_T+1
    p(f'''
    R_fin{sfx}:
    s_waitcnt vmcnt(0) lgkmcnt(0)
    s_barrier
    s_cmp_eq_u32 s{S_WAVE}, 0
    s_cbranch_scc0 R_l3{sfx}
    s_lshl_b32 s{T}, s{S_V}, 8
    s_add_u32 s{T}, s{T}, {F_FIN_}
    v_mov_b32 v{c0}, 0
    v_mov_b32 v{c1}, 1
    s_mov_b64 exec, 1
    buffer_atomic_add v{c1}, v{c0}, {sr(S_WS,4)}, s{T} offen sc1
    s_mov_b64 exec, -1
    R_l3{sfx}:
    ''')


class VQ:
    def __init__(self, p): self.p = p; self.q = []
    def __call__(self, x, tag=None):
        if isinstance(x, (list, tuple)):
            for y in x: self(y, tag)
            return
        for line in x.split('\n'):
            line = line.strip()
            if line.startswith('@wait'): line = self.wait(line.split()[1])
            t = tag
            if '@' in line: line, t = line.split('@')
            if line.startswith('buffer_'): self.q.append(t)
            self.p(line)
    def unknown(self): self.q.append('?')
    def wait(self, tag):
        n = 0
        for t in reversed(self.q):
            if t == tag or t == '?': break
            n += 1
        else: raise KeyError(tag)
        return f's_waitcnt vmcnt({n})'

def r_body(p0, o, sfx, pl, stamp, count, w, fin_lbl):
    T = S_T
    p = VQ(p0)
    MEM = V_T; X = V_T + 32
    c0, c1 = V_T+58, V_T+59
    lines = lambda t: [x.strip() for x in t.split('\n') if x.strip()]
    g = lambda k, d: (o[k][w] if isinstance(o.get(k), (list, tuple)) else o.get(k, d))
    tr = o.get('trace')
    keep = [st(4, V_KEEP, V_PST, S_KMO, 0, 'sc1'), None, st(2, V_KEEP, V_PST, S_KMO, 0, 'sc1'), None][w]
    side = [keep] if keep else [st(4, V_SENT, V_KX, S_RST, 0, 'sc1')]
    if w == 1: side.append(st(1, V_TAG, V_PRG, '0', 0, 'sc1'))
    kxl = [ld(4, V_KXD, V_KX, S_KXO, 0), ld(4, V_KXD+4, V_KX, S_KXO, 256)] if w == 0 else []
    kx = o.get('kx', 'gap')
    spf = lambda base, so: [f's_add_u32 s{T}, s{base}, s{so}'] + [f's_buffer_load_dwordx2 {sr(S_M_F,2)}, {sr(S_WS,4)}, s{T} offset:{128*k+60}' for k in range(4)]
    pfv = spf(S_PFV, S_WUO) if 'v' in o.get('wu', 'vk') else []
    pfk = spf(S_PFK, S_VXO) if 'k' in o.get('wu', 'vk') else []
    postA = st(1, V_TAG, V_FA, '0', 0, pl); pA = o.get('pA', 1)
    postC = [f's_mov_b32 s{T+4}, 16384', st(1, V_TAG, V_FA, T+4, 0, pl)]
    class Rot:
        def __init__(self, reg, ad): self.reg, self.ad, self.k = reg, ad, 0
        def __call__(self):
            self.k += 1; return ld(1, self.reg, self.ad, '0', 1024*(self.k % o.get('nrep', 4)))
    FA_, FC_ = Rot(V_FAV, V_FAL), Rot(V_FCV, V_FCL)
    sA = o.get('syncA', 1); sC = o.get('syncC', 1)
    def pacer(lbl, reg, tag):
        return [f'v_cmp_gt_i32 vcc, s{tag}, v{reg}', f's_cbranch_vccz {lbl}_ok'] * o.get('pace', 3)
    def spin(lbl, reg, poll, tag):
        out = [f's_min_u32 s{S_SPIN}, s{S_BUD}, 1000', f'{lbl}:']
        for k in range(4): out += [f'v_cmp_gt_i32 vcc, s{tag}, v{reg}', f's_cbranch_vccz {lbl}_ok', poll()] + pacer(lbl, reg, tag)
        out += [f's_sub_u32 s{S_SPIN}, s{S_SPIN}, 1', f's_cbranch_scc0 {lbl}', f'{lbl}_ok:']
        p0(out); p.unknown()
    order = [4, 5, 0, 1, 2, 3]
    mf = lambda i: [f'v_smfmac_f32_16x16x64_bf16 {vr(V_ACC1+t6*4,4)}, {vr(MEM+4*i,4)}, {ar(W1(t6>>1,t6&1,i),8)}, v{V_IDX1}' for t6 in order]
    def chk(i): return [f'v_max3_u32 v{c0}, v{MEM+4*i}, v{MEM+4*i+1}, v{MEM+4*i+2}', f'v_max_u32 v{c0}, v{c0}, v{MEM+4*i+3}', f'v_cmp_eq_u32 vcc, -1, v{c0}']
    def s1_red(mat):
        D0, D1 = V_ACC1+mat*8, V_ACC1+mat*8+4
        R = X + 4*mat
        ad = [V_L1W, V_L1WK, V_L1WV][mat]
        return [f'v_pk_add_f32 {vr(R,2)}, {vr(D0,2)}, {vr(D0+2,2)}', f'v_pk_add_f32 {vr(R+2,2)}, {vr(D1,2)}, {vr(D1+2,2)}',
                f'ds_write2_b32 v{ad}, v{R}, v{R+2} offset0:0 offset1:1', f'ds_write2_b32 v{ad}, v{R+1}, v{R+3} offset0:32 offset1:33']
    grps = vwx_groups(S_VXO)
    nvx = o.get('nvx', 4)
    vx2 = [gr[-1].replace(f', s{S_VXO} ', f', s{S_PVX} ') + '@vx' for gr in grps[8-nvx:]] if nvx else []
    vxf = o.get('vxf', 2)
    upd2 = lines(f"""
    s_add_u32 s{S_STEP}, s{S_STEP}, 1
    s_add_u32 s{S_TAG}, s{S_TAG}, 1
    v_mov_b32 v{V_TAG}, s{S_TAG}
    s_lshl_b32 s{S_TB}, 1, s{S_STEP}
    v_mov_b32 v{V_TB}, s{S_TB}
    s_add_u32 s{S_KXO}, s{S_KXO}, 0x40000
    s_mov_b32 s{S_PVX}, s{S_VXO}
    s_add_u32 s{S_VXO}, s{S_VXO}, 0x40000
    s_min_u32 s{S_VXO}, s{S_VXO}, {(NSEG-1) << 18}
    s_add_u32 s{S_WUO}, s{S_WUO}, 0x40000
    s_min_u32 s{S_WUO}, s{S_WUO}, {(NSEG-1) << 18}
    s_add_u32 s{S_KMO}, s{S_KMO}, 0x10000
    s_add_u32 s{S_NXT}, s{S_NXT}, 0x80000
    s_and_b32 s{S_NXT}, s{S_NXT}, 0x180000
    s_xor_b32 s{S_RST}, s{S_CUR}, 0x100000
    s_mov_b32 s{S_NOCHK}, s{S_BUD}
    """)
    nC = o.get('nC', 0)
    assert nC <= nvx
    cm = [x for gr in grps[8-nC:] for x in gr[:-1]] if nC else []
    cwork = upd2[:1] + weave(cm, upd2[1:] + zero(V_VWM, 36), 0, 1, 2) + vwx_cvt(1)
    def taker(work):
        def take(n):
            while n > 0 and work:
                x = work.pop(0); p(x); n -= 2 if x.startswith('v_mfma') else 1
            p(delay(n))
        return take
    for i in range(4):
        p0(f'R_cr{i}{sfx}:\ns_cmp_eq_u32 s{S_NOCHK}, 0\ns_cbranch_scc1 R_cg{i}{sfx}')
        for k in range(i, 4): p0(ld(4, MEM+4*k, V_CLD, S_CUR, 1024*k))
        count(0); p0(budget())
        p0(f's_mov_b32 s{S_NOCHK}, s{S_BUD}\ns_waitcnt vmcnt({3-i})'); p0(chk(i))
        p0(f's_cbranch_vccz R_cg{i}{sfx}\ns_branch R_cr{i}{sfx}')
    p(f'R_step{sfx}:')
    take = taker(cwork)
    if sC:
        take(1); p(FC_()); take(max(o.get('dC', 20) - 1, 0))
        spin(f'R_fc{sfx}', V_FCV, FC_, S_STEP)
        take(o.get('dC2', 0))
    else: take(o.get('dC', 30))
    for i in range(4):
        p(ld(4, MEM+4*i, V_CLD, S_CUR, 1024*i), f'c{i}')
        if i < 3: take(o.get('gC', 0))
    p(cwork)
    p(f'R_cw0{sfx}:\n@wait c0'); p(chk(0))
    pre = o.get('preA', 2) if sA else 0
    for i in range(4):
        p(f's_cbranch_vccnz R_cr{i}{sfx}\nR_cg{i}{sfx}:')
        m = mf(i)
        if i < 3:
            ck = chk(i+1)
            p(m[:3] + [f'@wait c{i+1}', m[3], ck[0], m[4], ck[1], m[5], ck[2]])
        else:
            stamp(0)
            rv = s1_red(2)
            p([m[0]] + ([postA] if pA == 0 else []) + [m[1], m[2], rv[0], m[3], rv[1], m[4], rv[2], m[5], rv[3]])
    Q = V_T + 16
    if pA == 1: p(postA)
    if pre >= 4: p(FA_())
    p(s1_red(0))
    if pA == 2: p(postA)
    if pre >= 3: p(FA_())
    p(s1_red(1))
    if pA == 3: p(postA)
    if pre >= 2: p(FA_())
    p(f's_cmp_eq_u32 s{S_STEP}, {NSEG-1}\ns_waitcnt lgkmcnt(4)\ns_barrier')
    if w == 3:
        for wv in range(4): p(f'ds_read_b128 {vr(Q+4*wv,4)}, v{V_L1R} offset:{wv*1024}')
    if pre >= 1: p(FA_())
    p(f's_waitcnt lgkmcnt({4 if w == 3 else 0})\ns_barrier')
    stamp(1)
    GV = V_T + 44; GX = V_T
    lv = [ld(4, GV, V_ALV, S_CUR, 0), ld(4, GV+4, V_ALV, S_CUR, 1024) + '@v']
    ls = [ld(4, GX, V_ALD, S_CUR, 0) + '@x0', ld(4, GX+4, V_ALD, S_CUR, 1024) + '@x1', ld(2, GX+8, V_ALM, S_CUR, 0) + '@m']
    strip = lambda l: [x.split('@')[0] for x in l]
    zw = zero(V_ACC1, 24)
    ool = []
    def vt_persist():
        out = []
        for r in range(4):
            ad = V_L1R if r < 2 else V_L1R2
            for wv in range(4): out.append(f'ds_read_b32 v{Q+4*wv+r}, v{ad} offset:{wv*1024 + r*128}')
        fin_ = ['s_waitcnt lgkmcnt(0)']
        for wv in range(1, 4):
            for k in (0, 2): fin_.append(f'v_pk_add_f32 {vr(Q+k,2)}, {vr(Q+k,2)}, {vr(Q+4*wv+k,2)}')
        fin_ += [f'v_cvt_pk_bf16_f32 v{V_KEEP}, v{Q}, v{Q+1}', f'v_cvt_pk_bf16_f32 v{V_KEEP+1}, v{Q+2}, v{Q+3}']
        return out, fin_
    if w == 0:
        Q0 = V_T
        for wv in range(4):
            p(f'ds_read_b128 {vr(Q0+8*wv,4)}, v{V_L1R} offset:{wv*1024}\nds_read_b128 {vr(Q0+8*wv+4,4)}, v{V_L1R2} offset:{wv*1024}')
        if sA: p(FA_())
        p('s_waitcnt lgkmcnt(4)')
        for k in range(0, 8, 2): p(f'v_pk_add_f32 {vr(Q0+k,2)}, {vr(Q0+k,2)}, {vr(Q0+8+k,2)}')
        p('s_waitcnt lgkmcnt(2)')
        for k in range(0, 8, 2): p(f'v_pk_add_f32 {vr(Q0+k,2)}, {vr(Q0+k,2)}, {vr(Q0+16+k,2)}')
        p('s_waitcnt lgkmcnt(1)')
        for k in range(0, 4, 2): p(f'v_pk_add_f32 {vr(Q0+k,2)}, {vr(Q0+k,2)}, {vr(Q0+24+k,2)}')
        for k in range(2): p(f'v_cvt_pk_bf16_f32 v{V_KEEP+k}, v{Q0+2*k}, v{Q0+2*k+1}')
        p('s_waitcnt lgkmcnt(0)')
        for k in range(4, 8, 2): p(f'v_pk_add_f32 {vr(Q0+k,2)}, {vr(Q0+k,2)}, {vr(Q0+24+k,2)}')
        for k in range(2, 4): p(f'v_cvt_pk_bf16_f32 v{V_KEEP+k}, v{Q0+2*k}, v{Q0+2*k+1}')
        p(f's_cbranch_scc1 R_last{sfx}')
        ool += [f'R_last{sfx}:', keep, f's_branch {fin_lbl}']
        S = V_T + 32; SP = V_T + 52
        mm = [f'v_mfma_f32_16x16x32_bf16 {vr(S+4,4)}, {vr(V_KXD,4)}, {vr(V_KEEP,4)}, 0',
              f'v_mfma_f32_16x16x32_bf16 {vr(S+8,4)}, {vr(V_KXD+4,4)}, {vr(V_KEEP,4)}, 0',
              f'v_mfma_f32_16x16x32_bf16 {vr(S,4)}, {vr(V_KEEP,4)}, {vr(V_KEEP,4)}, 0']
        pub = lines(f"""
        v_cvt_pk_bf16_f32 v{SP}, v{S+4}, v{S+5}
        v_cvt_pk_bf16_f32 v{SP+1}, v{S+6}, v{S+7}
        v_cvt_pk_bf16_f32 v{SP+2}, v{S+8}, v{S+9}
        v_cvt_pk_bf16_f32 v{SP+3}, v{S+10}, v{S+11}
        {st(4, SP, V_P0, S_CUR, 0, pl)}
        v_cvt_pk_bf16_f32 v{c0}, v{S}, v{S+1}
        v_cvt_pk_bf16_f32 v{c1}, v{S+2}, v{S+3}
        {st(2, c0, V_P1, S_CUR, 0, pl)}
        """)
        take = taker(zw)
        if sA and o.get('ev0', 1):
            p([f'v_cmp_gt_i32 vcc, s{S_TAG}, v{V_FAV}', mm[0], f's_cbranch_vccnz R_nv{sfx}', lv[0], mm[1], lv[1], mm[2]] + pub)
            p.unknown()
            stamp(2)
            take(o.get('dA0', 16))
            p(f'R_nvj{sfx}:')
            sub = Prog(); q2 = VQ(sub)
            sub([f'R_nv{sfx}:', FA_(), mm[1], mm[2]] + pub + zero(V_ACC1, 24)[:min(12, o.get('dA0', 16))])
            if tr: sub(f's_memtime s[{S_ST+4}:{S_ST+5}]')
            sub([f's_min_u32 s{S_SPIN}, s{S_BUD}, 2000', f'R_fa{sfx}:'])
            for k in range(4): sub([f'v_cmp_gt_i32 vcc, s{S_TAG}, v{V_FAV}', f's_cbranch_vccz R_fa{sfx}_ok', FA_()] + pacer(f'R_fa{sfx}', V_FAV, S_TAG))
            sub([f's_sub_u32 s{S_SPIN}, s{S_SPIN}, 1', f's_cbranch_scc0 R_fa{sfx}', f'R_fa{sfx}_ok:'] + strip(lv) + delay(o.get('dS0', 24)) + [f's_branch R_nvj{sfx}'])
            ool += sub.L
        else:
            p(mm + pub)
            stamp(2)
            if sA: spin(f'R_fa{sfx}', V_FAV, FA_, S_TAG)
            p(lv); take(o.get('dA0', 16))
        p(ls); p(zw)
    else:
        if w == 3:
            if sA and o.get('pre3', 1): p(FA_())
            for wv in range(1, 4):
                p(f's_waitcnt lgkmcnt({3-wv})')
                for k in (0, 2): p(f'v_pk_add_f32 {vr(Q+k,2)}, {vr(Q+k,2)}, {vr(Q+4*wv+k,2)}')
            p(f'v_cvt_pk_bf16_f32 v{Q+4}, v{Q}, v{Q+1}\nv_cvt_pk_bf16_f32 v{Q+5}, v{Q+2}, v{Q+3}')
            p(st(2, Q+4, V_P0, S_CUR, 0, pl))
        if w == 2:
            rd, fin_ = vt_persist()
            p(f's_cbranch_scc1 R_last{sfx}')
            ool += [f'R_last{sfx}:'] + rd + fin_ + [keep, f's_branch {fin_lbl}']
        else: p(f's_cbranch_scc1 {fin_lbl}')
        if sA: spin(f'R_fa{sfx}', V_FAV, FA_, S_TAG)
        work = list(zw)
        if w == 2: work = rd + work
        take = taker(work)
        take(g('dV', 0))
        stamp(2)
        p(lv)
        take(g('dS', 36))
        p(ls); p(work)
        if w == 1: p([st(4, V_SENT, V_P0, S_RST, 0, pl), st(4, V_SENT, V_P1, S_RST, 0, pl)])
        if w == 2: p(fin_)
        if w == 3 and o.get('kvwait'):
            p(f's_and_b32 s{T}, s{S_KVF}, 0xff\ns_cmp_ge_u32 s{T}, 8\ns_cbranch_scc0 R_kvc{sfx}\nR_kvk{sfx}:')
            ool += lines(f"""
            R_kvc{sfx}:
            s_cmp_eq_u32 s{S_BUD}, 0
            s_cbranch_scc1 R_kvk{sfx}
            s_sleep 4
            s_buffer_load_dword s{S_KVF}, {sr(S_WS,4)}, s{S_KVO} glc
            {budget()}
            s_waitcnt lgkmcnt(0)
            s_and_b32 s{T}, s{S_KVF}, 0xff
            s_cmp_ge_u32 s{T}, 8
            s_cbranch_scc0 R_kvc{sfx}
            s_branch R_kvk{sfx}
            """)
    SX, SM = V_T+12, V_T+52
    mx, mt = V_T+10, V_T+11
    vwm = [f'v_smfmac_f32_16x16x64_bf16 {vr(V_VWM+4*tq,4)}, {vr(GV+4*ks,4)}, {ar(WO(tq,ks),8)}, v{V_IDX1}' for tq in range(4) for ks in range(2)]
    vwm_cvt = []
    for tq in range(4):
        D = V_VWM+4*tq
        vwm_cvt.append([f'v_pk_add_f32 {vr(D,2)}, {vr(D,2)}, {vr(D+2,2)}', f'v_cvt_pk_bf16_f32 v{V_BW+8*tq+2}, v{D}, v{D+1}', f'v_cvt_pk_bf16_f32 v{V_BW+8*tq+6}, v{D}, v{D+1}'])
    p(f"""
    @wait v
    R_aw0{sfx}:
    v_max3_u32 v{c0}, v{GV}, v{GV+1}, v{GV+2}
    v_max3_u32 v{c1}, v{GV+3}, v{GV+4}, v{GV+5}
    v_max3_u32 v{c0}, v{c0}, v{GV+6}, v{GV+7}
    v_max_u32 v{c0}, v{c0}, v{c1}
    v_cmp_eq_u32 vcc, -1, v{c0}
    s_cbranch_vccnz R_ar0{sfx}
    R_ag0{sfx}:
    """)
    p(vwm[:4] + weave(vwm[4:], vwm_cvt[0] + vwm_cvt[1][:1]))
    late = vwm_cvt[1][1:] + vwm_cvt[2] + vwm_cvt[3]
    def asum(fill, wt):
        return [wt[0], f'v_mfma_f32_16x16x32_bf16 {vr(SX,4)}, {vr(V_SELA,4)}, {vr(GX,4)}, 0',
        wt[1], f'v_mfma_f32_16x16x32_bf16 {vr(SX,4)}, {vr(V_SELB,4)}, {vr(GX+4,4)}, {vr(SX,4)}',
        wt[2], f'v_mfma_f32_16x16x16_bf16 {vr(SM,4)}, {vr(V_SELM,2)}, {vr(GX+8,2)}, 0'] + fill[:5] + [
        f'v_max3_f32 v{mx}, v{SX}, v{SX+1}, v{SX+2}'] + fill[5:] + [
        f'v_cmp_u_f32 vcc, v{SX}, v{SM}',
        f'v_max3_f32 v{mx}, v{mx}, v{SX+3}, v{SM}']
    p(asum(late[:7], ['@wait x0', '@wait x1', '@wait m']))
    p(f's_cbranch_vccnz R_ar1{sfx}\nR_ag1{sfx}:')
    stamp(3)
    E = V_T + 32
    src = [SX, SX+1, SM, SX+2, SX+3]
    prem = [f'v_mul_f32 v{E+k}, s{S_SCL}, v{src[k]}' for k in range(5)]
    sB = o.get('syncB', 1); pB = o.get('posB', 2)
    LR = V_T + 38
    postB = lambda k: (f's_waitcnt lgkmcnt(0)\nv_lshl_add_u32 v{LR}, v{LR}, 30, v{V_WU}\n' + st(1, V_TB, LR, '0', 0, 'sc1')) if (sB and pB == k) else ''
    p(f"""
    {f'ds_sub_rtn_u32 v{LR}, v{V_LC}, v{V_SENT}' if sB else ''}
    {prem[4]}
    v_max_f32_dpp v{mt}, v{mx}, v{mx} quad_perm:[2,3,0,1] row_mask:0xf bank_mask:0xf
    v_max_f32_dpp v{mx}, v{mx}, v{mx} quad_perm:[2,3,0,1] row_mask:0xf bank_mask:0xf
    {prem[0]}
    {prem[1]}
    v_permlane16_swap_b32 v{mx}, v{mt}
    v_max_f32 v{c0}, v{mx}, v{mt}
    v_max_f32 v{c1}, v{mx}, v{mt}
    {prem[2]}
    {prem[3]}
    v_permlane32_swap_b32 v{c0}, v{c1}
    v_max_f32 v{mx}, v{c0}, v{c1}
    {postB(1)}
    """)
    fm = [f'v_fma_f32 v{E+k}, -v{mx}, s{S_SCL}, v{E+k}' for k in range(5)]
    p(f"""
    {fm[0]}
    {fm[1]}
    v_exp_f32 v{E}, v{E}
    {fm[2]}
    v_exp_f32 v{E+1}, v{E+1}
    {fm[3]}
    v_exp_f32 v{E+2}, v{E+2}
    {fm[4]}
    v_exp_f32 v{E+3}, v{E+3}
    v_cvt_pk_bf16_f32 v{V_P}, v{E}, v{E+1}
    v_exp_f32 v{E+4}, v{E+4}
    v_cvt_pk_bf16_f32 v{V_P+1}, v{E+2}, 0
    v_cvt_pk_bf16_f32 v{V_P+3}, v{E+2}, 0
    v_cvt_pk_bf16_f32 v{V_P+2}, v{E+3}, v{E+4}
    {late[7]}
    {f's_add_u32 s{S_CU1}, s{S_CUR}, 0x40000' if o.get('nB2') else ''}
    {postB(2)}
    """)
    fin = [f'v_smfmac_f32_16x16x64_bf16 {vr(V_FIN,4)}, {vr(V_P,4)}, {vr(V_ONES,8)}, v{V_IDX2}'] + \
          [f'v_smfmac_f32_16x16x64_bf16 {vr(V_FIN+4+4*tq,4)}, {vr(V_P,4)}, {vr(V_BW+8*tq,8)}, v{V_IDX2}' for tq in range(4)]
    O = V_T + 40; rc = V_T + 48
    D = V_FIN
    p(weave(fin[:2], vx2[:vxf]) + [fin[2]])
    p(f"""
    v_pk_add_f32 {vr(rc,2)}, {vr(D,2)}, {vr(D+2,2)}
    {fin[3]}
    v_rcp_f32 v{rc}, v{rc}
    {fin[4]}
    v_rcp_f32 v{rc+1}, v{rc+1}
    {postB(3)}
    """)
    for tq in range(4):
        D = V_FIN + 4 + 4*tq
        p(f'v_pk_add_f32 {vr(D,2)}, {vr(D,2)}, {vr(D+2,2)}\nv_mul_f32 v{O+tq}, v{D}, v{rc}')
        if tq < 3: p(f'v_mul_f32 v{O+4+tq}, v{D+1}, v{rc+1}')
    p(f"""
    ds_write_b128 v{V_L2W0}, {vr(O,4)}
    v_mul_f32 v{O+7}, v{D+1}, v{rc+1}
    ds_write_b128 v{V_L2W1}, {vr(O+4,4)} offset:256
    """)
    sd = o.get('side', 'gap')
    nb, nb2 = o.get('nB', 16), o.get('nB2', 0)
    p(vx2[vxf:])
    if kx == 'gap': p(kxl)
    if sd == 'gap': p(side)
    half = not nb2 and not sB
    if half: p(setexec(S_M_32))
    p('s_waitcnt lgkmcnt(0)\ns_barrier')
    stamp(4)
    Z = V_T + 32
    if not sB or w < 2:
        for wv in range(4): p(f'ds_read_b128 {vr(Z+4*wv,4)}, v{V_L2R} offset:{wv*2048}')
        if half: p(setexec(None))
        for wv in range(1, 4):
            p(f's_waitcnt lgkmcnt({3-wv})')
            for k in (0, 2): p(f'v_pk_add_f32 {vr(Z+k,2)}, {vr(Z+k,2)}, {vr(Z+4*wv+k,2)}')
        p(f'v_cvt_pk_bf16_f32 v{Z+4}, v{Z}, v{Z+1}\nv_cvt_pk_bf16_f32 v{Z+5}, v{Z+2}, v{Z+3}')
        p(st(2, Z+4, V_BST, S_CUR, 0, 'sc1'))
    elif sB: nb = min(32 - 4*nC, nb + o.get('nBx', 9))
    stamp(5)
    if sd == 'B': p(side)
    if kx == 'B': p(kxl)
    GB = [V_T + 48, V_T + 52]; BS = V_T + 40
    at = {}
    def put(i, x): at.setdefault(i, []).extend(x if isinstance(x, list) else [x])
    if sB:
        FL = f's_buffer_load_dwordx8 {sr(S_FB8,8)}, {sr(S_WS,4)}, s{S_FBO2} glc'
        two = o.get('two', 0)
        if two:
            n_ = 4 // two
            FL = '\n'.join(f's_buffer_load_dword{"x%d" % n_ if n_ > 1 else ""} {sr(S_FB8 + n_*k, n_)}, {sr(S_WS,4)}, s{S_FBO2} offset:{k << 16} glc' for k in range(two))
        if w == 3 or (two and w == 2):
            for i in range(o.get('p0', 0), nb, o.get('pB', 5)): put(i, FL)
            F = S_FB8
            chkB = [f's_and_b64 {sr(T,2)}, {sr(F,2)}, {sr(F+2,2)}', f's_and_b64 {sr(T+2,2)}, {sr(F+4,2)}, {sr(F+6,2)}', f's_and_b64 {sr(T,2)}, {sr(T,2)}, {sr(T+2,2)}',
                    f's_and_b32 s{T}, s{T}, s{T+1}', f's_and_b32 s{T}, s{T}, s{S_TB}', f's_cbranch_scc1 R_fb{sfx}_ok']
            if two: chkB = chkB[:1] + chkB[3:5] + chkB[5:] + ['s_nop 1']
            put(nb, [f's_min_u32 s{S_SPIN}, s{S_BUD}, 2000', f'R_fb{sfx}:'] + chkB*o.get('qB', 2) + [FL, f's_sub_u32 s{S_SPIN}, s{S_SPIN}, 1', f's_cbranch_scc0 R_fb{sfx}', f'R_fb{sfx}_ok:'])
        put(nb, ['s_barrier'] + delay(o.get('dB2', 0)))
    put(nb, ld(4, GB[0], V_BLD, S_CUR, 0) + '@b0')
    if tr: put(nb, f's_mem{"real" if tr == 1 else ""}time s[{S_ST+14}:{S_ST+15}]')
    if nb2: put(nb2, ld(4, GB[1], V_BLD, S_CU1, 0) + '@b1')
    if kx == 'P': put(max(nb, nb2), kxl)
    if sC: put(nb + o.get('pC', 6), postC)
    if vx2: put(4*(8-nvx), '@wait vx')
    fill = ([] if tr else pfk)
    if w == 3 and o.get('kvwait'):
        fill = fill + lines(f"""
        s_add_u32 s{S_KVO}, s{S_STEP}, 4
        s_min_u32 s{S_KVO}, s{S_KVO}, 63
        s_lshr_b32 s{S_KVO}, s{S_KVO}, 2
        s_lshl3_add_u32 s{S_KVO}, s{S_KVO}, s{S_V}
        s_lshl_b32 s{S_KVO}, s{S_KVO}, 8
        s_add_u32 s{S_KVO}, s{S_KVO}, {F_KV_}
        """)
    cv = vwx_cvt(0)
    c = 0
    for k, grp in enumerate(grps[:8-nC]):
        for x in (grp if k < 8-nvx else grp[:-1]):
            if x.startswith('v_mfma'):
                p(at.pop(c, [])); c += 1
                p(x)
                if c >= 18 and cv: p(cv.pop(0))
                if fill and (c > nb or not sB): p(fill.pop(0))
            else: p(x)
    for i in sorted(at): p(at[i])
    p(cv + fill)
    p(f's_mov_b32 s{S_PRV}, s{S_CUR}\ns_mov_b32 s{S_CUR}, s{S_NXT}')
    if tr:
        p('s_waitcnt lgkmcnt(0)')
        for k in range(8): p(f'v_writelane_b32 v255, s{S_ST+2*k}, {k}')
        for k in range(3): p(f'v_writelane_b32 v255, s{S_ST+16+k}, {8+k}')
        p(f'v_writelane_b32 v255, s{S_ST+20}, 11')
        p([f's_lshl_b32 s{T}, s{S_STEP}, 6', 's_mov_b64 exec, 0xffff', st(1, 255, 254, T), 's_mov_b64 exec, -1'] + pfk[:4])
    if w == 3 and o.get('kvwait'):
        p(f's_and_b32 s{T}, s{S_STEP}, 3\ns_cbranch_scc1 R_kvn{sfx}\ns_buffer_load_dword s{S_KVF}, {sr(S_WS,4)}, s{S_KVO} glc\nR_kvn{sfx}:')
    if sC:
        for k in range(o.get('preC', 2)): p(FC_()); p(delay(o.get('gapC', 10)))
    def bsum(s_, fill=[]):
        out = [f'v_mfma_f32_16x16x32_bf16 {vr(BS,4)}, {vr(V_SELA,4)}, {vr(GB[s_],4)}, 0'] + fill
        out += [f'v_add_f32_dpp v{BS+k}, v{BS+k}, v{BS+k} row_ror:8 row_mask:0xf bank_mask:0xf' for k in range(4)]
        out += [f'v_cmp_u_f32 vcc, v{BS}, v{BS}', f'v_cvt_pk_bf16_f32 v{BS+4}, v{BS}, v{BS+1}', f'v_cvt_pk_bf16_f32 v{BS+5}, v{BS+2}, v{BS+3}']
        return out
    p('@wait b0')
    p(bsum(0, ([FC_()] if sC else []) + pfv))
    p(f's_cbranch_vccnz R_br{sfx}')
    w1 = None
    if nb2:
        p.q.append('x'); w1 = p.wait('b1'); p.q.pop()
    p(f'R_bg{sfx}:\n' + st(2, BS+4, V_CST, S_CUR, 0, pl))
    stamp(6)
    p(f's_branch R_step{sfx}')
    p0(ool)
    p0(f'R_ar0{sfx}:\ns_cmp_eq_u32 s{S_BUD}, 0\ns_cbranch_scc1 R_ag0{sfx}')
    p0(strip(lv + ls)); count(1); count(3); p0(budget())
    p0(f's_waitcnt vmcnt(0)\ns_branch R_aw0{sfx}\nR_ar1{sfx}:\ns_cmp_eq_u32 s{S_BUD}, 0\ns_cbranch_scc1 R_ag1{sfx}')
    p0(strip(ls)); count(1); p0(budget())
    p0(asum([], ['s_waitcnt vmcnt(2)', 's_waitcnt vmcnt(1)', 's_waitcnt vmcnt(0)']))
    p0(f's_cbranch_vccz R_ag1{sfx}\ns_branch R_ar1{sfx}\nR_br{sfx}:')
    if nb2:
        p0([ld(4, GB[0], V_BLD, S_PRV, 0), w1]); count(2)
        p0(bsum(1)); p0(f's_cbranch_vccz R_bg{sfx}\ns_branch R_br3{sfx}')
    p0(f'R_br2{sfx}:\ns_cmp_eq_u32 s{S_BUD}, 0\ns_cbranch_scc1 R_bg{sfx}')
    p0(ld(4, GB[0], V_BLD, S_PRV, 0))
    p0(f'R_br3{sfx}:'); count(2); p0(budget())
    p0('s_waitcnt vmcnt(0)'); p0(bsum(0))
    p0(f's_cbranch_vccz R_bg{sfx}\ns_branch R_br2{sfx}')

def r_tail(p, o):
    T = S_T
    S0 = o.get('S0', 52); NS = 64 - S0; NI = NS // 2
    assert S0 >= 48 and NS % 4 == 0
    a, b, c_ = 2, 3, 4
    VL, VF, VO, VZ, FL = 5, 6, 7, 8, 9
    SL = 10
    ACC = 16
    PK = 32
    FR = [40, 104, 168]
    SFO, SPO, SOO, SMK = 28, 29, 30, 31
    B = lambda dst, terms, base=None: p(bits(dst, terms, base, c_))
    def tst():
        if o.get('ttrace'): p(f's_memrealtime s[60:61]\ns_waitcnt lgkmcnt(0)\ns_mov_b32 m0, s62\nv_writelane_b32 v250, s60, m0\ns_add_u32 s62, s62, 1')
    if o.get('ttrace'): p('s_mov_b32 s62, 0\nv_mov_b32 v250, 0')
    tst()
    p(ssum(SFO, [(S_V, 8)], F_OV_ + 12))
    p(f'v_mov_b32 v{VZ}, 0'); p(ld(1, FL, VZ, SFO))
    p(f's_load_dwordx2 s[{S_SRD}:{S_SRD+1}], s[0:1], 80')
    p(ssum(T, [(S_WAVE, 14)])); B(VL, [(0, 6, 4)]); p(f'v_add_u32 v{a}, s{T}, v{VL}')
    for q in range(16): p(f'ds_write_b128 v{a}, {ar(A_WO + 4*q,4)} offset:{q*1024}')
    B(VF, [(4, 2, 9), (0, 4, 4)])
    p(f's_lshr_b32 s{T+2}, s{S_WAVE}, 1\ns_and_b32 s{T+3}, s{S_WAVE}, 1')
    p(ssum(SOO, [(T+2, 18), (S_V, 15), (T+3, 8)], WS_O_ + (S0 << 18), T))
    p(ssum(SPO, [(S_WAVE, 18), (S_C, 14), (S_V, 11)], WS_PART, T))
    p(f's_lshl_b32 s{SMK}, {1 << (S0-48)}, s{T+2}')
    def need(j):
        return f"""
        s_lshl_b32 s{T+1}, s{SMK}, {2*j}
        RT_n{j}:
        v_readfirstlane_b32 s{T}, v{FL}
        s_and_b32 s{T}, s{T}, s{T+1}
        s_cbranch_scc1 RT_k{j}
        s_cmp_eq_u32 s{S_BUD}, 0
        s_cbranch_scc1 RT_k{j}
        {ld(1, FL, VZ, SFO)}
        {budget()}
        s_waitcnt vmcnt(0)
        s_branch RT_n{j}
        RT_k{j}:
        """
    def load(j, k):
        out = [f's_add_u32 s{T+1}, s{SOO}, {(j << 19) + (k >> 1)*4096}'] if k % 2 == 0 else []
        return out + [ld(4, FR[j % 3] + 4*k, VF, T+1, (k & 1)*2048)]
    p('s_waitcnt lgkmcnt(0)\ns_barrier')
    rd = [f'ds_read_b128 {ar(4*q,4)}, v{VL} offset:{q*1024}' for q in range(64)]
    p(rd[:16]); p('s_waitcnt vmcnt(0)')
    p(need(0))
    for k in range(16): p(load(0, k)); p(rd[16+3*k:19+3*k])
    B(a, [(0, 1, 4)]); p(f'v_mov_b32 v{b}, 0x3f80\nv_lshlrev_b32 v{a}, v{a}, v{b}')
    B(b, [(1, 3, 0)]); B(VO, [(4, 2, 1)]); p(f'v_sub_u32 v{b}, v{b}, v{VO}')
    for k in range(2): p(f'v_cmp_eq_u32 vcc, {k}, v{b}\nv_cndmask_b32 v{SL+2+k}, 0, v{a}, vcc')
    for k in (0, 1, 4, 5): p(f'v_mov_b32 v{SL+k}, 0')
    B(VO, [(0, 4, 12), (4, 2, 5)])
    p('s_waitcnt lgkmcnt(0)')
    tst()
    q_ = [('l', 0, k) for k in range(16)]
    ahead = {0: [1, 2]}
    for j in range(1, NI-1): ahead[j] = [j+2] if j+2 < NI-1 else ([NI-1] if j == NI-2 else [])
    for j in range(NI):
        nx = ahead.get(j, [])
        for n_ in nx: p(need(n_))
        todo = [(n_, k) for n_ in nx for k in range(16)]
        for k in range(16):
            i = q_.index(('l', j, k)); del q_[:i+1]
            p(f's_waitcnt vmcnt({len(q_)})')
            for tq in range(4):
                d = ACC + 4*tq
                p(f'v_mfma_f32_16x16x32_bf16 {vr(d,4)}, {ar((k >> 2)*64 + (tq*4 + (k & 3))*4,4)}, {vr(FR[j % 3] + 4*k,4)}, {"0" if k == 0 else vr(d,4)}')
                if todo and (tq == 0 or (tq == 2 and (len(nx) == 2 or j == NI-2))):
                    x = todo.pop(0); p(load(*x)); q_.append(('l',) + x)
        p(f's_add_u32 s{T+1}, s{SPO}, {j << 20}')
        for h in range(2):
            for r in range(4): p(f'v_cvt_pk_bf16_f32 v{PK+2*r+h}, v{ACC+8*h+r}, v{ACC+8*h+4+r}')
        for h in range(2): p(st(4, PK+4*h, VL, T+1, 1024*h, 'sc1')); q_.append(('s', j, h))
        tst()
    p(ssum(T+2, [(S_C, 8)], F_P_)); p(ssum(T+3, [(S_V, 2), (T+2, 0)], 0, T))
    B(a, [(0, 3, 2)])
    nw = 2*NS // 8
    p(f"""
    s_mov_b32 s{S_SRD+2}, 0x800000
    s_mov_b32 s{S_SRD+3}, 0x20000
    s_mul_i32 s{T+4}, s{S_V}, {nw}
    s_add_u32 s{T+4}, s{T+4}, s{S_WAVE}
    v_mov_b32 v{b}, 1
    s_waitcnt vmcnt(0)
    s_barrier
    s_cmp_eq_u32 s{S_WAVE}, 3
    s_cbranch_scc0 RT_q
    s_mov_b64 exec, 1
    {st(1, b, a, T+3, 0, 'sc1')}
    s_mov_b64 exec, -1
    RT_q:
    s_cmp_ge_u32 s{S_WAVE}, {nw}
    s_cbranch_scc1 RT_end
    """)
    p(ssum(SPO, [(T+4, 18), (S_C, 14)], WS_PART, T))
    p(ssum(SOO, [(T+4, 16), (S_C, 7)], S0 << 17, T))
    p(f"""
    RT_p:
    {ld(1, b, a, T+2)}
    {budget()}
    s_waitcnt vmcnt(0)
    v_cmp_ne_u32 vcc, 1, v{b}
    s_cbranch_vccz RT_pk
    s_cmp_lg_u32 s{S_BUD}, 0
    s_cbranch_scc1 RT_p
    RT_pk:
    """)
    tst()
    for k in range(16):
        if k % 4 == 0: p(f's_add_u32 s{T+1}, s{SPO}, {k*1024}')
        p(ld(4, FR[0] + 4*k, VL, T+1, (k & 3)*1024))
    for k in range(16):
        p(f's_waitcnt vmcnt({15-k})')
        for t in range(2):
            d = ACC + 8*(k & 1) + 4*t
            p(f'v_mfma_f32_16x16x32_bf16 {vr(d,4)}, {vr(SL + 2 - 2*t,4)}, {vr(FR[0] + 4*k,4)}, {"0" if k < 2 else vr(d,4)}')
    for k in range(8): p(f'v_cvt_pk_bf16_f32 v{PK+k}, v{ACC+2*k}, v{ACC+2*k+1}')
    for h in range(2): p(st(4, PK+4*h, VO, SOO, 16*h, '', S_SRD))
    tst()
    p('RT_end:')
    if o.get('ttrace'):
        p(ssum(T, [(2, 10), (S_WAVE, 8)], 0xFA00000, T+1)); B(a, [(0, 6, 2)]); p(st(1, 250, a, T))
```

```python
import sys, struct, math
from asmlib import *
from genr import *
import geng
NAME = 'concat_heads__memory_aug_recurrent_mem_tr__linear_attn_block__prompt'
KN = NAME + '_kernel'
def f2u(x): return struct.unpack('<I', struct.pack('<f', x))[0]
S_REG = 99
S_MODE, S_VERI, S_POLV = 3, 4, 5
LDS_MISC = 163840 - 64
RDEF = dict(nB=14, nBx=9, nB2=0, gC=10, kvwait=1, pA=2, dV=6, dS=56, dA0=36, dS0=56, syncC=0, dC=60, kx='gap', posB=2, pB=9, qB=4, wu='v', nvx=2, vxf=2, two=2, p0=0, nC=0, pace=3, preA=1)
def gen(o=None):
    o = dict(RDEF, **(o or {})); o['scl'] = f2u(math.log2(math.e)/math.sqrt(128))
    lists = geng.schedule(o); o['ntask'] = max(len(l) for l in lists) + 1
    p = Prog()
    T = 40; a, b, c = 40, 41, 42
    p(f'''
    s_cmp_ge_u32 s2, 256
    s_cbranch_scc1 L_exit
    s_getpc_b64 s[6:7]
    L_pc0:
    s_load_dwordx2 s[{S_WS}:{S_WS+1}], s[0:1], 96
    s_load_dwordx2 s[{S_DBG}:{S_DBG+1}], s[0:1], 88
    s_getreg_b32 s{S_XCD}, hwreg(HW_REG_XCC_ID, 0, 3)
    s_lshr_b32 s{S_IDX}, s2, 3
    v_lshrrev_b32 v1, 6, v0
    v_readfirstlane_b32 s{S_WAVE}, v1
    v_and_b32 v1, 63, v0
    s_mov_b32 s{S_BUD}, {o.get('budget', 400000)}
    s_mov_b32 s{S_MODE}, 0
    s_mov_b32 s{S_VERI}, 0
    s_mov_b32 s{S_POLV}, 0
    s_mov_b32 s{S_REG}, 0
    ''')
    if o.get('total') or o.get('gtrace'): p('s_memrealtime s[90:91]')
    if o.get('warm', 1):
        p(ssum(T, [(S_IDX, 9), (S_WAVE, 7)], 0, T+1)); p(bits(a, [(0, 4, 14)], T, c))
        p(f's_mov_b32 s{T}, L_codeend-L_pc0-4\nv_min_u32 v{a}, s{T}, v{a}\ns_mov_b64 exec, 0xffff\nglobal_load_dword v56, v{a}, s[6:7]\ns_mov_b64 exec, -1')
    if o.get('scramble'): p(f's_and_b32 s{S_IDX}, s2, 31')
    for k in range(4): p(f'v_mov_b32 v{44+k}, -1\nv_mov_b32 v{48+k}, 0')
    p(f'''
    v_mov_b32 v{c}, {LDS_MISC}
    ds_write_b64 v{c}, v[48:49]
    s_waitcnt lgkmcnt(0)
    s_add_u32 s{S_WS}, s{S_WS}, 0x1fffff
    s_addc_u32 s{S_WS+1}, s{S_WS+1}, 0
    s_and_b32 s{S_WS}, s{S_WS}, 0xffe00000
    s_mov_b32 s{S_WS+2}, {WS_SIZE}
    s_mov_b32 s{S_WS+3}, 0x20000
    s_barrier
    ''')
    p(ssum(T, [(S_WAVE, 19), (2, 10)], 0, T+1)); p(bits(a, [(0, 6, 4)], None, c))
    p(st(4, 44, a, T, 0, 'sc1'))
    p(f's_xor_b32 s{T+1}, s{T}, 0x42000'); p(st(4, 44, a, T+1, 0, 'sc1'))
    p(f's_add_u32 s{T}, s{T}, {WS_M2 + M2_A}'); p(st(4, 44, a, T, 0, 'sc1'))
    p(ssum(T, [(S_WAVE, 19), (2, 8)], WS_M2, T+1)); p(bits(b, [(0, 4, 4)], T, c))
    p(ssum(T, [(2, 7)], WS_M2 + M2_F)); p(bits(53, [(0, 3, 4)], T, c))
    p(f'''
    v_cmp_gt_u32 vcc, 16, v1
    v_cndmask_b32 v{b}, v53, v{b}, vcc
    s_bfm_b64 exec, 24, 0
    {st(4, 44, b, '0', 0, 'sc1')}
    s_mov_b64 exec, 15
    ''')
    p(ssum(T, [(2, 8), (S_WAVE, 6)], WS_FLAG, T+1)); p(st(4, 48, a, T, 0, 'sc1'))
    p(f'''
    s_mov_b64 exec, -1
    L_role:
    s_cmp_ge_u32 s{S_XCD}, 4
    s_cbranch_scc1 L_G
    ''')
    def register(p, SB, VB):
        p(f'''
        s_mov_b32 s{S_REG}, 1
        s_lshl_b32 s{SB}, 1, s{S_IDX}
        s_lshl_b32 s{SB+2}, s{S_XCD}, 5
        v_mov_b32 v{VB+2}, s{SB}
        v_mov_b32 v{VB+3}, s{SB+1}
        v_mov_b32 v{VB}, s{SB+2}
        s_mov_b64 exec, 1
        global_atomic_add_x2 v[254:255], v{VB}, v[{VB+2}:{VB+3}], s[{S_DBG}:{S_DBG+1}] sc0 sc1
        s_mov_b64 exec, -1
        ''')
    def greg(p):
        p(f's_add_u32 s48, s{S_WAVE}, s{S_VERI}\ns_cmp_eq_u32 s48, 0\ns_cbranch_scc0 G_reg\ns_mov_b32 s49, 0x100')
        register(p, 48, 30); p('G_reg:')
    NR = 1
    def race(p, nout):
        SB = 60; VB = V_T + 20
        p(f's_cmp_lg_u32 s{S_VERI}, 0\ns_cbranch_scc1 R_race_end')
        p(ssum(SB, [(S_WAVE, 19), (2, 10)], 0, SB+1))
        p(f'''
        s_bfe_u32 s{SB+4}, s{SB}, 0x1000d
        s_xor_b32 s{SB+1}, s{SB}, 0x42000
        s_mov_b64 s[{SB+2}:{SB+3}], 0
        s_mov_b32 s{SB+5}, 2000
        s_waitcnt vmcnt({nout}) lgkmcnt(0)
        s_buffer_load_dword s{SB+2}, {sr(S_WS,4)}, s{SB} glc
        s_buffer_load_dword s{SB+3}, {sr(S_WS,4)}, s{SB+1} glc
        R_race0:
        s_mov_b64 s[{SB+6}:{SB+7}], s[{SB+2}:{SB+3}]
        s_sub_u32 s{SB+5}, s{SB+5}, 1
        s_cselect_b64 s[{SB+6}:{SB+7}], -1, s[{SB+6}:{SB+7}]
        s_cmp_eq_u64 s[{SB+6}:{SB+7}], 0
        s_cbranch_scc1 R_race0
        s_sub_u32 s{SB+6}, s{SB+6}, s{SB+7}
        s_sub_u32 s{SB+7}, 0, s{SB+6}
        s_cmp_eq_u32 s{SB+4}, 0
        s_cselect_b32 s{SB+6}, s{SB+6}, s{SB+7}
        s_add_u32 s{SB+6}, s{SB+6}, 0x101
        v_mov_b32 v{VB}, {LDS_MISC}
        v_mov_b32 v{VB+1}, s{SB+6}
        s_mov_b64 exec, 1
        ds_add_rtn_u32 v{VB+1}, v{VB}, v{VB+1}
        s_waitcnt lgkmcnt(0)
        v_readfirstlane_b32 s{SB+7}, v{VB+1}
        s_mov_b64 exec, -1
        s_add_u32 s{SB+6}, s{SB+6}, s{SB+7}
        s_cmp_lt_u32 s{SB+6}, 0x400
        s_cbranch_scc1 R_race_end
        s_and_b32 s{SB+6}, s{SB+6}, 0xff
        s_lshl_b32 s{SB+1}, s{SB+6}, 18
        s_add_u32 s{SB+1}, s{SB+1}, 0x100
        ''')
        register(p, SB, VB)
        p('R_race_end:')
    o['hook_race'] = race
    o['hook_reg'] = greg
    def verify(p, lbl, SB=48, VB=30, also=''):
        p(f'''
        s_cmp_lg_u32 s{S_VERI}, 0
        s_cbranch_scc1 {lbl}_ok
        v_and_b32 v{VB}, 7, v1
        v_lshlrev_b32 v{VB}, 5, v{VB}
        {lbl}:
        global_load_dwordx2 v[{VB+2}:{VB+3}], v{VB}, s[{S_DBG}:{S_DBG+1}] sc1
        {budget()}
        s_mov_b32 s{SB}, 0
        s_waitcnt vmcnt(0)
        ''')
        for k in range(8): p(f'v_readlane_b32 s{SB+1}, v{VB+3}, {k}\ns_lshr_b32 s{SB+1}, s{SB+1}, 8\ns_add_u32 s{SB}, s{SB}, s{SB+1}')
        p(f'''
        s_and_b32 s{SB+1}, s{SB}, 0x3ff
        s_cmp_ge_u32 s{SB+1}, 256
        s_cbranch_scc1 {lbl}_all
        s_cmp_eq_u32 s{S_BUD}, 0
        s_cbranch_scc1 {lbl}_all
        s_sleep 2
        s_branch {lbl}
        {lbl}_all:
        s_mov_b32 s{S_VERI}, 1
        s_lshr_b32 s{SB}, s{SB}, 10
        s_cmp_gt_u32 s{SB}, {512*NR}
        s_cselect_b32 s{S_POLV}, 1, 0
        v_bfe_u32 v{VB+1}, v{VB+3}, 8, 10
        v_cmp_ne_u32 s[{SB+2}:{SB+3}], 32, v{VB+1}
        v_and_b32 v{VB+1}, 0xff, v{VB+3}
        v_cmp_ne_u32 s[{SB+4}:{SB+5}], 0, v{VB+1}
        v_cmp_ne_u32 vcc, -1, v{VB+2}
        s_or_b64 s[{SB+4}:{SB+5}], s[{SB+4}:{SB+5}], s[{SB+2}:{SB+3}]
        s_or_b64 vcc, vcc, s[{SB+4}:{SB+5}]
        {'s_mov_b64 vcc, -1' if o.get('forceslow') else ''}
        s_cbranch_vccz {lbl}_ok
        v_mov_b32 v{VB}, {LDS_MISC + 8}
        s_waitcnt vmcnt(0) lgkmcnt(0)
        s_cmp_eq_u32 s{S_REG}, 1
        s_cbranch_scc0 {lbl}_t
        s_mov_b64 exec, 1
        ds_write_b32 v{VB}, v255
        s_mov_b64 exec, -1
        s_waitcnt lgkmcnt(0)
        {lbl}_t:
        s_barrier
        ds_read_b32 v{VB+1}, v{VB}
        s_waitcnt lgkmcnt(0)
        v_readfirstlane_b32 s{S_IDX}, v{VB+1}
        s_bfe_u32 s{S_IDX}, s{S_IDX}, 0x50008
        s_cmp_eq_u64 s[{SB+2}:{SB+3}], 0
        {'s_cmp_eq_u32 s2, -1' if o.get('forceslow') else ''}
        s_cbranch_scc1 L_role
        s_mov_b32 s{S_MODE}, 1
        s_and_b32 s{S_XCD}, s2, 7
        s_lshr_b32 s{S_IDX}, s2, 3
        {f's_lshr_b32 s{S_XCD}, s2, 5' if o.get('forceslow') == 2 else ''}
        {f's_and_b32 s{S_IDX}, s2, 31' if o.get('forceslow') == 2 else ''}
        s_branch L_role
        {lbl}_ok:
        ''')
    r_setup(p, o); r_weights(p, o)
    if o.get('total'): p('s_memrealtime s[6:7]')
    p(ssum(S_KVO, [(S_V, 8)], F_KV_)); p(f'v_mov_b32 v{V_T+36}, 0\nv_mov_b32 v{V_T+37}, 0')
    verify(p, 'RV', S_T, V_T+20)
    p(f's_mov_b32 s{S_POL}, {o["pol"] if "pol" in o else "s%d" % S_POLV}')
    p(f's_cmp_lg_u32 s{S_MODE}, 0\ns_cbranch_scc1 L_Rslow')
    def rstat():
        if not o.get('total'): return
        S = S_ST
        p(f'''
        s_memtime s[{S}:{S+1}]
        s_memrealtime s[{S+2}:{S+3}]
        s_waitcnt lgkmcnt(0)
        s_mov_b32 s{S+5}, s{S+2}
        s_sub_u32 s{S}, s{S}, s{S+22}
        s_sub_u32 s{S+1}, s{S+2}, s{S+24}
        s_mov_b32 s{S+2}, s{S_BUD}
        s_mov_b32 s{S+3}, s90
        s_mov_b32 s{S+4}, s{S+24}
        s_mov_b32 s{S+6}, s{S_POL}
        s_mov_b32 s{S+7}, s{S_MODE}
        s_mov_b32 s{S+8}, s6
        s_lshl2_add_u32 s36, s2, s{S_WAVE}
        s_lshl_b32 s36, s36, 7
        s_add_u32 s36, s36, {0xF900000}
        v_mov_b32 v2, 0
        ''')
        for k in range(20): p(f'v_mov_b32 v{4+k}, s{S+k}')
        for k in range(5): p(st(4, 4+4*k, 2, 36, 16*k))
    r_loop(p, o, '', '')
    p('L_Rtail:'); rstat()
    r_tail(p, o)
    if o.get('total'):
        p(f's_memrealtime s[60:61]\ns_lshl2_add_u32 s36, s2, s{S_WAVE}\ns_lshl_b32 s36, s36, 7\ns_add_u32 s36, s36, {0xF900000 + 36}\nv_mov_b32 v2, 0\ns_waitcnt lgkmcnt(0)\nv_mov_b32 v4, s60\n' + st(1, 4, 2, 36))
    p('s_endpgm\nL_Rslow:')
    r_loop(p, dict(o, trace=0), 's', 'sc1')
    p('s_branch L_Rtail\nL_exit:\ns_endpgm\nL_G:')
    geng.g_role(p, o, verify)
    body = p.finish(o.get('verbose'))
    hdr = open('cdna_kernels/' + NAME + '.s.ref').read().split('; Override launch')[0] if not o.get('nohdr') else ''
    src = hdr + '; @launch grid=(256,1,1) block=(256,1,1) lds=163840\n'
    src += f'.amdgcn_target "amdgcn-amd-amdhsa--gfx950"\n.text\n.globl {KN}\n.p2align 8\n.type {KN},@function\n{KN}:\n'
    src += body + 's_endpgm\n' + geng.table(lists, o['ntask']) + 'L_codeend:\n'
    src += f'''.section .rodata,"a"
.p2align 6
.amdhsa_kernel {KN}
  .amdhsa_next_free_vgpr 512
  .amdhsa_next_free_sgpr 102
  .amdhsa_accum_offset 256
  .amdhsa_group_segment_fixed_size 0
  .amdhsa_kernarg_size 104
  .amdhsa_user_sgpr_count 2
  .amdhsa_user_sgpr_kernarg_segment_ptr 1
  .amdhsa_system_sgpr_workgroup_id_x 1
  .amdhsa_float_denorm_mode_32 3
.end_amdhsa_kernel
'''
    return src
if __name__ == '__main__':
    src = gen(eval(sys.argv[1]) if len(sys.argv) > 1 else None)
    open('cdna_kernels/' + NAME + '.s', 'w').write(src)
    print(len(src), 'bytes')
```

```python
from asmlib import *
from genr import (S_WS, S_XCD, S_IDX, S_WAVE, S_BUD, S_DBG, V_LANE, ld, st, bits, ssum, setexec,
                  WS_FLAG, WS_KM, WS_VM, WS_KX, WS_VX)
WS_Q    = 0x3000000
WS_O    = 0x4000000
WS_OB   = 0x5000000
WS_KVP  = 0x5400000
WS_KVR  = 0x5800000
F_PROG = WS_FLAG
F_FIN  = WS_FLAG + 0x0800
F_BKV  = WS_FLAG + 0x1000
F_BRED = WS_FLAG + 0x1800
F_BQ   = WS_FLAG + 0x2000
F_OB   = WS_FLAG + 0x3000
F_O    = WS_FLAG + 0x4000
F_KV   = WS_FLAG + 0x8000
T_END, T_G1H, T_G1F, T_BKV, T_BQ, T_G3, T_TAIL, T_RED, T_WAIT, T_ATT = range(10)
EARLY = 0x100
S_TP = 18
S_D = 20
S_XS, S_WSRD, S_OS = 28, 32, 36
S_XO, S_WO, S_CNT, S_MX, S_MW, S_XSTEP, S_WSTEP, S_STR = 40, 41, 42, 43, 44, 45, 46, 47
S_G = 48
S_PTR = 60
S_WM, S_WN = 76, 77
S_PRE = 78
S_E = 90
S_VER = 78
S_C1, S_C2 = 80, 81
S_A = 82
P_AX, P_WQ, P_WK, P_WV, P_WO, P_BX, P_BW, P_BO = [S_PTR + 2*i for i in range(8)]
V_XD, V_WD, V_XA, V_WA, V_OO = 2, 10, 18, 20, 28
V_G = 30
V_F = 64
V_E = 192
XF = lambda b, t: V_F + b*64 + t*4
WF = lambda b, t: V_F + b*64 + 32 + t*4
lines = lambda t: [x.strip() for x in t.split('\n') if x.strip()]
LOG2E = 0x3fb8aa3b

def wait_flag(p, lbl, soff, sval, shift=0, mask=None):
    G = S_G
    p(f'''
    v_mov_b32 v{V_G}, 0
    {lbl}:
    {ld(1, V_G+1, V_G, soff)}
    s_sub_u32 s{S_BUD}, s{S_BUD}, 1
    s_max_i32 s{S_BUD}, s{S_BUD}, 0
    s_waitcnt vmcnt(0)
    v_readfirstlane_b32 s{G+10}, v{V_G+1}
    ''')
    if shift: p(f's_lshr_b32 s{G+10}, s{G+10}, {shift}')
    if mask is not None: p(f's_and_b32 s{G+10}, s{G+10}, {mask}')
    p(f'''
    s_cmp_ge_u32 s{G+10}, {sval if isinstance(sval, str) else "s%d" % sval}
    s_cbranch_scc1 {lbl}_ok
    s_cmp_eq_u32 s{S_BUD}, 0
    s_cbranch_scc1 {lbl}_ok
    s_sleep 2
    s_branch {lbl}
    {lbl}_ok:
    ''')
def signal(p, lbl, soff, val, lanes='1', stride=0):
    p(f'''
    s_waitcnt vmcnt(0)
    s_barrier
    s_cmp_eq_u32 s{S_WAVE}, 0
    s_cbranch_scc0 {lbl}
    v_mul_u32_u24 v{V_G}, {stride}, v{V_LANE}
    v_mov_b32 v{V_G+1}, {val}
    s_mov_b64 exec, {lanes}
    buffer_atomic_add v{V_G+1}, v{V_G}, {sr(S_WS,4)}, s{soff} offen sc1
    s_mov_b64 exec, -1
    {lbl}:
    ''')

def g_init(p, o):
    G = S_G
    p(f'''
    s_load_dwordx2 s[{P_AX}:{P_AX+1}], s[0:1], 0
    s_load_dwordx4 s[{G}:{G+3}], s[0:1], 16
    s_load_dwordx4 s[{G+4}:{G+7}], s[0:1], 32
    s_load_dwordx2 s[{P_BX}:{P_BX+1}], s[0:1], 56
    s_load_dwordx4 s[{P_BW}:{P_BW+3}], s[0:1], 64
    s_load_dwordx2 s[{S_OS}:{S_OS+1}], s[0:1], 80
    s_getpc_b64 s[{S_TP}:{S_TP+1}]
    G_pc:
    s_add_u32 s{S_TP}, s{S_TP}, G_table-G_pc
    s_addc_u32 s{S_TP+1}, s{S_TP+1}, 0
    s_sub_u32 s{G+8}, s{S_XCD}, 4
    s_lshl_b32 s{G+8}, s{G+8}, 5
    s_add_u32 s{G+8}, s{G+8}, s{S_IDX}
    s_mul_i32 s{G+8}, s{G+8}, {32*o['ntask']}
    s_add_u32 s{S_TP}, s{S_TP}, s{G+8}
    s_addc_u32 s{S_TP+1}, s{S_TP+1}, 0
    s_lshr_b32 s{S_WM}, s{S_WAVE}, 1
    s_and_b32 s{S_WN}, s{S_WAVE}, 1
    s_mov_b32 s{S_OS+2}, 0x800000
    s_mov_b32 s{S_OS+3}, 0x20000
    s_mov_b32 s{S_XS+3}, 0x20000
    s_mov_b32 s{S_WSRD+3}, 0x20000
    s_mov_b32 s{S_C1}, {LOG2E}
    s_mov_b32 s{S_C2}, 0x358637bd
    s_waitcnt lgkmcnt(0)
    s_mov_b64 s[{P_WQ}:{P_WQ+1}], s[{G}:{G+1}]
    s_mov_b64 s[{P_WK}:{P_WK+1}], s[{G+2}:{G+3}]
    s_mov_b64 s[{P_WV}:{P_WV+1}], s[{G+4}:{G+5}]
    s_mov_b64 s[{P_WO}:{P_WO+1}], s[{G+6}:{G+7}]
    s_mov_b64 s[{S_XS}:{S_XS+1}], s[{P_AX}:{P_AX+1}]
    s_mov_b32 s{S_XS+2}, 0x400000
    s_mov_b64 s[{S_WSRD}:{S_WSRD+1}], s[{P_WQ}:{P_WQ+1}]
    s_mov_b32 s{S_WSRD+2}, 0x800000
    ''')
    for k in list(range(2, 28, 2)) + [38]: p(f'v_mov_b64 {vr(k,2)}, 0')
    p(bits(V_OO, [(4, 2, 9), (0, 4, 4)], None, V_G))

def setup_w(p, TN, bkv=False, perm=False):
    G = S_G
    a, b, c, d = V_G, V_G+1, V_G+2, V_G+3
    rb = (5, 1) if TN == 8 else (4, 2)
    rows = 16 // TN
    p(ssum(G, [(S_WAVE, 4)])); p(bits(a, [rb + (0,)], G, c))
    p(f'v_mul_lo_u32 v{a}, v{a}, s{S_STR}')
    p(bits(b, [(0, 1, 4)], None, c)); p(f'v_add_u32 v{a}, v{a}, v{b}')
    p(bits(b, [(1, 4 if TN == 8 else 3, 0)], None, c)); p(bits(c, [rb + (0,)], None, d)); p(f'v_xor_b32 v{b}, v{b}, v{c}')
    for j in range(TN):
        k0 = rows*j
        f = (k0 & 7) if perm else ((k0 & 3) | ((k0 >> 3) << 2))
        p(f'v_xor_b32 v{c}, {f}, v{b}')
        if bkv:
            p(bits(d, [(1, 1, 11), (2, 2, 6), (0, 1, 5)], None, V_G+4, src=c)); p(f'v_add_u32 v{c}, v{d}, v{a}')
        else: p(f'v_lshl_add_u32 v{c}, v{c}, 5, v{a}')
        p(f's_mul_i32 s{G}, s{S_STR}, {k0}\ns_sub_u32 s{G}, s{G}, {1024*(j&3)}\nv_add_u32 v{V_WD+j}, s{G}, v{c}')
    p(f's_lshl_b32 s{S_WSTEP}, s{S_STR}, 6')
    p(f's_mul_i32 s{S_MW}, s{S_WAVE}, {TN*1024}\ns_add_u32 s{S_MW}, s{S_MW}, 65536')
    lg = 9 if TN == 8 else 8
    p(bits(a, [(4, 2, lg + (2 if perm else 3)), (2, 2, lg), (0, 2, 3)], ('lit', 65536), c))
    p(bits(b, [(2, 2, 0), (4, 1, 2)], None, c))
    p(f's_mul_i32 s{G}, s{S_WN}, {TN}\nv_xor_b32 v{b}, s{G}, v{b}')
    for ct in range(TN): p(f'v_xor_b32 v{c}, {ct}, v{b}\nv_lshl_add_u32 v{V_WA+ct}, v{c}, 5, v{a}')
def setup_x(p, TM, unit, sblk=None):
    G = S_G
    a, b, c = V_G, V_G+1, V_G+2
    p(f's_mul_i32 s{S_MX}, s{S_WAVE}, {TM*1024}')
    if not unit:
        p(f's_mul_i32 s{G}, s{S_WAVE}, {8*TM*2048}')
        p(bits(a, [(3, 3, 11)], G, c))
        p(bits(b, [(0, 3, 0)], None, c)); p(bits(c, [(4, 2, 0)], None, V_G+3)); p(f'v_xor_b32 v{b}, v{b}, v{c}')
        for j in range(TM):
            p(f'v_xor_b32 v{c}, {4*(j&1)}, v{b}\nv_lshl_add_u32 v{c}, v{c}, 4, v{a}\nv_add_u32 v{V_XD+j}, {j*8*2048 - 1024*(j&3)}, v{c}')
        p(f's_mul_i32 s{G}, s{S_WM}, {TM*2048}')
        p(bits(a, [(0, 4, 7)], G, c))
        p(bits(b, [(1, 3, 0)], None, c)); p(bits(c, [(4, 2, 0)], None, V_G+3)); p(f'v_xor_b32 v{b}, v{b}, v{c}')
        for s_ in range(2): p(f'v_xor_b32 v{c}, {4*s_}, v{b}\nv_lshl_add_u32 v{V_XA+s_}, v{c}, 4, v{a}')
        p(f's_mov_b32 s{S_XSTEP}, 128')
    else:
        nb = TM // 4
        p(f's_mul_i32 s{G}, s{S_WAVE}, s{sblk}')
        if nb == 2: p(f's_lshl_b32 s{G}, s{G}, 1')
        p(bits(V_XD, [(0, 6, 4)], G, c))
        if nb == 2: p(f'v_add_u32 v{V_XD+1}, s{sblk}, v{V_XD}')
        p(f's_mul_i32 s{G}, s{S_WM}, {TM*2048}')
        p(f'v_add_u32 v{V_XA}, s{G}, v{V_OO}')
        p(f's_mov_b32 s{S_XSTEP}, 4096')

def core(p, name, TM, TN, NB, unit, swap, xfl='', hook=None, last=None, wfl='', pre=None, wrap=False, stamp=None):
    xs = S_WS if unit else S_XS
    XS, WS_ = TM*4096, TN*4096
    RB = TN*64
    QO = (16 if unit else 4)*RB
    nd = TM + TN
    def dma(buf):
        out = []
        for j in range(TM):
            v = V_XD + (j >> 2 if unit else j)
            i = [f'buffer_load_dwordx4 v{v}, {sr(xs,4)}, s{S_XO} offen offset:{1024*(j&3)} {xfl} lds']
            if j % 4 == 0: i = [f's_add_u32 m0, s{S_MX}, {buf*XS + (j//4)*4096}', 's_nop 0'] + i
            if j == TM-1: i += [f's_add_u32 s{S_XO}, s{S_XO}, s{S_XSTEP}'] + ([f's_bitset0_b32 s{S_XO}, 11'] if wrap else [])
            out.append(i)
        for j in range(TN):
            i = [f'buffer_load_dwordx4 v{V_WD+j}, {sr(S_WSRD,4)}, s{S_WO} offen offset:{1024*(j&3)} {wfl} lds']
            if j % 4 == 0: i = [f's_add_u32 m0, s{S_MW}, {buf*WS_ + (j//4)*4096}', 's_nop 0'] + i
            if j == TN-1: i += [f's_add_u32 s{S_WO}, s{S_WO}, s{S_WSTEP}'] + ([f's_bitset0_b32 s{S_WO}, 23'] if wrap else [])
            out.append(i)
        return out
    def reads(buf, s, fb):
        out = []
        for t in range(max(TM, TN)):
            if t < TN:
                out.append(f'ds_read_b64_tr_b16 {vr(WF(fb,t),2)}, v{V_WA+t} offset:{buf*WS_ + 32*RB*s}')
                out.append(f'ds_read_b64_tr_b16 {vr(WF(fb,t)+2,2)}, v{V_WA+t} offset:{buf*WS_ + 32*RB*s + QO}')
            if t < TM:
                if unit: out.append(f'ds_read_b128 {vr(XF(fb,t),4)}, v{V_XA} offset:{buf*XS + (t>>1)*4096 + 2048*s + (t&1)*256}')
                else: out.append(f'ds_read_b128 {vr(XF(fb,t),4)}, v{V_XA+s} offset:{buf*XS + 2048*t}')
        return out
    NM = TM*TN
    def step(fb, first, rd, dm):
        out = []; rd = list(rd); dm = list(dm)
        rsp = 2 if NM == 64 else 1
        dpos = [1 + (k*(NM-2))//max(len(dm), 1) for k in range(len(dm))]
        i = 0
        for tt in range(TM):
            for ct in (range(TN) if tt % 2 == 0 else range(TN-1, -1, -1)):
                a = (tt*TN+ct)*4
                c = '0' if first else ar(a, 4)
                A, B = vr(WF(fb,ct),4), vr(XF(fb,tt),4)
                if swap: A, B = B, A
                out.append(f'v_mfma_f32_16x16x32_bf16 {ar(a,4)}, {A}, {B}, {c}')
                if i % rsp == 0 and rd: out.append(rd.pop(0))
                while dpos and dpos[0] <= i: dpos.pop(0); out += dm.pop(0)
                i += 1
        assert not rd and not dm
        return out
    n1 = nd if NB == 2 else TM
    def stage(buf, first=False, rem=99, carry=True):
        prev = dma((buf - 1) % NB)[n1:] if (carry and rem >= NB-1) else []
        out = step(0, first, reads(buf, 1, 1), prev)
        if rem:
            out += [f's_waitcnt vmcnt({nd*min(NB-2, rem-1)}) lgkmcnt(0)', 's_barrier']
            extra = [[x] for x in last] if (last and rem == 1) else []
            out += step(1, False, reads((buf+1) % NB, 0, 0), dma(buf)[:n1] if rem >= NB else extra)
            out += ['s_waitcnt lgkmcnt(0)']
        else:
            out += ['s_waitcnt lgkmcnt(0)']
            out += step(1, False, [], [])
        return out
    p('s_barrier')
    for b in range(NB):
        for d in dma(b): p(d)
    ne = pre(p) if pre else 0
    if stamp: stamp()
    for k in range(0, 8, 2): p(f's_mov_b64 s[{S_E+k}:{S_E+k+1}], s[{S_D+k}:{S_D+k+1}]')
    p(fetch())
    p(f's_waitcnt vmcnt({nd*(NB-1) + ne})\ns_barrier')
    if hook: hook(p)
    p(reads(0, 0, 0)); p('s_waitcnt lgkmcnt(0)')
    for b in range(NB): p(stage(b, b == 0, carry=b > 0))
    p(f's_sub_u32 s{S_CNT}, s{S_CNT}, 2\n{name}_k:')
    for b in range(NB): p(stage(b))
    p(f's_sub_u32 s{S_CNT}, s{S_CNT}, 1\ns_cmp_lg_u32 s{S_CNT}, 0\ns_cbranch_scc1 {name}_k')
    for b in range(NB): p(stage(b, rem=NB-1-b))

def fetch():
    return f's_load_dwordx8 s[{S_D}:{S_D+7}], s[{S_TP}:{S_TP+1}], 0\ns_add_u32 s{S_TP}, s{S_TP}, 32\ns_addc_u32 s{S_TP+1}, s{S_TP+1}, 0'

def epi_units(p, TM, TN):
    G = S_G
    p(ssum(G, [(S_WM, 18 + (2 if TM == 8 else 1)), (S_WN, 13 if TN == 8 else 12), (S_E+3, 0)], 0, G+1))
    n = 0
    for tt in range(TM):
        for u in range(TN//2):
            a = (tt*TN+2*u)*4
            t0 = V_E + (n % 4)*12; n += 1
            for r in range(8): p(f'v_accvgpr_read_b32 v{t0+r}, a{a+r}')
            for r in range(4): p(f'v_cvt_pk_bf16_f32 v{t0+8+r}, v{t0+2*r}, v{t0+2*r+1}')
            if u == 2: p(f's_add_u32 s{G}, s{G}, 4096')
            p(st(4, t0+8, V_OO, G, (u&1)*2048 + (tt&1)*256, 'sc1'))
        d = (0x40000 if tt&1 else 0) - (4096 if TN == 8 else 0)
        if d: p(f's_add_u32 s{G}, s{G}, {d}')

def phi(src_a, dst, n, tmp):
    out = []
    t, e = tmp, tmp+n
    for k in range(n): out.append(f'v_accvgpr_read_b32 v{t+k}, a{src_a[k]}')
    for k in range(0, n, 2): out.append(f'v_pk_mul_f32 {vr(e+k,2)}, {vr(t+k,2)}, {sr(S_C1,2)} op_sel_hi:[1,0]')
    for k in range(n): out += [f'v_exp_f32 v{e+k}, v{e+k} clamp', f'v_max_f32 v{t+k}, 0, v{t+k}']
    for k in range(0, n, 2): out.append(f'v_pk_add_f32 {vr(e+k,2)}, {vr(e+k,2)}, {vr(t+k,2)}')
    for k in range(0, n, 2): out.append(f'v_pk_add_f32 {vr(e+k,2)}, {vr(e+k,2)}, {sr(S_C1,2)} op_sel:[0,1]')
    for k in range(0, n, 2): out.append(f'v_cvt_pk_bf16_f32 v{dst+k//2}, v{e+k}, v{e+k+1}')
    return out

def epi_bkv(p):
    G = S_G
    ONES = V_F; KV = V_F + 4
    PK = V_F + 28; VV = V_F + 36; TMP = V_F + 44
    for k in range(4): p(f'v_mov_b32 v{ONES+k}, 0x3f803f80')
    p(f's_mul_i32 s{G}, s{S_WM}, {32*6144}\ns_mul_i32 s{G+1}, s{S_WN}, {2*6144}\ns_add_u32 s{G}, s{G}, s{G+1}\ns_add_u32 s{G}, s{G}, s{S_E+3}')
    p(bits(V_G, [(0, 6, 4)], None, V_G+1))
    for hd in range(2):
        for m in range(4):
            acc = lambda ct: [((2*m+h)*8 + ct)*4 + r for h in range(2) for r in range(4)]
            for dt in range(2): p(phi(acc(4*hd+dt), PK+4*dt, 8, TMP))
            for et in range(2):
                src = acc(4*hd+2+et)
                for k in range(8): p(f'v_accvgpr_read_b32 v{TMP+k}, a{src[k]}')
                for k in range(4): p(f'v_cvt_pk_bf16_f32 v{VV+4*et+k}, v{TMP+2*k}, v{TMP+2*k+1}')
            for op in (2, 0, 1):
                for dt in range(2):
                    d = KV + (op*2+dt)*4
                    p(f'v_mfma_f32_16x16x32_bf16 {vr(d,4)}, {vr(PK+4*dt,4)}, {vr(ONES if op == 2 else VV+4*op,4)}, {"0" if m == 0 else vr(d,4)}')
        for op in (2, 0, 1):
            for dt in range(2):
                off = hd*6144 + op*2048 + dt*1024
                p(f's_add_u32 s{G+1}, s{G}, {off & ~4095}')
                p(st(4, KV + (op*2+dt)*4, V_G, G+1, off & 4095, 'sc1'))

def task_red(p):
    G = S_G
    a, b, c = V_G, V_G+1, V_G+2
    p(f's_cmp_eq_u32 s{S_WAVE}, 3\ns_cbranch_scc1 G_red_done')
    p(ssum(G, [(S_WAVE, 11)]))
    p(bits(b, [(0, 6, 4)], None, c))
    p(f'v_add_u32 v{a}, s{G}, v{b}')
    p(f's_mov_b32 s{G}, s{S_D+1}')
    for blk in range(16):
        for dt in range(2): p(ld(4, V_F + (blk*2+dt)*4, a, G, dt*1024))
        p(f's_add_u32 s{G}, s{G}, {32*6144}')
    for blk in range(1, 16):
        p(f's_waitcnt vmcnt({30-2*blk})')
        for k in range(0, 8, 2): p(f'v_pk_add_f32 {vr(V_F+k,2)}, {vr(V_F+k,2)}, {vr(V_F+8*blk+k,2)}')
    for k in range(4): p(f'v_cvt_pk_bf16_f32 v{V_E+k}, v{V_F+2*k}, v{V_F+2*k+1}')
    p(ssum(G, [(S_WAVE, 10), (S_D+3, 0)], 0, G+1))
    p(st(4, V_E, b, G, 0, 'sc1'))
    p('G_red_done:')

def epi_bq(p):
    G = S_G
    KVR = V_F
    PQ = V_F + 48
    N = V_F + 56
    TMP = V_F + 80
    U = V_F + 104
    p(f's_mul_i32 s{G}, s{S_WN}, {4*3072}\ns_add_u32 s{G}, s{G}, s{S_E+7}')
    p(bits(V_G, [(0, 6, 4)], None, V_G+1))
    for hd in range(4):
        for op in range(3): p(ld(4, KVR + (hd*3+op)*4, V_G, G, op*1024))
        p(f's_add_u32 s{G}, s{G}, 3072')
    p(ssum(G, [(S_WM, 18), (S_WN, 13), (S_E+3, 0)], 0, G+1))
    items = [(tt, hd) for tt in range(8) for hd in range(4)]
    def front(k):
        tt, hd = items[k]
        src = [(tt*8 + 2*hd + dt)*4 + r for dt in range(2) for r in range(4)]
        out = phi(src, PQ + 4*(k & 1), 8, TMP)
        if k == 0: out.append('s_waitcnt vmcnt(0)')
        for op in (2, 0, 1):
            out.append(f'v_mfma_f32_16x16x32_bf16 {vr(N + 12*(k&1) + 4*op,4)}, {vr(KVR + (hd*3+op)*4,4)}, {vr(PQ + 4*(k&1),4)}, 0')
        return out
    def back(k):
        tt, hd = items[k]
        n = N + 12*(k & 1); u = U + 4*(k & 1)
        out = [f'v_add_f32 v{n+8}, s{S_C2}, v{n+8}', f'v_rcp_f32 v{n+8}, v{n+8}']
        for r in range(0, 8, 2): out.append(f'v_pk_mul_f32 {vr(n+r,2)}, {vr(n+r,2)}, {vr(n+8,2)} op_sel_hi:[1,0]')
        for r in range(4): out.append(f'v_cvt_pk_bf16_f32 v{u+r}, v{n+2*r}, v{n+2*r+1}')
        out.append(f's_add_u32 s{G+1}, s{G}, {(tt>>1)*0x10000 + (hd>>1)*4096}')
        out.append(st(4, u, V_OO, G+1, (hd&1)*2048 + (tt&1)*256, 'sc1'))
        return out
    for k in range(len(items) + 1):
        if k < len(items): p(front(k))
        if k > 0: p(back(k-1))

def epi_out(p, TM, TN):
    G = S_G
    p(bits(V_G, [(0, 4, 12), (4, 1, 5), (5, 1, 4)], None, V_G+1))
    p(f's_mul_i32 s{G}, s{S_WM}, {TM*16*4096}')
    p(f's_mul_i32 s{G+1}, s{S_WN}, {TN*32}\ns_add_u32 s{G}, s{G}, s{G+1}\ns_add_u32 s{G}, s{G}, s{S_E+3}')
    n = 0
    pend = []
    for tt in range(TM):
        for u in range(TN//2):
            a = (tt*TN+2*u)*4
            t0 = V_E + (n % 4)*12; n += 1
            for r in range(8): p(f'v_accvgpr_read_b32 v{t0+r}, a{a+r}')
            p(pend)
            for r in range(4): p(f'v_cvt_pk_bf16_f32 v{t0+8+r}, v{t0+2*r}, v{t0+2*r+1}')
            pend = [f'v_permlane16_swap_b32 v{t0+8}, v{t0+10}', f'v_permlane16_swap_b32 v{t0+9}, v{t0+11}',
                    st(4, t0+8, V_G, G, u*64, '', S_OS)]
            if u == TN//2-1: pend.append(f's_add_u32 s{G}, s{G}, {16*4096}')
    p(pend)

def att_task(p, o):
    G = S_G; D = S_D
    SEG, NXT, HD, SRDY, SIG, SPF = S_A+8, S_A+9, S_A+10, S_A+11, S_A+12, S_A+13
    SX, SM_ = S_A+14, S_A+15
    a, b, c = V_G, V_G+1, V_G+2
    VL, VKM, VVM, VTR, NEG, VPG, PG, VSG, ONE = V_G+3, V_G+4, V_G+5, V_G+6, V_G+7, V_G+8, V_G+9, V_G+10, V_G+11
    Qf = lambda s_: 96*s_; Kf = lambda s_: 96*s_ + 32; KMf = lambda s_: 96*s_ + 64; VMf = lambda s_: 96*s_ + 80
    Or, Sr, P, VA = 64, 160, 184, 194
    mx, mt, rc, U = 226, 228, 230, 232
    p('s_barrier')
    p(f's_lshl2_add_u32 s{HD}, s{D+2}, s{S_WAVE}\ns_mov_b32 s{SEG}, s{D+1}\ns_mov_b32 s{SIG}, 0')
    p(f"""
    v_mul_u32_u24 v{a}, s{D+7}, v{V_LANE}
    v_add_u32 v{a}, s{D+1}, v{a}
    v_mov_b32 v{b}, s{D+1}
    v_cmp_gt_u32 vcc, s{D+3}, v{a}
    v_cndmask_b32 v{a}, v{b}, v{a}, vcc
    v_lshrrev_b32 v{a}, 2, v{a}
    v_lshlrev_b32 v{a}, 11, v{a}
    """)
    p(ssum(G, [(D+2, 8)], F_KV)); p(ssum(SPF, [(D+2, 8)], F_PROG))
    p(bits(VPG, [(0, 1, 11)], None, c))
    assert F_FIN - F_PROG == 2048
    p(f'GA_w:\n{ld(1, b, a, G)}\n{ld(1, PG, VPG, SPF)}')
    p(bits(VL, [(0, 6, 4)], None, c))
    p(bits(VKM, [(4, 2, 7), (0, 3, 4)], None, c))
    p(bits(VVM, [(2, 2, 7), (0, 2, 4), (4, 1, 3)], None, c))
    p(ssum(G+3, [(S_WAVE, 14)]))
    p(bits(VTR, [(0, 2, 9), (4, 2, 6), (2, 2, 4)], G+3, c))
    p(f"""
    s_sub_u32 s{S_BUD}, s{S_BUD}, 1
    s_max_i32 s{S_BUD}, s{S_BUD}, 0
    s_movk_i32 s{G+1}, 0x408
    s_waitcnt vmcnt(0)
    v_cmp_ne_u32 vcc, s{G+1}, v{b}
    s_cbranch_vccz GA_wk
    s_cmp_eq_u32 s{S_BUD}, 0
    s_cbranch_scc1 GA_wk
    s_sleep 2
    s_branch GA_w
    GA_wk:
    """)
    def ready(seg):
        return [f'v_readlane_b32 s{G+1}, v{PG}, 0', f'v_readlane_b32 s{G+2}, v{PG}, 1', f's_add_u32 s{G+4}, s{seg}, 2',
                f's_cmp_ge_u32 s{G+2}, 16', f's_cselect_b32 s{G+1}, 99, s{G+1}', f's_cmp_ge_u32 s{G+1}, s{G+4}']
    def xloads(s_):
        out = []
        for h in range(2):
            first = True
            for u in (2*h, 2*h+1):
                for t in range(2):
                    i = [f's_add_u32 s{G+4}, s{SX}, {WS_Q + h*4096}', f's_add_u32 s{G+5}, s{SX}, {WS_KX + h*4096}'] if first else []
                    first = False
                    out.append(i + [ld(4, ar(Qf(s_)+(t*4+u)*4, 4), V_OO, G+4, (u&1)*2048 + t*256)])
                    out.append([ld(4, ar(Kf(s_)+(t*4+u)*4, 4), V_OO, G+5, (u&1)*2048 + t*256)])
        for h in range(2):
            for j in range(4):
                i = [f's_add_u32 m0, s{G+3}, {s_*8192 + h*4096}', f's_add_u32 s{G+4}, s{SX}, {WS_VX + h*4096}'] if j == 0 else []
                out.append(i + [f'buffer_load_dwordx4 v{VL}, {sr(S_WS,4)}, s{G+4} offen offset:{1024*j} sc1 lds'])
        return out
    def mloads(s_):
        out = []
        for u in range(4): out.append(([f's_add_u32 s{G+4}, s{SM_}, {WS_KM}'] if u == 0 else []) + [ld(4, ar(KMf(s_)+4*u, 4), VKM, G+4, u*512)])
        for E in range(8): out.append(([f's_add_u32 s{G+4}, s{SM_}, {WS_VM}'] if E == 0 else []) + [ld(2, ar(VMf(s_)+2*E, 2), VVM, G+4, (E>>1)*512 + (E&1)*64)])
        return out
    def sigaddr(seg):
        return ssum(G+1, [(seg, 2), (D+2, 8)], F_O, G+2) + [f's_lshr_b32 s{G+2}, s{seg}, 2', f's_lshl_b32 s{G+2}, s{G+2}, 8', f's_add_u32 s{G+2}, s{G+2}, {F_OB}',
                f'v_writelane_b32 v{VSG}, s{G+1}, 0', f'v_writelane_b32 v{VSG}, s{G+2}, 1']
    SIGNAL = f'buffer_atomic_add v{ONE}, v{VSG}, {sr(S_WS,4)}, s{SIG} offen sc1'
    p(ssum(SX, [(SEG, 18), (HD, 13)], 0, G+1))
    for x in xloads(0): p(x)
    p(bits(a, [(4, 2, 2)], None, c)); p(bits(b, [(0, 4, 0)], None, c))
    p(f'v_sub_u32 v{a}, v{b}, v{a}\nv_mov_b32 v{NEG}, 0xff800000\nv_mov_b32 v{ONE}, 1\nv_mov_b32 v{VSG}, 0x7ffffff0')
    for r in range(4): p(f'v_cmp_le_i32 {sr(S_A+2*r,2)}, {r}, v{a}')
    p(f's_mov_b32 s{G+6}, -1\ns_mov_b32 s{G+7}, 0\ns_mov_b32 s{G+8}, 0x{o["scl"]:08x}\ns_mov_b32 s{NXT}, s{SEG}\ns_branch GA_late1')
    S_ = lambda t, k: Sr + (t*3+k)*4
    O_ = lambda E, t: Or + (E*2+t)*4
    tiles = [(0, 0), (0, 1), (1, 0), (1, 1), (1, 2)]
    nval = [8, 12]
    P0x, P0m, P1x, P1m = P, P+2, P+4, P+8
    for s_ in range(2):
        q = []
        e = q.append
        def allred(op, base):
            for sw in ('16', '32'):
                for t in range(2): e(f'v_mov_b32 v{mt+t}, v{base+t}')
                for t in range(2): e(f'v_permlane{sw}_swap_b32 v{base+t}, v{mt+t}')
                for t in range(2): e(f'{op} v{base+t}, v{base+t}, v{mt+t}')
        p(f'GA_it{s_}:\ns_waitcnt vmcnt(8)')
        for E in range(8):
            for T_ in range(2): p(f'ds_read_b64_tr_b16 {vr(VA+4*E+2*T_,2)}, v{VTR} offset:{s_*8192 + (E>>1)*2048 + (E&1)*8 + T_*256}')
        p(f's_add_u32 s{NXT}, s{SEG}, s{D+7}')
        p(ssum(SX, [(NXT, 18), (HD, 13)], 0, G+1)); p(ssum(SM_, [(NXT, 16), (HD, 11)], 0, G+1))
        p(ready(NXT))
        p(f's_cselect_b32 s{SRDY}, s{NXT}, 0\ns_cselect_b32 s{SM_}, s{SM_}, 0x40000000\ns_cmp_lt_u32 s{NXT}, s{D+3}\ns_cselect_b32 s{SX}, s{SX}, 0x40000000\ns_cselect_b32 s{SM_}, s{SM_}, 0x40000000')
        for u in range(4):
            for t, k in tiles:
                A = KMf(s_)+4*u if k == 0 else Kf(s_)+((k-1)*4+u)*4
                e(f'v_mfma_f32_16x16x32_bf16 {vr(S_(t,k),4)}, {ar(A,4)}, {ar(Qf(s_)+(t*4+u)*4,4)}, {"0" if u == 0 else vr(S_(t,k),4)}')
        for t in range(2):
            for r in range(4): e(f'v_cndmask_b32 v{S_(t,0)+r}, v{NEG}, v{S_(t,0)+r}, {sr(G+6,2)}')
            for r in range(4): e(f'v_cndmask_b32 v{S_(t,t+1)+r}, v{NEG}, v{S_(t,t+1)+r}, {sr(S_A+2*r,2)}')
        for t in range(2):
            s0 = S_(t, 0)
            e(f'v_max3_f32 v{mx+t}, v{s0}, v{s0+1}, v{s0+2}')
            for k in range(3, nval[t]-1, 2): e(f'v_max3_f32 v{mx+t}, v{mx+t}, v{s0+k}, v{s0+k+1}')
            e(f'v_max_f32 v{mx+t}, v{mx+t}, v{s0+nval[t]-1}')
        allred('v_max_f32', mx)
        for t in range(2): e(f'v_mul_f32 v{mx+t}, s{G+8}, v{mx+t}')
        for t in range(2):
            s0 = S_(t, 0)
            for k in range(nval[t]): e(f'v_fma_f32 v{s0+k}, v{s0+k}, s{G+8}, -v{mx+t}')
            for k in range(nval[t]): e(f'v_exp_f32 v{s0+k}, v{s0+k}')
        for dst, src, n in [(P0m, S_(0,0), 2), (P0x, S_(0,1), 2), (P1m, S_(1,0), 2), (P1x, S_(1,1), 4)]:
            for k in range(n): e(f'v_cvt_pk_bf16_f32 v{dst+k}, v{src+2*k}, v{src+2*k+1}')
        for t in range(2):
            s0 = S_(t, 0)
            for k in range(2, nval[t], 2): e(f'v_pk_add_f32 {vr(s0,2)}, {vr(s0,2)}, {vr(s0+k,2)}')
            e(f'v_add_f32 v{rc+t}, v{s0}, v{s0+1}')
        e('s_waitcnt lgkmcnt(0)')
        for E in range(8):
            e(f'v_mfma_f32_16x16x16_bf16 {vr(O_(E,0),4)}, {ar(VMf(s_)+2*E,2)}, {vr(P0m,2)}, 0')
            e(f'v_mfma_f32_16x16x16_bf16 {vr(O_(E,1),4)}, {ar(VMf(s_)+2*E,2)}, {vr(P1m,2)}, 0')
            e(f'v_mfma_f32_16x16x16_bf16 {vr(O_(E,0),4)}, {vr(VA+4*E,2)}, {vr(P0x,2)}, {vr(O_(E,0),4)}')
            e(f'v_mfma_f32_16x16x32_bf16 {vr(O_(E,1),4)}, {vr(VA+4*E,4)}, {vr(P1x,4)}, {vr(O_(E,1),4)}')
            if E == 0:
                allred('v_add_f32', rc)
                for t in range(2): e(f'v_rcp_f32 v{rc+t}, v{rc+t}')
        lds_ = xloads(s_ ^ 1) + mloads(s_ ^ 1) + [[ld(1, PG, VPG, SPF)]]
        cost = lambda x: 4 if x.startswith('v_mfma') else (2 if x.startswith(('v_exp', 'v_perml')) else 1)
        tot = sum(cost(x) for x in q); acc = 0; k = 0
        for x in q:
            p(x); acc += cost(x)
            while k < len(lds_) and acc*len(lds_) >= (k+1)*tot*0.95: p(lds_[k]); k += 1
        assert k == len(lds_)
        p(f's_waitcnt vmcnt({len(lds_)})'); p(SIGNAL)
        p(ssum(G, [(SEG, 18), (HD, 13)], 0, G+1))
        p(sigaddr(SEG)); p(f's_mov_b32 s{SIG}, 0')
        n = 0
        for u in range(4):
            if u % 2 == 0: p(f's_add_u32 s{G+4}, s{G}, {WS_O + (u>>1)*4096}')
            for t in range(2):
                u0 = U + 4*(n % 4); n += 1
                for pp in range(2):
                    d = O_(2*u+pp, t)
                    for r in (0, 2): p(f'v_pk_mul_f32 {vr(d+r,2)}, {vr(d+r,2)}, {vr(rc,2)} op_sel:[0,{t}] op_sel_hi:[1,{t}]')
                    for r in range(2): p(f'v_cvt_pk_bf16_f32 v{u0+2*pp+r}, v{d+2*r}, v{d+2*r+1}')
                p(st(4, u0, V_OO, G+4, (u&1)*2048 + t*256, 'sc1'))
        p(f"""
        s_mov_b32 s{SEG}, s{NXT}
        s_cmp_lt_u32 s{NXT}, s{D+3}
        s_cbranch_scc0 GA_end
        s_cmp_lg_u32 s{SRDY}, 0
        s_cbranch_scc1 GA_it{s_ ^ 1}
        s_waitcnt vmcnt(0)
        {SIGNAL}
        s_mov_b32 s{SIG}, 0x40000000
        GA_late{s_}:
        """)
        p(ready(NXT))
        p(f"""
        s_cbranch_scc1 GA_go{s_}
        s_cmp_eq_u32 s{S_BUD}, 0
        s_cbranch_scc1 GA_go{s_}
        s_sleep 1
        {ld(1, PG, VPG, SPF)}
        s_sub_u32 s{S_BUD}, s{S_BUD}, 1
        s_waitcnt vmcnt(0)
        s_branch GA_late{s_}
        GA_go{s_}:
        """)
        p(ssum(SM_, [(NXT, 16), (HD, 11)], 0, G+1))
        for x in mloads(s_ ^ 1): p(x)
        p(f's_waitcnt vmcnt(0)\ns_branch GA_it{s_ ^ 1}')
    p(f'GA_end:\ns_waitcnt vmcnt(0)\n{SIGNAL}')

def g_role(p, o, verify):
    G = S_G; D = S_D
    g_init(p, o)
    def stamp():
        if o.get('gtrace'):
            p(f'''
            s_memrealtime s[{G}:{G+1}]
            s_add_u32 s98, s98, 4
            s_waitcnt lgkmcnt(0)
            v_mov_b32 v{V_G}, s{G}
            v_mov_b32 v{V_G+1}, 0
            {st(1, V_G, V_G+1, 98)}
            ''')
    fine = lambda k: (stamp if o.get('fine') == k else None)
    fs = lambda k: (stamp() if o.get('fine') == k else None)
    if o.get('gtrace'): p(ssum(98, [(S_XCD, 15), (S_IDX, 10), (S_WAVE, 8)], 0xF800000 - 4, G))
    p('G_next:'); p(fetch())
    p('s_waitcnt lgkmcnt(0)\nG_have:')
    if o.get('gtrace'):
        p(f's_cmp_ge_u32 s{D}, {T_RED}\ns_cselect_b32 s{G}, 0, s{D}\ns_cmp_eq_u32 s{G}, 0\ns_cbranch_scc0 G_nst'); stamp(); p('G_nst:')
    p(f'''
    s_cmp_eq_u32 s{D}, {T_END}
    s_cbranch_scc1 G_end
    s_cmp_eq_u32 s{D}, {T_BQ}
    s_cbranch_scc1 G_nowait
    s_cmp_eq_u32 s{D+5}, 0
    s_cbranch_scc1 G_nowait
    ''')
    wait_flag(p, 'G_w', D+4, D+5, 0, 0xff)
    p(f'''
    G_nowait:
    s_mov_b32 s{S_XO}, s{D+1}
    s_mov_b32 s{S_WO}, s{D+2}
    s_mov_b32 s{S_CNT}, 8
    s_cmp_eq_u32 s{D}, {T_WAIT}
    s_cbranch_scc1 G_next
    s_cmp_eq_u32 s{D}, {T_RED}
    s_cbranch_scc1 G_red
    s_cmp_eq_u32 s{D}, {T_G3}
    s_cbranch_scc1 G_g3
    s_cmp_eq_u32 s{D}, {T_TAIL}
    s_cbranch_scc1 G_tail
    s_cmp_eq_u32 s{D}, {T_ATT}
    s_cbranch_scc1 G_att
    ; ---- K = 1024 projections: choose the operands
    s_cmp_ge_u32 s{D}, {T_BKV}
    s_cselect_b64 s[{S_XS}:{S_XS+1}], s[{P_BX}:{P_BX+1}], s[{P_AX}:{P_AX+1}]
    s_cselect_b32 s{S_STR}, 6144, 8192
    s_cselect_b32 s{S_WSRD+2}, 0x600000, 0x800000
    s_cselect_b64 s[{S_WSRD}:{S_WSRD+1}], s[{P_BW}:{P_BW+1}], s[{P_WQ}:{P_WQ+1}]
    s_cselect_b32 s{G}, 0, s{D+7}
    s_and_b32 s{G}, s{G}, 3
    s_cmp_eq_u32 s{G}, 1
    s_cselect_b64 s[{S_WSRD}:{S_WSRD+1}], s[{P_WK}:{P_WK+1}], s[{S_WSRD}:{S_WSRD+1}]
    s_cmp_eq_u32 s{G}, 2
    s_cselect_b64 s[{S_WSRD}:{S_WSRD+1}], s[{P_WV}:{P_WV+1}], s[{S_WSRD}:{S_WSRD+1}]
    s_cmp_eq_u32 s{D}, {T_BKV}
    s_cbranch_scc1 G_bkv
    '''.replace('s_cselect_b32 s%d, 6144, 8192' % S_STR, 's_mov_b32 s%d, 8192\ns_cselect_b32 s%d, 6144, s%d' % (S_STR, S_STR, S_STR))
       .replace('s_cselect_b32 s%d, 0x600000, 0x800000' % (S_WSRD+2), 's_mov_b32 s%d, 0x800000\ns_cselect_b32 s%d, 0x600000, s%d' % (S_WSRD+2, S_WSRD+2, S_WSRD+2)))
    p(f's_cmp_eq_u32 s{D}, {T_G1H}\ns_cbranch_scc0 G_g1f')
    sigval = lambda w: f's_and_b32 s{G+2}, s{S_E+7}, 3\ns_cselect_b32 s{G+2}, {w}, {w << 8}'
    def touch(p):
        b = V_G+9
        p(f's_and_b32 s{G+2}, s{S_IDX}, 15\ns_and_b32 s{G}, s{D+1}, 0xfffff000'); p(ssum(G+2, [(G+2, 14), (S_WAVE, 12), (G, 0)], 0, G+1))
        p(f's_bitcmp1_b32 s{D+7}, 3\ns_cselect_b32 s{G+2}, s{G+2}, 0x40000000')
        p(bits(b, [(0, 5, 7), (5, 1, 19)], G+2, V_G+10))
        p(ld(1, V_G+10, b, '0', 0, '', S_XS))
        return 1
    p(f's_mov_b32 s{S_CNT}, 4')
    PF = V_G + 8
    share = f'''
    s_sub_u32 s{G}, s{S_XCD}, 4
    s_lshl_b32 s{G}, s{G}, 5
    s_add_u32 s{G}, s{G}, s{S_IDX}
    s_lshl2_add_u32 s{G}, s{G}, s{S_WAVE}
    s_lshl_b32 s{G}, s{G}, 13
    s_bitcmp1_b32 s{D+7}, 2
    s_cselect_b32 s{G}, s{G}, 0x40000000
    v_lshl_add_u32 v{PF}, v{V_LANE}, 7, s{G}
    '''
    E = S_E
    st_ = stamp if o.get('gtrace') else None
    p(share)
    setup_w(p, 4); setup_x(p, 4, False)
    core(p, 'G1H', 4, 4, 4, False, False, '', o['hook_reg'], wfl=o.get('ntq', ''), pre=touch, last=[ld(1, PF+1, PF, '0', 0, '', S_XS)], stamp=st_)
    verify(p, 'GV1')
    epi_units(p, 4, 4)
    p(sigval(1)); signal(p, 'G1H_s', E+6, f's{G+2}')
    p('s_branch G_have\nG_red:')
    task_red(p); signal(p, 'G_red_s', D+6, 1)
    p('s_branch G_next\nG_att:')
    att_task(p, o)
    p('s_branch G_next\nG_g3:')
    p(f"""
    s_cmp_eq_u32 s{D+7}, 0
    s_cselect_b64 s[{S_WSRD}:{S_WSRD+1}], s[{P_BO}:{P_BO+1}], s[{P_WO}:{P_WO+1}]
    s_mov_b32 s{S_WSRD+2}, 0x800000
    s_cselect_b32 s{S_WSRD+2}, 0x200000, s{S_WSRD+2}
    s_cselect_b32 s{S_CNT}, 4, 16
    s_mov_b32 s{G+9}, 0x40000
    s_cselect_b32 s{G+9}, 0x10000, s{G+9}
    s_mov_b32 s{S_STR}, 2048
    """)
    setup_w(p, 4, perm=True); setup_x(p, 4, True, G+9); core(p, 'G3', 4, 4, 4, True, False, 'sc1', stamp=st_)
    epi_out(p, 4, 4)
    p('s_branch G_have\nG_g1f:')
    setup_w(p, 8); setup_x(p, 8, False)
    p(share)
    A = S_A + 2
    last = []
    for ptr, size, so in [(P_BX, 0x400000, '0'), (P_BW, 0x600000, '0'), (P_BW, 0x600000, A+4), (P_BO, 0x200000, '0')]:
        last.append(f's_mov_b64 {sr(A,2)}, {sr(ptr,2)}\ns_mov_b32 s{A+2}, {size}\ns_mov_b32 s{A+3}, 0x20000\ns_mov_b32 s{A+4}, 0x400000\n' + ld(1, PF+1, PF, so, 0, '', A))
    core(p, 'G1F', 8, 8, 2, False, False, last=last, stamp=st_)
    p(f's_cmp_eq_u32 s{E}, {T_BQ}\ns_cbranch_scc1 G_ebq')
    epi_units(p, 8, 8)
    p(sigval(2)); signal(p, 'G1F_s', E+6, f's{G+2}', '3', 2048)
    p('s_branch G_have\nG_ebq:')
    wait_flag(p, 'G_bqw', E+4, E+5)
    epi_bq(p); signal(p, 'G_bq_s', E+6, 1)
    p('s_branch G_have\nG_bkv:')
    setup_w(p, 8, True); setup_x(p, 8, False); core(p, 'GKV', 8, 8, 2, False, True, stamp=st_)
    epi_bkv(p); signal(p, 'G_bkv_s', E+6, 1)
    p('s_branch G_have\nG_tail:')
    p(f's_mov_b64 s[{S_WSRD}:{S_WSRD+1}], s[{P_BO}:{P_BO+1}]\ns_mov_b32 s{S_WSRD+2}, 0x200000\ns_mov_b32 s{G+9}, 0x10000\ns_mov_b32 s{S_STR}, 2048')
    setup_w(p, 8, perm=True); setup_x(p, 8, True, G+9); core(p, 'G3F', 8, 8, 2, True, False, 'sc1', stamp=st_)
    epi_out(p, 8, 8)
    p('s_branch G_have\nG_end:')

def t_proj(mat, row0, nt, pf=0):
    base = [WS_Q, WS_KX, WS_VX][mat]
    return [T_G1F, row0*2048, nt*512, base + (row0//32)*0x40000 + nt*2*8192, 0, 0, F_KV + (row0//128)*2048 + (nt//2)*256, mat + 4*pf]
def t_projq(mat, blk, h, rot=0, cold=0, pf=0):
    base = [WS_Q, WS_KX, WS_VX][mat]
    return [T_G1H, blk*128*2048 + rot*128, h*256 + rot*64*8192, base + blk*4*0x40000 + h*8192, 0, 0, F_KV + blk*2048 + (h//4)*256, mat + 8*cold + 4*pf]
def t_bkv(mt, nt): return [T_BKV, mt*256*2048, 2048 + nt*256, WS_KVP + (2*mt*32 + 4*nt)*6144, 0, 0, F_BKV + nt*256, 0]
def t_red(h): return [T_RED, WS_KVP + h*6144, 0, WS_KVR + h*3072, F_BKV + (h//4)*256, 8, F_BRED + (h//8)*256, 0]
def t_bq(mt, nt): return [T_BQ, mt*256*2048, nt*512, WS_OB + mt*8*0x10000 + nt*32*512, F_BRED + nt*256, 8, F_BQ + mt*256, WS_KVR + nt*8*3072]
def t_bwo(blk, n8): return [T_G3, WS_OB + blk*4*0x10000, n8*256, blk*128*4096 + 2048 + n8*256, F_BQ + (blk//2)*256, 4, 0, 0]
def t_wo(blk, n8): return [T_G3, WS_O + blk*4*0x40000, n8*256, blk*128*4096 + n8*256, F_OB + blk*256, 128, 0, 1]
def t_wait(off, val): return [T_WAIT, 0, 0, 0, off, val, 0, 0]
def t_att(seg0, seg1, v, step=1): return [T_ATT, seg0, v, seg1, 0, 0, 0, step]
def t_bwof(mt, nt): return [T_TAIL, WS_OB + mt*8*0x10000, nt*512, mt*256*4096 + 2048 + nt*512, F_BQ + mt*256, 4, 0, 0]
def early(t): return [t[0] | EARLY] + t[1:]
def schedule(o):
    import sched_g
    return sched_g.schedule(o)
def table(lists, ntask):
    out = ['.p2align 6', '.type G_table,@object', 'G_table:']
    for L in lists:
        assert len(L) < ntask
        for t in L + [[0]*8]*(ntask - len(L)):
            out.append('.long ' + ','.join(hex(x) if x > 9 else str(x) for x in t))
    return '\n'.join(out) + '\n'
```

```python
from asmlib import *
import math
WS_B    = 0x0000000
WS_M2   = 0x0200000
M2_A    = 0x10000
WS_FLAG = 0x0400000
WS_KM   = 0x0800000
WS_VM   = 0x0C00000
WS_KX   = 0x1000000
WS_VX   = 0x2000000
WS_TRACE = 0xF000000
WS_SIZE = 0x10000000 - 0x200000
NSEG = 64
S_WS = 8
S_XCD, S_IDX, S_WAVE = 12, 13, 14
S_BUD = 15
S_DBG = 16
S_V, S_C, S_J, S_H = 20, 21, 22, 23
S_STEP, S_CUR, S_NXT, S_RST = 24, 25, 26, 27
S_KXO, S_VXO, S_WUO, S_KMO = 28, 29, 30, 31
S_SRD = 32
S_T = 36
S_M_LO8, S_M_HI8, S_M_SM, S_M_C, S_M_32 = 44, 46, 48, 50, 52
S_SCL = 54
S_PERM0, S_PERM1 = 55, 56
S_POL = 57
S_NOCHK = 58
S_PRV = 59
S_PVX = 95
S_JV = 92
S_CU1 = 96
S_M_F = 100
S_KVF, S_KVO = 18, 19
F_KV_ = WS_FLAG + 0x8000
F_FIN_ = WS_FLAG + 0x0800
F_OV_ = WS_FLAG + 0x4000
F_P_ = WS_FLAG + 0x5000
WS_O_ = 0x4000000
WS_PART = 0x6000000
S_ST = 60
S_TAG, S_PFV, S_PFK, S_FBO, S_JUNK, S_SPIN = 86, 88, 89, 92, 93, 94
S_FB = 96
M2_F = 0x50000
B_F = 0x40000
V_LANE = 1
(V_CLD, V_CST, V_ALD, V_ALM, V_ALV, V_P0, V_P1, V_BST, V_BLD, V_KX, V_VX0, V_VX1, V_WU,
 V_L1W, V_L1WK, V_L1WV, V_L1R, V_L1R2, V_L2W0, V_L2W1, V_L2R, V_IDX1, V_IDX2, V_PST) = range(2, 26)
V_SELM = 26
V_SENT = 28
V_ONES = 32
V_BW = 40
V_VXD = 72
V_KXD = 104
V_ACC1 = 112
V_VWM = 136
V_FIN = 152
V_KEEP = 172
V_P = 176
V_SELA = 180
V_SELB = 184
V_T = 188
V_FA, V_TAG = 252, 253
V_FAV, V_FCV, V_FAL, V_FCL = V_T+60, V_T+61, V_T+62, V_T+63
V_PRG = 0
V_TB, V_LC = V_T+56, V_T+57
S_FB8, S_TB, S_FBO2 = 44, 97, 98
LDS3 = 20480
OOB = 0x7ffffff0
A_W1 = 0
A_WO = 192
W1 = lambda mat, tq, i: A_W1 + ((mat*2 + tq)*4 + i)*8
WO = lambda tq, ks: A_WO + (tq*2 + ks)*8
LDS1 = 0
LDS2 = 12288

def ld(n, dst, voff, soff, imm=0, fl='sc1', srd=S_WS):
    suf = {1: 'dword', 2: 'dwordx2', 4: 'dwordx4'}[n]
    d = dst if isinstance(dst, str) else vr(dst, n)
    so = soff if isinstance(soff, str) else sr(soff)
    return f'buffer_load_{suf} {d}, {vr(voff)}, {sr(srd,4)}, {so} offen offset:{imm} {fl}'
def st(n, src, voff, soff, imm=0, fl='', srd=S_WS):
    suf = {1: 'dword', 2: 'dwordx2', 4: 'dwordx4'}[n]
    so = soff if isinstance(soff, str) else sr(soff)
    return f'buffer_store_{suf} {vr(src, n)}, {vr(voff)}, {sr(srd,4)}, {so} offen offset:{imm} {fl}'
def zero(base, n): return [f'v_mov_b64 {vr(base+i,2)}, 0' for i in range(0, n, 2)]
def setexec(m): return f's_mov_b64 exec, {sr(m,2)}' if m is not None else 's_mov_b64 exec, -1'
def bits(dst, terms, base=None, tmp=None, src=V_LANE):
    out = []
    first = True
    for lo, w, sh in terms:
        if first:
            out.append(f'v_bfe_u32 v{dst}, v{src}, {lo}, {w}')
            if sh: out.append(f'v_lshlrev_b32 v{dst}, {sh}, v{dst}')
            first = False
        else:
            out.append(f'v_bfe_u32 v{tmp}, v{src}, {lo}, {w}')
            out.append(f'v_lshl_add_u32 v{dst}, v{tmp}, {sh}, v{dst}')
    if base is not None:
        out.append(f'v_add_u32 v{dst}, {base[1] if isinstance(base, tuple) else "s%d" % base}, v{dst}')
    return out
def ssum(dst, terms, lit=0, tmp=None):
    out = []
    first = True
    for s_, sh in terms:
        if first: out.append(f's_lshl_b32 s{dst}, s{s_}, {sh}'); first = False
        else: out += [f's_lshl_b32 s{tmp}, s{s_}, {sh}', f's_add_u32 s{dst}, s{dst}, s{tmp}']
    if lit: out.append(f's_add_u32 s{dst}, s{dst}, {lit}')
    return out

def r_setup(p, o):
    T = S_T
    a, b, c_ = V_T+5, V_T+6, V_T+7
    L = V_LANE
    B = lambda dst, terms, base=None: p(bits(dst, terms, base, c_))
    S = lambda terms, lit=0, dst=T+1: p(ssum(dst, terms, lit, T+3))
    p(f'''
    s_lshr_b32 s{T}, s{S_IDX}, 4
    s_lshl1_add_u32 s{S_V}, s{S_XCD}, s{T}
    s_and_b32 s{S_C}, s{S_IDX}, 15
    s_and_b32 s{S_J}, s{S_C}, 3
    s_xor_b32 s{S_JV}, s{S_J}, 2
    s_lshr_b32 s{T}, s{S_C}, 2
    s_lshl2_add_u32 s{S_H}, s{S_V}, s{T}
    s_lshl2_add_u32 s{T+4}, s{S_V}, s{S_WAVE}
    s_mov_b32 s{S_M_32}, -1
    s_mov_b32 s{S_M_32+1}, 0
    s_mov_b32 s{S_SCL}, 0x{o['scl']:08x}
    s_mov_b32 s{S_PERM0}, 0x05040100
    s_mov_b32 s{S_PERM1}, 0x07060302
    ''')
    S([(S_XCD, 14), (S_WAVE, 12)], WS_M2); B(V_CLD, [(0, 6, 4)], T+1)
    S([(S_XCD, 14), (S_IDX, 9), (S_WAVE, 7)], WS_M2); B(V_CST, [(0, 3, 4), (4, 1, 3)], T+1)
    p(f's_lshr_b32 s{T}, s{S_IDX}, 1\ns_and_b32 s{T+2}, s{S_IDX}, 1')
    S([(T, 14), (T+2, 12), (S_WAVE, 10)]); B(V_BLD, [(0, 6, 4)], T+1)
    sB = o.get('syncB', 1)
    if sB: S([(S_C, 14), (S_WAVE, 12), (S_V, 7)]); B(V_BST, [(0, 4, 3), (4, 2, 10)], T+1)
    else: S([(S_C, 14), (S_WAVE, 11), (S_V, 7)]); B(V_BST, [(0, 4, 3), (4, 1, 10), (5, 1, 18)], T+1)
    S([(T+4, 13)], WS_M2 + M2_A); B(V_ALD, [(0, 6, 4)], T+1)
    p(f'v_add_u32 v{V_ALV}, 3072, v{V_ALD}')
    S([(T+4, 13)], WS_M2 + M2_A + 2048); B(V_ALM, [(0, 6, 3)], T+1)
    S([(T+4, 13)], WS_VX); B(V_VX0, [(4, 2, 9), (3, 1, 8), (1, 1, 6), (2, 1, 5), (0, 1, 4)], T+1)
    p(f'v_add_u32 v{V_VX1}, 4096, v{V_VX0}')
    S([(T+4, 13), (S_C, 9)], WS_VX, S_PFV)
    S([(S_H, 13), (S_J, 11), (S_WAVE, 9)], WS_KX, S_PFK)
    def only(reg, cond):
        p(f'v_mov_b32 v{b}, {OOB}\n{cond}\nv_cndmask_b32 v{reg}, v{b}, v{reg}, vcc')
    p(f's_lshr_b32 s{T}, s{S_IDX}, 2')
    S([(S_XCD, 12), (T, 7), (S_J, 4), (S_WAVE, 2)], WS_M2 + M2_F); B(V_FA, [(0, 2, 10)], T+1)
    only(V_FA, f'v_cmp_gt_u32 vcc, 4, v{L}')
    p(f's_and_b32 s{T}, s{S_V}, 1')
    S([(S_XCD, 12), (T, 9), (S_WAVE, 7)], WS_M2 + M2_F); B(V_FAL, [(0, 4, 2)], T+1)
    S([(S_XCD, 12), (S_WAVE, 8)], WS_M2 + M2_F + 16384); B(V_FCL, [(4, 1, 7), (0, 4, 2)], T+1)
    p(f'v_mov_b32 v{V_FAV}, -1\nv_mov_b32 v{V_FCV}, -1')
    S([(S_V, 8)], WS_FLAG); p(f'v_mov_b32 v{V_PRG}, s{T+1}\ns_lshl_b32 s{T+1}, s{S_C}, 6'); only(V_PRG, f'v_cmp_eq_u32 vcc, s{T+1}, v{L}')
    B(a, [(3, 1, 0), (5, 1, 1)]); only(V_CST, f'v_cmp_eq_u32 vcc, 0, v{a}')
    if not o.get('nB2') and not sB: only(V_BST, f'v_cmp_gt_u32 vcc, 32, v{L}')
    if o.get('two', 0):
        lg = o['two'].bit_length() - 1
        p(f's_and_b32 s{T}, s{S_V}, {(2 << lg) - 1}\ns_lshr_b32 s{T+2}, s{S_V}, {1 + lg}'); S([(T, 15), (S_C, 8), (T+2, 2)], B_F)
    else: S([(S_C, 8), (S_V, 2)], B_F)
    B(V_WU, [(2, 1, 14), (1, 1, 12), (0, 1, 7)], T+1)
    p(f'v_mov_b32 v{b}, 0x20000000\nv_cmp_gt_u32 vcc, 8, v{L}\nv_cndmask_b32 v{V_WU}, v{b}, v{V_WU}, vcc')
    p(f's_lshr_b32 s{T}, s{S_XCD}, 1\ns_and_b32 s{T+2}, s{S_XCD}, 1')
    S([(T, 14), (T+2, 12), (S_IDX, 7)], B_F, S_FBO2)
    if o.get('two', 0): p(f's_and_b32 s{T}, s{S_WAVE}, 1\ns_lshl_b32 s{T}, s{T}, 15\ns_add_u32 s{S_FBO2}, s{S_FBO2}, s{T}')
    B(V_LC, [(0, 6, 2)], ('lit', LDS3))
    S([(S_H, 13), (S_J, 11)], WS_KX); B(V_KX, [(4, 2, 9), (0, 4, 4)], T+1)
    p(f'''
    v_and_b32 v{a}, 2, v{L}
    v_cmp_eq_u32 vcc, 0, v{a}
    v_mov_b32 v{a}, 0x4444
    v_mov_b32 v{b}, 0xeeee
    v_cndmask_b32 v{V_IDX1}, v{b}, v{a}, vcc
    v_mov_b32 v{a}, 0xe484
    v_mov_b32 v{b}, 0xee9e
    v_cndmask_b32 v{V_IDX2}, v{b}, v{a}, vcc
    v_mov_b32 v{a}, 0x84e4
    v_mov_b32 v{b}, 0x9eee
    v_cndmask_b32 v{a}, v{b}, v{a}, vcc
    v_cmp_gt_u32 vcc, 32, v{L}
    v_cndmask_b32 v{V_IDX2}, v{a}, v{V_IDX2}, vcc
    ''')
    for k in range(4): p(f'v_mov_b32 v{V_SENT+k}, -1')
    for k in range(8): p(f'v_mov_b32 v{V_ONES+k}, {"0" if k % 4 == 3 else "0x3f803f80"}')
    for tq in range(4): p(f'v_mov_b32 v{V_BW+8*tq+3}, 0\nv_mov_b32 v{V_BW+8*tq+7}, 0')
    B(a, [(0, 1, 4)]); p(f'v_mov_b32 v{b}, 0x3f80\nv_lshlrev_b32 v{a}, v{a}, v{b}')
    B(b, [(1, 3, 0)])
    for k in range(8): p(f'v_cmp_eq_u32 vcc, {k}, v{b}\nv_cndmask_b32 v{V_SELA+k}, 0, v{a}, vcc')
    B(a, [(3, 1, 4)]); p(f'v_mov_b32 v{b}, 0x3f80\nv_lshlrev_b32 v{a}, v{a}, v{b}')
    B(b, [(2, 1, 0)])
    for k in range(2): p(f'v_cmp_eq_u32 vcc, {k}, v{b}\nv_cndmask_b32 v{V_SELM+k}, 0, v{a}, vcc')
    S([(S_WAVE, 10)], LDS1); B(a, [(4, 2, 8), (1, 3, 4), (0, 1, 3)], T+1)
    B(b, [(4, 2, 5)])
    p(f'v_xor_b32 v{V_L1W}, v{a}, v{b}\nv_xor_b32 v{V_L1WK}, 16, v{V_L1W}\nv_add_u32 v{V_L1WK}, 4096, v{V_L1WK}')
    B(b, [(4, 1, 6), (5, 1, 5)])
    p(f'v_xor_b32 v{V_L1WV}, v{a}, v{b}\nv_add_u32 v{V_L1WV}, 8192, v{V_L1WV}')
    S([(S_WAVE, 11)], LDS2); B(a, [(4, 2, 9), (0, 4, 4)], T+1)
    B(b, [(4, 2, 6)])
    p(f'v_xor_b32 v{V_L2W0}, v{a}, v{b}\nv_xor_b32 v{V_L2W1}, 32, v{V_L2W0}')
    if sB: p(f's_and_b32 s{T}, s{S_WAVE}, 1'); S([(T, 7)], LDS2); B(a, [(3, 2, 9), (1, 1, 8), (5, 1, 6), (2, 1, 5), (0, 1, 4)], T+1)
    else: S([(S_WAVE, 6)], LDS2); B(a, [(3, 2, 9), (1, 1, 8), (2, 1, 5), (0, 1, 4)], T+1)
    B(b, [(3, 2, 6), (1, 1, 5)])
    p(f'v_xor_b32 v{V_L2R}, v{a}, v{b}')
    S([(S_H, 13)], WS_M2 + M2_A, T+5)
    p(f'''
    s_cmp_eq_u32 s{S_WAVE}, 1
    s_cbranch_scc1 R_su1
    s_cmp_eq_u32 s{S_WAVE}, 2
    s_cbranch_scc1 R_su2
    s_cmp_eq_u32 s{S_WAVE}, 3
    s_cbranch_scc1 R_su3
    ''')
    B(a, [(3, 1, 12), (0, 3, 7), (4, 2, 5)], ('lit', LDS1) if LDS1 else None)
    B(b, [(1, 2, 5), (3, 1, 4)])
    p(f'v_xor_b32 v{V_L1R}, v{a}, v{b}\nv_xor_b32 v{V_L1R2}, 16, v{V_L1R}')
    S([(T+5, 0), (S_J, 8)]); B(V_P0, [(5, 1, 10), (1, 2, 6), (4, 1, 5), (0, 1, 4)], T+1)
    S([(T+5, 0), (S_J, 7)], 2048); B(V_P1, [(1, 2, 5), (4, 1, 4), (0, 1, 3)], T+1)
    S([(S_H, 11), (S_J, 9)], WS_KM); B(V_PST, [(4, 2, 7), (0, 3, 4)], T+1)
    B(a, [(3, 1, 0)]); only(V_P0, f'v_cmp_eq_u32 vcc, 0, v{a}'); only(V_PST, f'v_cmp_eq_u32 vcc, 1, v{a}')
    B(a, [(3, 1, 0), (5, 1, 1)]); only(V_P1, f'v_cmp_eq_u32 vcc, 2, v{a}')
    p('s_branch R_sud\nR_su1:')
    p(f'v_cmp_gt_u32 vcc, 32, v{L}')
    S([(T+5, 0), (S_J, 8)]); B(a, [(4, 1, 10), (0, 4, 4)], T+1)
    S([(T+5, 0), (S_JV, 9)], 3072); B(b, [(0, 5, 4)], T+1)
    p(f'v_cndmask_b32 v{V_P0}, v{b}, v{a}, vcc')
    S([(S_XCD, 14), (S_IDX, 9)], WS_M2); B(a, [(0, 5, 4)], T+1)
    S([(T+5, 0), (S_J, 7)], 2048); B(b, [(0, 3, 4)], T+1)
    p(f'v_cndmask_b32 v{V_P1}, v{b}, v{a}, vcc')
    S([(S_C, 14), (S_V, 7)]); B(V_KX, [(0, 3, 4), (3, 2, 10), (5, 1, 18)], T+1)
    if not o.get('nB2'): only(V_KX, f'v_cmp_gt_u32 vcc, 32, v{L}')
    p(f'v_mov_b32 v{V_PST}, 0\nv_mov_b32 v{V_L1R}, 0\nv_mov_b32 v{V_L1R2}, 0\ns_branch R_sud\nR_su2:')
    B(a, [(5, 1, 6), (2, 1, 5), (3, 2, 3), (1, 1, 2), (0, 1, 9)], ('lit', LDS1 + 8192))
    B(b, [(0, 1, 5)])
    p(f'v_xor_b32 v{V_L1R}, v{a}, v{b}\nv_xor_b32 v{V_L1R2}, 64, v{V_L1R}')
    S([(S_H, 11), (S_JV, 9)], WS_VM); B(V_PST, [(0, 6, 3)], T+1)
    p(f'v_mov_b32 v{V_P0}, 0\nv_mov_b32 v{V_P1}, 0\ns_branch R_sud\nR_su3:')
    B(a, [(1, 1, 9), (3, 2, 7), (5, 1, 6), (2, 1, 5), (0, 1, 4)], ('lit', LDS1 + 8192))
    B(b, [(4, 1, 6), (1, 1, 5)])
    p(f'v_xor_b32 v{V_L1R}, v{a}, v{b}')
    S([(T+5, 0), (S_JV, 9)], 3072); B(V_P0, [(0, 6, 3)], T+1)
    S([(S_C, 14), (S_V, 7)], 4096); B(V_KX, [(0, 3, 4), (3, 2, 10), (5, 1, 18)], T+1)
    if not o.get('nB2'): only(V_KX, f'v_cmp_gt_u32 vcc, 32, v{L}')
    p(f'v_mov_b32 v{V_L1R2}, 0\nv_mov_b32 v{V_P1}, 0\nv_mov_b32 v{V_PST}, 0\nR_sud:')

def r_weights(p, o):
    T = S_T
    c_ = V_T+7
    W1o, WOo, WVo = V_T+24, V_T+28, V_T+32
    lqk, lv_, lo, ad = V_T+8, V_T+9, V_T+10, V_T+11
    hq, ho = V_T+36, V_T+37
    B = lambda dst, terms, base=None: p(bits(dst, terms, base, c_))
    NS = o.get('NS', 8)
    SO, SM = S_KXO, S_VXO
    p(f"""
    s_load_dwordx2 s[{T}:{T+1}], s[0:1], 16
    s_load_dwordx2 s[{T+2}:{T+3}], s[0:1], 24
    s_load_dwordx2 s[{T+4}:{T+5}], s[0:1], 32
    s_load_dwordx2 s[{T+6}:{T+7}], s[0:1], 40
    s_mul_i32 s{SM}, s{S_WAVE}, {NS*4096}
    """)
    p(ssum(S_SRD, [(S_WAVE, 21), (S_H, 8), (S_J, 6)], 0, S_SRD+1))
    B(W1o, [(2, 4, 13), (0, 2, 4)], S_SRD)
    for j in range(1, 4): p(f'v_add_u32 v{W1o+j}, {j*16*8192 - 1024*j}, v{W1o}')
    for j in range(4): p(f'v_xor_b32 v{WVo+j}, 128, v{W1o+j}')
    p(ssum(S_SRD, [(S_V, 20), (S_WAVE, 18), (S_C, 7)], 0, S_SRD+1))
    B(WOo, [(3, 3, 11), (0, 3, 4)], S_SRD)
    for j in range(1, 4): p(f'v_add_u32 v{WOo+j}, {j*8*2048 - 1024*j}, v{WOo}')
    p(f's_mov_b32 s{S_SRD+2}, 0x800000\ns_mov_b32 s{S_SRD+3}, 0x20000\ns_waitcnt lgkmcnt(0)')
    order = [(m, i) for pr in o.get('word', ((1, 2), (0, 3))) for i in range(4) for m in pr]
    def issue1(k, j):
        mat, i = order[k]
        return [f's_mov_b32 s{S_SRD}, s{T+2*mat}\ns_mov_b32 s{S_SRD+1}, s{T+2*mat+1}', f's_add_u32 m0, s{SM}, {(k % NS)*4096}',
                f's_mov_b32 s{SO}, {64*i*8192 if mat < 3 else 32*i*2048}',
                f'buffer_load_dwordx4 v{[W1o, W1o, WVo, WOo][mat]+j}, {sr(S_SRD,4)}, s{SO} offen offset:{1024*j} {o.get("ntw", [""]*4)[mat]} lds']
    def issue(k):
        return [x for kk in (k, k+1) for j in range(4) for x in (issue1(kk, j) if j == 0 else issue1(kk, j)[-1:])]
    if o.get('help', 1):
        p(ssum(SO, [(S_IDX, 18), (S_WAVE, 16), (S_XCD, 11)], 0x180, S_WUO)); B(hq, [(1, 3, 13), (0, 1, 10)], SO)
        p(ssum(SO, [(S_XCD, 21), (S_IDX, 16), (S_WAVE, 14)], 0x180, S_WUO)); B(ho, [(0, 4, 10)], SO)
    def helper(mats):
        p('s_mov_b64 exec, 0xffff')
        for mat in mats: p(f's_mov_b32 s{S_SRD}, s{T+2*mat}\ns_mov_b32 s{S_SRD+1}, s{T+2*mat+1}\n' + ld(1, V_T+38, hq if mat < 3 else ho, '0', 0, '', S_SRD))
        p('s_mov_b64 exec, -1')
    assert NS == 8
    p(f's_buffer_load_dword s{S_JUNK}, {sr(S_WS,4)}, 0x7f000')
    helper((1, 2))
    for k in range(0, NS, 2):
        if k == o.get('help2', 6): helper((0, 3))
        p(issue(k))
    B(lqk, [(5, 1, 10), (4, 1, 8), (1, 1, 5), (2, 2, 3), (0, 1, 2)], SM)
    B(lv_, [(5, 1, 10), (4, 1, 8), (0, 1, 5), (3, 1, 4), (1, 1, 3), (2, 1, 2)], SM)
    B(lo, [(4, 2, 9), (0, 4, 3)], SM)
    if o.get('hook_race'): o['hook_race'](p, 4*NS + 4)
    sb = 72
    for k in range(16):
        mat, i = order[k]
        if k % 2 == 0: p(f's_waitcnt vmcnt({4*(min(k+NS-1, 15) - k - 1) + (4 if k + NS > 16 else 0)})')
        for R in range(2):
            p(f'v_add_u32 v{ad}, {(k % NS)*4096 + R*2048}, v{[lqk, lqk, lv_, lo][mat]}')
            if mat < 3:
                for vv in range(4):
                    o0 = 128*(vv & 1) + 32*(vv >> 1)
                    p(f'ds_read2_b32 {vr(sb+2*(4*R+vv),2)}, v{ad} offset0:{o0} offset1:{o0+16}')
            else:
                for v1 in range(2): p(f'ds_read2_b64 {vr(sb+4*(2*R+v1),4)}, v{ad} offset0:{32*v1} offset1:{32*v1+16}')
        p('s_waitcnt lgkmcnt(0)')
        if k % 2 == 1 and k + NS < 16: p(issue(k - 1 + NS))
        if k + NS == 16:
            p(f's_load_dwordx2 s[{T}:{T+1}], s[0:1], 8\ns_lshl_b32 s{SO}, s{S_WAVE}, 9')
            B(W1o, [(2, 2, 12), (0, 1, 11), (4, 2, 5), (1, 1, 4)])
            p(f's_waitcnt lgkmcnt(0)\ns_mov_b32 s{S_SRD}, s{T}\ns_mov_b32 s{S_SRD+1}, s{T+1}\ns_mov_b32 s{S_SRD+2}, 16384')
            for q in range(4): p(ld(4, V_T+40+4*q, W1o, SO, 128*q, '', S_SRD))
        if mat < 3:
            for v in range(8):
                p(f'v_perm_b32 v{V_T+12}, v{sb+2*v+1}, v{sb+2*v}, s{S_PERM0}\nv_perm_b32 v{V_T+13}, v{sb+2*v+1}, v{sb+2*v}, s{S_PERM1}')
                p(f'v_accvgpr_write_b32 a{W1(mat,0,i)+v}, v{V_T+12}\nv_accvgpr_write_b32 a{W1(mat,1,i)+v}, v{V_T+13}')
        else:
            ks, R = i >> 1, i & 1
            for vv in range(4):
                for tq in range(4): p(f'v_perm_b32 v{V_T+12+tq}, v{sb+4*vv+2+(tq>>1)}, v{sb+4*vv+(tq>>1)}, s{S_PERM0 + (tq&1)}')
                for tq in range(4): p(f'v_accvgpr_write_b32 a{WO(tq,ks)+4*R+vv}, v{V_T+12+tq}')
    p('s_barrier')

def vwx_groups(reload_so):
    ACC = V_T
    out = []
    for T_ in range(2):
        for u in range(4):
            grp = []
            q = V_VXD + (T_*4+u)*4
            for tq in range(4):
                d = ACC + (T_*4+tq)*4
                grp.append(f'v_mfma_f32_16x16x32_bf16 {vr(d,4)}, {vr(q,4)}, {ar(WO(tq,u>>1)+4*(u&1),4)}, {"0" if u == 0 else vr(d,4)}')
            grp.append(ld(4, q, V_VX0 + (u >> 1), reload_so, (u & 1)*2048 + T_*128))
            out.append(grp)
    return out
def vwx_cvt(T_):
    ACC = V_T; out = []
    for tq in range(4):
        d = ACC + (T_*4+tq)*4
        out.append(f'v_cvt_pk_bf16_f32 v{V_BW+8*tq+4*T_}, v{d}, v{d+1}')
        out.append(f'v_cvt_pk_bf16_f32 v{V_BW+8*tq+4*T_+1}, v{d+2}, v{d+3}')
    return out
def delay(n):
    out = []
    while n > 0:
        k = min(n, 16); out.append('s_nop %d' % (k-1)); n -= k
    return out
def budget(): return f's_sub_u32 s{S_BUD}, s{S_BUD}, 1\ns_max_i32 s{S_BUD}, s{S_BUD}, 0'

def r_loop(p, o, sfx='', pl=''):
    T = S_T
    def stamp(k):
        if o.get('trace'): p(f's_mem{"real" if o["trace"] == 1 else ""}time s[{S_ST+2*k}:{S_ST+2*k+1}]')
        if o.get('trace') == 2 and k == 6: p(f's_memrealtime s[{S_ST+20}:{S_ST+21}]')
    def count(k):
        if o.get('counts'): p(f's_add_u32 s{S_ST+16+k}, s{S_ST+16+k}, 1')
    MEM = V_T
    a = V_T+36
    if o.get('kvwait'):
        p(f'''
        v_mov_b32 v{a}, 0
        R_kv0{sfx}:
        v_readfirstlane_b32 s{S_KVF}, v{a+1}
        s_and_b32 s{T}, s{S_KVF}, 0xff
        s_cmp_ge_u32 s{T}, 8
        s_cbranch_scc1 R_kv0k{sfx}
        s_cmp_eq_u32 s{S_BUD}, 0
        s_cbranch_scc1 R_kv0k{sfx}
        {ld(1, a+1, a, S_KVO)}
        {budget()}
        s_waitcnt vmcnt(0)
        s_branch R_kv0{sfx}
        R_kv0k{sfx}:
        ''')
    p(f's_mov_b32 s{S_VXO}, 0')
    for T_ in range(2):
        for u in range(4): p(ld(4, V_VXD+(T_*4+u)*4, V_VX0+(u>>1), S_VXO, (u&1)*2048 + T_*128))
    for T_ in range(2): p(ld(4, V_KXD+4*T_, V_KX, S_VXO, T_*256))
    p(zero(V_ACC1, 60))
    p(f's_mov_b32 s{S_VXO}, 0x40000')
    for k, grp in enumerate(vwx_groups(S_VXO)): p('s_waitcnt vmcnt(9)'); p(grp)
    p(vwx_cvt(0)); p(vwx_cvt(1))
    for k in range(0, 16, 2): p(f'v_mov_b64 {vr(MEM+k,2)}, {vr(V_T+40+k,2)}')
    p(f'''
    s_mov_b32 s{S_STEP}, 0
    s_mov_b32 s{S_CUR}, 0
    s_mov_b32 s{S_NXT}, 0x80000
    s_mov_b32 s{S_RST}, 0x100000
    s_mov_b32 s{S_KXO}, 0x40000
    s_mov_b32 s{S_VXO}, 0x80000
    s_mov_b32 s{S_WUO}, 0xc0000
    s_mov_b32 s{S_KMO}, 0
    s_lshl_b32 s{T}, s{S_POL}, 13
    v_add_u32 v{V_BST}, s{T}, v{V_BST}
    v_add_u32 v{V_BLD}, s{T}, v{V_BLD}
    v_mov_b32 v{V_TAG}, 1
    v_add_u32 v{V_WU}, s{T}, v{V_WU}
    s_add_u32 s{S_FBO2}, s{S_FBO2}, s{T}
    s_mov_b32 s{S_TB}, 1
    v_mov_b32 v{V_TB}, 1
    ds_write_b32 v{V_LC}, v{V_TB}
    s_mov_b64 s[{S_FB8}:{S_FB8+1}], 0
    s_mov_b64 s[{S_FB8+2}:{S_FB8+3}], 0
    s_mov_b64 s[{S_FB8+4}:{S_FB8+5}], 0
    s_mov_b64 s[{S_FB8+6}:{S_FB8+7}], 0
    s_bitcmp1_b32 s{S_WAVE}, 0
    s_cselect_b32 s{T+1}, s{T}, 0
    v_add_u32 v{V_KX}, s{T+1}, v{V_KX}
    s_mov_b32 s{S_TAG}, 1
    s_mov_b32 s{S_PVX}, 0x40000
    ''')
    if o.get('trace'):
        p(f's_lshl2_add_u32 s{T}, s2, s{S_WAVE}\ns_lshl_b32 s{T}, s{T}, 12\ns_add_u32 s{T}, s{T}, {WS_TRACE}\nv_lshl_add_u32 v254, v{V_LANE}, 2, s{T}\nv_mov_b32 v255, 0')
    if o.get('trace') or o.get('counts'):
        for k in range(0, 20): p(f's_mov_b32 s{S_ST+k}, 0')
    if o.get('total'): p(f's_memtime s[{S_ST+22}:{S_ST+23}]\ns_memrealtime s[{S_ST+24}:{S_ST+25}]')
    p(f's_waitcnt lgkmcnt(0)\ns_mov_b32 s{S_NOCHK}, 0')
    for w in range(1, 4): p(f's_cmp_eq_u32 s{S_WAVE}, {w}\ns_cbranch_scc1 R_cw0{sfx}{w}')
    p(f's_branch R_cw0{sfx}0')
    for w in range(4): r_body(p, o, sfx + str(w), pl, stamp, count, w, f'R_fin{sfx}')
    c0, c1 = V_T, V_T+1
    p(f'''
    R_fin{sfx}:
    s_waitcnt vmcnt(0) lgkmcnt(0)
    s_barrier
    s_cmp_eq_u32 s{S_WAVE}, 0
    s_cbranch_scc0 R_l3{sfx}
    s_lshl_b32 s{T}, s{S_V}, 8
    s_add_u32 s{T}, s{T}, {F_FIN_}
    v_mov_b32 v{c0}, 0
    v_mov_b32 v{c1}, 1
    s_mov_b64 exec, 1
    buffer_atomic_add v{c1}, v{c0}, {sr(S_WS,4)}, s{T} offen sc1
    s_mov_b64 exec, -1
    R_l3{sfx}:
    ''')


class VQ:
    def __init__(self, p): self.p = p; self.q = []
    def __call__(self, x, tag=None):
        if isinstance(x, (list, tuple)):
            for y in x: self(y, tag)
            return
        for line in x.split('\n'):
            line = line.strip()
            if line.startswith('@wait'): line = self.wait(line.split()[1])
            t = tag
            if '@' in line: line, t = line.split('@')
            if line.startswith('buffer_'): self.q.append(t)
            self.p(line)
    def unknown(self): self.q.append('?')
    def wait(self, tag):
        n = 0
        for t in reversed(self.q):
            if t == tag or t == '?': break
            n += 1
        else: raise KeyError(tag)
        return f's_waitcnt vmcnt({n})'

def r_body(p0, o, sfx, pl, stamp, count, w, fin_lbl):
    T = S_T
    p = VQ(p0)
    MEM = V_T; X = V_T + 32
    c0, c1 = V_T+58, V_T+59
    lines = lambda t: [x.strip() for x in t.split('\n') if x.strip()]
    g = lambda k, d: (o[k][w] if isinstance(o.get(k), (list, tuple)) else o.get(k, d))
    tr = o.get('trace')
    keep = [st(4, V_KEEP, V_PST, S_KMO, 0, 'sc1'), None, st(2, V_KEEP, V_PST, S_KMO, 0, 'sc1'), None][w]
    side = [keep] if keep else [st(4, V_SENT, V_KX, S_RST, 0, 'sc1')]
    if w == 1: side.append(st(1, V_TAG, V_PRG, '0', 0, 'sc1'))
    kxl = [ld(4, V_KXD, V_KX, S_KXO, 0), ld(4, V_KXD+4, V_KX, S_KXO, 256)] if w == 0 else []
    kx = o.get('kx', 'gap')
    spf = lambda base, so: [f's_add_u32 s{T}, s{base}, s{so}'] + [f's_buffer_load_dwordx2 {sr(S_M_F,2)}, {sr(S_WS,4)}, s{T} offset:{128*k+60}' for k in range(4)]
    pfv = spf(S_PFV, S_WUO) if 'v' in o.get('wu', 'vk') else []
    pfk = spf(S_PFK, S_VXO) if 'k' in o.get('wu', 'vk') else []
    postA = st(1, V_TAG, V_FA, '0', 0, pl); pA = o.get('pA', 1)
    postC = [f's_mov_b32 s{T+4}, 16384', st(1, V_TAG, V_FA, T+4, 0, pl)]
    class Rot:
        def __init__(self, reg, ad): self.reg, self.ad, self.k = reg, ad, 0
        def __call__(self):
            self.k += 1; return ld(1, self.reg, self.ad, '0', 1024*(self.k % o.get('nrep', 4)))
    FA_, FC_ = Rot(V_FAV, V_FAL), Rot(V_FCV, V_FCL)
    sA = o.get('syncA', 1); sC = o.get('syncC', 1)
    def pacer(lbl, reg, tag):
        return [f'v_cmp_gt_i32 vcc, s{tag}, v{reg}', f's_cbranch_vccz {lbl}_ok'] * o.get('pace', 3)
    def spin(lbl, reg, poll, tag):
        out = [f's_min_u32 s{S_SPIN}, s{S_BUD}, 1000', f'{lbl}:']
        for k in range(4): out += [f'v_cmp_gt_i32 vcc, s{tag}, v{reg}', f's_cbranch_vccz {lbl}_ok', poll()] + pacer(lbl, reg, tag)
        out += [f's_sub_u32 s{S_SPIN}, s{S_SPIN}, 1', f's_cbranch_scc0 {lbl}', f'{lbl}_ok:']
        p0(out); p.unknown()
    order = [4, 5, 0, 1, 2, 3]
    mf = lambda i: [f'v_smfmac_f32_16x16x64_bf16 {vr(V_ACC1+t6*4,4)}, {vr(MEM+4*i,4)}, {ar(W1(t6>>1,t6&1,i),8)}, v{V_IDX1}' for t6 in order]
    def chk(i): return [f'v_max3_u32 v{c0}, v{MEM+4*i}, v{MEM+4*i+1}, v{MEM+4*i+2}', f'v_max_u32 v{c0}, v{c0}, v{MEM+4*i+3}', f'v_cmp_eq_u32 vcc, -1, v{c0}']
    def s1_red(mat):
        D0, D1 = V_ACC1+mat*8, V_ACC1+mat*8+4
        R = X + 4*mat
        ad = [V_L1W, V_L1WK, V_L1WV][mat]
        return [f'v_pk_add_f32 {vr(R,2)}, {vr(D0,2)}, {vr(D0+2,2)}', f'v_pk_add_f32 {vr(R+2,2)}, {vr(D1,2)}, {vr(D1+2,2)}',
                f'ds_write2_b32 v{ad}, v{R}, v{R+2} offset0:0 offset1:1', f'ds_write2_b32 v{ad}, v{R+1}, v{R+3} offset0:32 offset1:33']
    grps = vwx_groups(S_VXO)
    nvx = o.get('nvx', 4)
    vx2 = [gr[-1].replace(f', s{S_VXO} ', f', s{S_PVX} ') + '@vx' for gr in grps[8-nvx:]] if nvx else []
    vxf = o.get('vxf', 2)
    upd2 = lines(f"""
    s_add_u32 s{S_STEP}, s{S_STEP}, 1
    s_add_u32 s{S_TAG}, s{S_TAG}, 1
    v_mov_b32 v{V_TAG}, s{S_TAG}
    s_lshl_b32 s{S_TB}, 1, s{S_STEP}
    v_mov_b32 v{V_TB}, s{S_TB}
    s_add_u32 s{S_KXO}, s{S_KXO}, 0x40000
    s_mov_b32 s{S_PVX}, s{S_VXO}
    s_add_u32 s{S_VXO}, s{S_VXO}, 0x40000
    s_min_u32 s{S_VXO}, s{S_VXO}, {(NSEG-1) << 18}
    s_add_u32 s{S_WUO}, s{S_WUO}, 0x40000
    s_min_u32 s{S_WUO}, s{S_WUO}, {(NSEG-1) << 18}
    s_add_u32 s{S_KMO}, s{S_KMO}, 0x10000
    s_add_u32 s{S_NXT}, s{S_NXT}, 0x80000
    s_and_b32 s{S_NXT}, s{S_NXT}, 0x180000
    s_xor_b32 s{S_RST}, s{S_CUR}, 0x100000
    s_mov_b32 s{S_NOCHK}, s{S_BUD}
    """)
    nC = o.get('nC', 0)
    assert nC <= nvx
    cm = [x for gr in grps[8-nC:] for x in gr[:-1]] if nC else []
    cwork = upd2[:1] + weave(cm, upd2[1:] + zero(V_VWM, 36), 0, 1, 2) + (['s_nop 0']*8 if o.get('noVW') else vwx_cvt(1))
    def taker(work):
        def take(n):
            while n > 0 and work:
                x = work.pop(0); p(x); n -= 2 if x.startswith('v_mfma') else 1
            p(delay(n))
        return take
    for i in range(4):
        p0(f'R_cr{i}{sfx}:\ns_cmp_eq_u32 s{S_NOCHK}, 0\ns_cbranch_scc1 R_cg{i}{sfx}')
        for k in range(i, 4): p0(ld(4, MEM+4*k, V_CLD, S_CUR, 1024*k))
        count(0); p0(budget())
        p0(f's_mov_b32 s{S_NOCHK}, s{S_BUD}\ns_waitcnt vmcnt({3-i})'); p0(chk(i))
        p0(f's_cbranch_vccz R_cg{i}{sfx}\ns_branch R_cr{i}{sfx}')
    p(f'R_step{sfx}:')
    take = taker(cwork)
    if sC:
        take(1); p(FC_()); take(max(o.get('dC', 20) - 1, 0))
        spin(f'R_fc{sfx}', V_FCV, FC_, S_STEP)
        take(o.get('dC2', 0))
    else: take(o.get('dC', 30))
    for i in range(4):
        p(ld(4, MEM+4*i, V_CLD, S_CUR, 1024*i), f'c{i}')
        if i < 3: take(o.get('gC', 0))
    p(cwork)
    p(f'R_cw0{sfx}:\n@wait c0'); p(chk(0))
    pre = o.get('preA', 2) if sA else 0
    for i in range(4):
        p(f's_cbranch_vccnz R_cr{i}{sfx}\nR_cg{i}{sfx}:')
        m = mf(i)
        if i < 3:
            ck = chk(i+1)
            p(m[:3] + [f'@wait c{i+1}', m[3], ck[0], m[4], ck[1], m[5], ck[2]])
        else:
            stamp(0)
            rv = s1_red(2)
            p([m[0]] + ([postA] if pA == 0 else []) + [m[1], m[2], rv[0], m[3], rv[1], m[4], rv[2], m[5], rv[3]])
    Q = V_T + 16
    if pA == 1: p(postA)
    if pre >= 4: p(FA_())
    p(s1_red(0))
    if pA == 2: p(postA)
    if pre >= 3: p(FA_())
    p(s1_red(1))
    if pA == 3: p(postA)
    if pre >= 2: p(FA_())
    p(f's_cmp_eq_u32 s{S_STEP}, {NSEG-1}\ns_waitcnt lgkmcnt(4)\ns_barrier')
    if w == 3:
        for wv in range(4): p(f'ds_read_b128 {vr(Q+4*wv,4)}, v{V_L1R} offset:{wv*1024}')
    if pre >= 1: p(FA_())
    p(f's_waitcnt lgkmcnt({4 if w == 3 else 0})\ns_barrier')
    stamp(1)
    GV = V_T + 44; GX = V_T
    lv = [ld(4, GV, V_ALV, S_CUR, 0), ld(4, GV+4, V_ALV, S_CUR, 1024) + '@v']
    ls = [ld(4, GX, V_ALD, S_CUR, 0) + '@x0', ld(4, GX+4, V_ALD, S_CUR, 1024) + '@x1', ld(2, GX+8, V_ALM, S_CUR, 0) + '@m']
    strip = lambda l: [x.split('@')[0] for x in l]
    zw = zero(V_ACC1, 24)
    ool = []
    def vt_persist():
        out = []
        for r in range(4):
            ad = V_L1R if r < 2 else V_L1R2
            for wv in range(4): out.append(f'ds_read_b32 v{Q+4*wv+r}, v{ad} offset:{wv*1024 + r*128}')
        fin_ = ['s_waitcnt lgkmcnt(0)']
        for wv in range(1, 4):
            for k in (0, 2): fin_.append(f'v_pk_add_f32 {vr(Q+k,2)}, {vr(Q+k,2)}, {vr(Q+4*wv+k,2)}')
        fin_ += [f'v_cvt_pk_bf16_f32 v{V_KEEP}, v{Q}, v{Q+1}', f'v_cvt_pk_bf16_f32 v{V_KEEP+1}, v{Q+2}, v{Q+3}']
        return out, fin_
    if w == 0:
        Q0 = V_T
        for wv in range(4):
            p(f'ds_read_b128 {vr(Q0+8*wv,4)}, v{V_L1R} offset:{wv*1024}\nds_read_b128 {vr(Q0+8*wv+4,4)}, v{V_L1R2} offset:{wv*1024}')
        if sA: p(FA_())
        p('s_waitcnt lgkmcnt(4)')
        for k in range(0, 8, 2): p(f'v_pk_add_f32 {vr(Q0+k,2)}, {vr(Q0+k,2)}, {vr(Q0+8+k,2)}')
        p('s_waitcnt lgkmcnt(2)')
        for k in range(0, 8, 2): p(f'v_pk_add_f32 {vr(Q0+k,2)}, {vr(Q0+k,2)}, {vr(Q0+16+k,2)}')
        p('s_waitcnt lgkmcnt(1)')
        for k in range(0, 4, 2): p(f'v_pk_add_f32 {vr(Q0+k,2)}, {vr(Q0+k,2)}, {vr(Q0+24+k,2)}')
        for k in range(2): p(f'v_cvt_pk_bf16_f32 v{V_KEEP+k}, v{Q0+2*k}, v{Q0+2*k+1}')
        p('s_waitcnt lgkmcnt(0)')
        for k in range(4, 8, 2): p(f'v_pk_add_f32 {vr(Q0+k,2)}, {vr(Q0+k,2)}, {vr(Q0+24+k,2)}')
        for k in range(2, 4): p(f'v_cvt_pk_bf16_f32 v{V_KEEP+k}, v{Q0+2*k}, v{Q0+2*k+1}')
        p(f's_cbranch_scc1 R_last{sfx}')
        ool += [f'R_last{sfx}:', keep, f's_branch {fin_lbl}']
        S = V_T + 32; SP = V_T + 52
        mm = [f'v_mfma_f32_16x16x32_bf16 {vr(S+4,4)}, {vr(V_KXD,4)}, {vr(V_KEEP,4)}, 0',
              f'v_mfma_f32_16x16x32_bf16 {vr(S+8,4)}, {vr(V_KXD+4,4)}, {vr(V_KEEP,4)}, 0',
              f'v_mfma_f32_16x16x32_bf16 {vr(S,4)}, {vr(V_KEEP,4)}, {vr(V_KEEP,4)}, 0']
        pub = lines(f"""
        v_cvt_pk_bf16_f32 v{SP}, v{S+4}, v{S+5}
        v_cvt_pk_bf16_f32 v{SP+1}, v{S+6}, v{S+7}
        v_cvt_pk_bf16_f32 v{SP+2}, v{S+8}, v{S+9}
        v_cvt_pk_bf16_f32 v{SP+3}, v{S+10}, v{S+11}
        {st(4, SP, V_P0, S_CUR, 0, pl)}
        v_cvt_pk_bf16_f32 v{c0}, v{S}, v{S+1}
        v_cvt_pk_bf16_f32 v{c1}, v{S+2}, v{S+3}
        {st(2, c0, V_P1, S_CUR, 0, pl)}
        """)
        take = taker(zw)
        if sA and o.get('ev0', 1):
            p([f'v_cmp_gt_i32 vcc, s{S_TAG}, v{V_FAV}', mm[0], f's_cbranch_vccnz R_nv{sfx}', lv[0], mm[1], lv[1], mm[2]] + pub)
            p.unknown()
            stamp(2)
            take(o.get('dA0', 16))
            p(f'R_nvj{sfx}:')
            sub = Prog(); q2 = VQ(sub)
            sub([f'R_nv{sfx}:', FA_(), mm[1], mm[2]] + pub + zero(V_ACC1, 24)[:min(12, o.get('dA0', 16))])
            if tr: sub(f's_memtime s[{S_ST+4}:{S_ST+5}]')
            sub([f's_min_u32 s{S_SPIN}, s{S_BUD}, 2000', f'R_fa{sfx}:'])
            for k in range(4): sub([f'v_cmp_gt_i32 vcc, s{S_TAG}, v{V_FAV}', f's_cbranch_vccz R_fa{sfx}_ok', FA_()] + pacer(f'R_fa{sfx}', V_FAV, S_TAG))
            sub([f's_sub_u32 s{S_SPIN}, s{S_SPIN}, 1', f's_cbranch_scc0 R_fa{sfx}', f'R_fa{sfx}_ok:'] + strip(lv) + delay(o.get('dS0', 24)) + [f's_branch R_nvj{sfx}'])
            ool += sub.L
        else:
            p(mm + pub)
            stamp(2)
            if sA: spin(f'R_fa{sfx}', V_FAV, FA_, S_TAG)
            p(lv); take(o.get('dA0', 16))
        p(ls); p(zw)
    else:
        if w == 3:
            if sA and o.get('pre3', 1): p(FA_())
            for wv in range(1, 4):
                p(f's_waitcnt lgkmcnt({3-wv})')
                for k in (0, 2): p(f'v_pk_add_f32 {vr(Q+k,2)}, {vr(Q+k,2)}, {vr(Q+4*wv+k,2)}')
            p(f'v_cvt_pk_bf16_f32 v{Q+4}, v{Q}, v{Q+1}\nv_cvt_pk_bf16_f32 v{Q+5}, v{Q+2}, v{Q+3}')
            p(st(2, Q+4, V_P0, S_CUR, 0, pl))
        if w == 2:
            rd, fin_ = vt_persist()
            p(f's_cbranch_scc1 R_last{sfx}')
            ool += [f'R_last{sfx}:'] + rd + fin_ + [keep, f's_branch {fin_lbl}']
        else: p(f's_cbranch_scc1 {fin_lbl}')
        if sA: spin(f'R_fa{sfx}', V_FAV, FA_, S_TAG)
        work = list(zw)
        if w == 2: work = rd + work
        take = taker(work)
        take(g('dV', 0))
        stamp(2)
        p(lv)
        take(g('dS', 36))
        p(ls); p(work)
        if w == 1: p([st(4, V_SENT, V_P0, S_RST, 0, pl), st(4, V_SENT, V_P1, S_RST, 0, pl)])
        if w == 2: p(fin_)
        if w == 3 and o.get('kvwait'):
            p(f's_and_b32 s{T}, s{S_KVF}, 0xff\ns_cmp_ge_u32 s{T}, 8\ns_cbranch_scc0 R_kvc{sfx}\nR_kvk{sfx}:')
            ool += lines(f"""
            R_kvc{sfx}:
            s_cmp_eq_u32 s{S_BUD}, 0
            s_cbranch_scc1 R_kvk{sfx}
            s_sleep 4
            s_buffer_load_dword s{S_KVF}, {sr(S_WS,4)}, s{S_KVO} glc
            {budget()}
            s_waitcnt lgkmcnt(0)
            s_and_b32 s{T}, s{S_KVF}, 0xff
            s_cmp_ge_u32 s{T}, 8
            s_cbranch_scc0 R_kvc{sfx}
            s_branch R_kvk{sfx}
            """)
    SX, SM = V_T+12, V_T+52
    mx, mt = V_T+10, V_T+11
    vwm = [f'v_smfmac_f32_16x16x64_bf16 {vr(V_VWM+4*tq,4)}, {vr(GV+4*ks,4)}, {ar(WO(tq,ks),8)}, v{V_IDX1}' for tq in range(4) for ks in range(2)]
    vwm_cvt = []
    for tq in range(4):
        D = V_VWM+4*tq
        vwm_cvt.append([f'v_pk_add_f32 {vr(D,2)}, {vr(D,2)}, {vr(D+2,2)}', f'v_cvt_pk_bf16_f32 v{V_BW+8*tq+2}, v{D}, v{D+1}', f'v_cvt_pk_bf16_f32 v{V_BW+8*tq+6}, v{D}, v{D+1}'])
    p(f"""
    @wait v
    R_aw0{sfx}:
    v_max3_u32 v{c0}, v{GV}, v{GV+1}, v{GV+2}
    v_max3_u32 v{c1}, v{GV+3}, v{GV+4}, v{GV+5}
    v_max3_u32 v{c0}, v{c0}, v{GV+6}, v{GV+7}
    v_max_u32 v{c0}, v{c0}, v{c1}
    v_cmp_eq_u32 vcc, -1, v{c0}
    s_cbranch_vccnz R_ar0{sfx}
    R_ag0{sfx}:
    """)
    p(vwm[:4] + weave(vwm[4:], vwm_cvt[0] + vwm_cvt[1][:1]))
    late = vwm_cvt[1][1:] + vwm_cvt[2] + vwm_cvt[3]
    def asum(fill, wt):
        return [wt[0], f'v_mfma_f32_16x16x32_bf16 {vr(SX,4)}, {vr(V_SELA,4)}, {vr(GX,4)}, 0',
        wt[1], f'v_mfma_f32_16x16x32_bf16 {vr(SX,4)}, {vr(V_SELB,4)}, {vr(GX+4,4)}, {vr(SX,4)}',
        wt[2], f'v_mfma_f32_16x16x16_bf16 {vr(SM,4)}, {vr(V_SELM,2)}, {vr(GX+8,2)}, 0'] + fill[:5] + [
        f'v_max3_f32 v{mx}, v{SX}, v{SX+1}, v{SX+2}'] + fill[5:] + [
        f'v_cmp_u_f32 vcc, v{SX}, v{SM}',
        f'v_max3_f32 v{mx}, v{mx}, v{SX+3}, v{SM}']
    p(asum(late[:7], ['@wait x0', '@wait x1', '@wait m']))
    p(f's_cbranch_vccnz R_ar1{sfx}\nR_ag1{sfx}:')
    stamp(3)
    E = V_T + 32
    src = [SX, SX+1, SM, SX+2, SX+3]
    prem = [f'v_mul_f32 v{E+k}, s{S_SCL}, v{src[k]}' for k in range(5)]
    sB = o.get('syncB', 1); pB = o.get('posB', 2)
    LR = V_T + 38
    postB = lambda k: (f's_waitcnt lgkmcnt(0)\nv_lshl_add_u32 v{LR}, v{LR}, 30, v{V_WU}\n' + st(1, V_TB, LR, '0', 0, 'sc1')) if (sB and pB == k) else ''
    p(f"""
    {f'ds_sub_rtn_u32 v{LR}, v{V_LC}, v{V_SENT}' if sB else ''}
    {prem[4]}
    v_max_f32_dpp v{mt}, v{mx}, v{mx} quad_perm:[2,3,0,1] row_mask:0xf bank_mask:0xf
    v_max_f32_dpp v{mx}, v{mx}, v{mx} quad_perm:[2,3,0,1] row_mask:0xf bank_mask:0xf
    {prem[0]}
    {prem[1]}
    v_permlane16_swap_b32 v{mx}, v{mt}
    v_max_f32 v{c0}, v{mx}, v{mt}
    v_max_f32 v{c1}, v{mx}, v{mt}
    {prem[2]}
    {prem[3]}
    v_permlane32_swap_b32 v{c0}, v{c1}
    v_max_f32 v{mx}, v{c0}, v{c1}
    {postB(1)}
    """)
    fm = [f'v_fma_f32 v{E+k}, -v{mx}, s{S_SCL}, v{E+k}' for k in range(5)]
    p(f"""
    {fm[0]}
    {fm[1]}
    v_exp_f32 v{E}, v{E}
    {fm[2]}
    v_exp_f32 v{E+1}, v{E+1}
    {fm[3]}
    v_exp_f32 v{E+2}, v{E+2}
    {fm[4]}
    v_exp_f32 v{E+3}, v{E+3}
    v_cvt_pk_bf16_f32 v{V_P}, v{E}, v{E+1}
    v_exp_f32 v{E+4}, v{E+4}
    v_cvt_pk_bf16_f32 v{V_P+1}, v{E+2}, 0
    v_cvt_pk_bf16_f32 v{V_P+3}, v{E+2}, 0
    v_cvt_pk_bf16_f32 v{V_P+2}, v{E+3}, v{E+4}
    {late[7]}
    {f's_add_u32 s{S_CU1}, s{S_CUR}, 0x40000' if o.get('nB2') else ''}
    {postB(2)}
    """)
    fin = [f'v_smfmac_f32_16x16x64_bf16 {vr(V_FIN,4)}, {vr(V_P,4)}, {vr(V_ONES,8)}, v{V_IDX2}'] + \
          [f'v_smfmac_f32_16x16x64_bf16 {vr(V_FIN+4+4*tq,4)}, {vr(V_P,4)}, {vr(V_BW+8*tq,8)}, v{V_IDX2}' for tq in range(4)]
    O = V_T + 40; rc = V_T + 48
    D = V_FIN
    p(weave(fin[:2], vx2[:vxf]) + [fin[2]])
    p(f"""
    v_pk_add_f32 {vr(rc,2)}, {vr(D,2)}, {vr(D+2,2)}
    {fin[3]}
    v_rcp_f32 v{rc}, v{rc}
    {fin[4]}
    v_rcp_f32 v{rc+1}, v{rc+1}
    {postB(3)}
    """)
    for tq in range(4):
        D = V_FIN + 4 + 4*tq
        p(f'v_pk_add_f32 {vr(D,2)}, {vr(D,2)}, {vr(D+2,2)}\nv_mul_f32 v{O+tq}, v{D}, v{rc}')
        if tq < 3: p(f'v_mul_f32 v{O+4+tq}, v{D+1}, v{rc+1}')
    p(f"""
    ds_write_b128 v{V_L2W0}, {vr(O,4)}
    v_mul_f32 v{O+7}, v{D+1}, v{rc+1}
    ds_write_b128 v{V_L2W1}, {vr(O+4,4)} offset:256
    """)
    sd = o.get('side', 'gap')
    nb, nb2 = o.get('nB', 16), o.get('nB2', 0)
    p(vx2[vxf:])
    if kx == 'gap': p(kxl)
    if sd == 'gap': p(side)
    half = not nb2 and not sB
    if half: p(setexec(S_M_32))
    p('s_waitcnt lgkmcnt(0)\ns_barrier')
    stamp(4)
    Z = V_T + 32
    if not sB or w < 2:
        for wv in range(4): p(f'ds_read_b128 {vr(Z+4*wv,4)}, v{V_L2R} offset:{wv*2048}')
        if half: p(setexec(None))
        for wv in range(1, 4):
            p(f's_waitcnt lgkmcnt({3-wv})')
            for k in (0, 2): p(f'v_pk_add_f32 {vr(Z+k,2)}, {vr(Z+k,2)}, {vr(Z+4*wv+k,2)}')
        p(f'v_cvt_pk_bf16_f32 v{Z+4}, v{Z}, v{Z+1}\nv_cvt_pk_bf16_f32 v{Z+5}, v{Z+2}, v{Z+3}')
        p(st(2, Z+4, V_BST, S_CUR, 0, 'sc1'))
    elif sB: nb = min(32 - 4*nC, nb + o.get('nBx', 9))
    stamp(5)
    if sd == 'B': p(side)
    if kx == 'B': p(kxl)
    GB = [V_T + 48, V_T + 52]; BS = V_T + 40
    at = {}
    def put(i, x): at.setdefault(i, []).extend(x if isinstance(x, list) else [x])
    if sB:
        FL = f's_buffer_load_dwordx8 {sr(S_FB8,8)}, {sr(S_WS,4)}, s{S_FBO2} glc'
        two = o.get('two', 0)
        if two:
            n_ = 4 // two
            FL = '\n'.join(f's_buffer_load_dword{"x%d" % n_ if n_ > 1 else ""} {sr(S_FB8 + n_*k, n_)}, {sr(S_WS,4)}, s{S_FBO2} offset:{k << 16} glc' for k in range(two))
        if w == 3 or (two and w == 2):
            for i in range(o.get('p0', 0), nb, o.get('pB', 5)): put(i, FL)
            F = S_FB8
            chkB = [f's_and_b64 {sr(T,2)}, {sr(F,2)}, {sr(F+2,2)}', f's_and_b64 {sr(T+2,2)}, {sr(F+4,2)}, {sr(F+6,2)}', f's_and_b64 {sr(T,2)}, {sr(T,2)}, {sr(T+2,2)}',
                    f's_and_b32 s{T}, s{T}, s{T+1}', f's_and_b32 s{T}, s{T}, s{S_TB}', f's_cbranch_scc1 R_fb{sfx}_ok']
            if two: chkB = chkB[:1] + chkB[3:5] + chkB[5:] + ['s_nop 1']
            put(nb, [f's_min_u32 s{S_SPIN}, s{S_BUD}, 2000', f'R_fb{sfx}:'] + chkB*o.get('qB', 2) + [FL, f's_sub_u32 s{S_SPIN}, s{S_SPIN}, 1', f's_cbranch_scc0 R_fb{sfx}', f'R_fb{sfx}_ok:'])
        put(nb, ['s_barrier'] + delay(o.get('dB2', 0)))
    put(nb, ld(4, GB[0], V_BLD, S_CUR, 0) + '@b0')
    if tr: put(nb, f's_mem{"real" if tr == 1 else ""}time s[{S_ST+14}:{S_ST+15}]')
    if nb2: put(nb2, ld(4, GB[1], V_BLD, S_CU1, 0) + '@b1')
    if kx == 'P': put(max(nb, nb2), kxl)
    if sC: put(nb + o.get('pC', 6), postC)
    if vx2: put(4*(8-nvx), '@wait vx')
    fill = ([] if tr else pfk)
    if w == 3 and o.get('kvwait'):
        fill = fill + lines(f"""
        s_add_u32 s{S_KVO}, s{S_STEP}, 4
        s_min_u32 s{S_KVO}, s{S_KVO}, 63
        s_lshr_b32 s{S_KVO}, s{S_KVO}, 2
        s_lshl3_add_u32 s{S_KVO}, s{S_KVO}, s{S_V}
        s_lshl_b32 s{S_KVO}, s{S_KVO}, 8
        s_add_u32 s{S_KVO}, s{S_KVO}, {F_KV_}
        """)
    cv = ['s_nop 0']*8 if o.get('noVW') else vwx_cvt(0)
    c = 0
    for k, grp in enumerate(grps[:8-nC]):
        for x in (grp if k < 8-nvx else grp[:-1]):
            if x.startswith('v_mfma'):
                p(at.pop(c, [])); c += 1
                p('s_nop 2' if o.get('noVW') else x)
                if c >= 18 and cv: p(cv.pop(0))
                if fill and (c > nb or not sB): p(fill.pop(0))
            elif not o.get('noVX'): p(x)
    for i in sorted(at): p(at[i])
    p(cv + fill)
    p(f's_mov_b32 s{S_PRV}, s{S_CUR}\ns_mov_b32 s{S_CUR}, s{S_NXT}')
    if tr:
        p('s_waitcnt lgkmcnt(0)')
        for k in range(8): p(f'v_writelane_b32 v255, s{S_ST+2*k}, {k}')
        for k in range(3): p(f'v_writelane_b32 v255, s{S_ST+16+k}, {8+k}')
        p(f'v_writelane_b32 v255, s{S_ST+20}, 11')
        p([f's_lshl_b32 s{T}, s{S_STEP}, 6', 's_mov_b64 exec, 0xffff', st(1, 255, 254, T), 's_mov_b64 exec, -1'] + pfk[:4])
    if w == 3 and o.get('kvwait'):
        p(f's_and_b32 s{T}, s{S_STEP}, 3\ns_cbranch_scc1 R_kvn{sfx}\ns_buffer_load_dword s{S_KVF}, {sr(S_WS,4)}, s{S_KVO} glc\nR_kvn{sfx}:')
    if sC:
        for k in range(o.get('preC', 2)): p(FC_()); p(delay(o.get('gapC', 10)))
    def bsum(s_, fill=[]):
        out = [f'v_mfma_f32_16x16x32_bf16 {vr(BS,4)}, {vr(V_SELA,4)}, {vr(GB[s_],4)}, 0'] + fill
        out += [f'v_add_f32_dpp v{BS+k}, v{BS+k}, v{BS+k} row_ror:8 row_mask:0xf bank_mask:0xf' for k in range(4)]
        out += [f'v_cmp_u_f32 vcc, v{BS}, v{BS}', f'v_cvt_pk_bf16_f32 v{BS+4}, v{BS}, v{BS+1}', f'v_cvt_pk_bf16_f32 v{BS+5}, v{BS+2}, v{BS+3}']
        return out
    p('@wait b0')
    p(bsum(0, ([FC_()] if sC else []) + pfv))
    p(f's_cbranch_vccnz R_br{sfx}')
    w1 = None
    if nb2:
        p.q.append('x'); w1 = p.wait('b1'); p.q.pop()
    p(f'R_bg{sfx}:\n' + st(2, BS+4, V_CST, S_CUR, 0, pl))
    stamp(6)
    p(f's_branch R_step{sfx}')
    p0(ool)
    p0(f'R_ar0{sfx}:\ns_cmp_eq_u32 s{S_BUD}, 0\ns_cbranch_scc1 R_ag0{sfx}')
    p0(strip(lv + ls)); count(1); count(3); p0(budget())
    p0(f's_waitcnt vmcnt(0)\ns_branch R_aw0{sfx}\nR_ar1{sfx}:\ns_cmp_eq_u32 s{S_BUD}, 0\ns_cbranch_scc1 R_ag1{sfx}')
    p0(strip(ls)); count(1); p0(budget())
    p0(asum([], ['s_waitcnt vmcnt(2)', 's_waitcnt vmcnt(1)', 's_waitcnt vmcnt(0)']))
    p0(f's_cbranch_vccz R_ag1{sfx}\ns_branch R_ar1{sfx}\nR_br{sfx}:')
    if nb2:
        p0([ld(4, GB[0], V_BLD, S_PRV, 0), w1]); count(2)
        p0(bsum(1)); p0(f's_cbranch_vccz R_bg{sfx}\ns_branch R_br3{sfx}')
    p0(f'R_br2{sfx}:\ns_cmp_eq_u32 s{S_BUD}, 0\ns_cbranch_scc1 R_bg{sfx}')
    p0(ld(4, GB[0], V_BLD, S_PRV, 0))
    p0(f'R_br3{sfx}:'); count(2); p0(budget())
    p0('s_waitcnt vmcnt(0)'); p0(bsum(0))
    p0(f's_cbranch_vccz R_bg{sfx}\ns_branch R_br2{sfx}')

def r_tail(p, o):
    T = S_T
    S0 = o.get('S0', 52); NS = 64 - S0; NI = NS // 2
    assert S0 >= 48 and NS % 4 == 0
    a, b, c_ = 2, 3, 4
    VL, VF, VO, VZ, FL = 5, 6, 7, 8, 9
    SL = 10
    ACC = 16
    PK = 32
    FR = [40, 104, 168]
    SFO, SPO, SOO, SMK = 28, 29, 30, 31
    B = lambda dst, terms, base=None: p(bits(dst, terms, base, c_))
    def tst():
        if o.get('ttrace'): p(f's_memrealtime s[60:61]\ns_waitcnt lgkmcnt(0)\ns_mov_b32 m0, s62\nv_writelane_b32 v250, s60, m0\ns_add_u32 s62, s62, 1')
    if o.get('ttrace'): p('s_mov_b32 s62, 0\nv_mov_b32 v250, 0')
    tst()
    p(ssum(SFO, [(S_V, 8)], F_OV_ + 192))
    B(VZ, [(0, 4, 2)]); p(ld(1, FL, VZ, SFO))
    p(f's_load_dwordx2 s[{S_SRD}:{S_SRD+1}], s[0:1], 80')
    p(ssum(T, [(S_WAVE, 14)])); B(VL, [(0, 6, 4)]); p(f'v_add_u32 v{a}, s{T}, v{VL}')
    for q in range(16): p(f'ds_write_b128 v{a}, {ar(A_WO + 4*q,4)} offset:{q*1024}')
    B(VF, [(4, 2, 9), (0, 4, 4)])
    p(f's_lshr_b32 s{T+2}, s{S_WAVE}, 1\ns_and_b32 s{T+3}, s{S_WAVE}, 1')
    p(ssum(SOO, [(T+2, 18), (S_V, 15), (T+3, 8)], WS_O_ + (S0 << 18), T))
    p(ssum(SPO, [(S_WAVE, 18), (S_C, 14), (S_V, 11)], WS_PART, T))
    p(f's_add_u32 s{SMK}, s{T+2}, {S0-48}')
    def need(j):
        return f"""
        s_add_u32 s{T+1}, s{SMK}, {2*j}
        RT_n{j}:
        v_readlane_b32 s{T}, v{FL}, s{T+1}
        s_cmp_ge_u32 s{T}, 4
        s_cbranch_scc1 RT_k{j}
        s_cmp_eq_u32 s{S_BUD}, 0
        s_cbranch_scc1 RT_k{j}
        {ld(1, FL, VZ, SFO)}
        {budget()}
        s_waitcnt vmcnt(0)
        s_branch RT_n{j}
        RT_k{j}:
        """
    def load(j, k):
        out = [f's_add_u32 s{T+1}, s{SOO}, {(j << 19) + (k >> 1)*4096}'] if k % 2 == 0 else []
        return out + [ld(4, FR[j % 3] + 4*k, VF, T+1, (k & 1)*2048)]
    p('s_waitcnt lgkmcnt(0)\ns_barrier')
    rd = [f'ds_read_b128 {ar(4*q,4)}, v{VL} offset:{q*1024}' for q in range(64)]
    p(rd[:16]); p('s_waitcnt vmcnt(0)')
    p(need(0))
    for k in range(16): p(load(0, k)); p(rd[16+3*k:19+3*k])
    B(a, [(0, 1, 4)]); p(f'v_mov_b32 v{b}, 0x3f80\nv_lshlrev_b32 v{a}, v{a}, v{b}')
    B(b, [(1, 3, 0)]); B(VO, [(4, 2, 1)]); p(f'v_sub_u32 v{b}, v{b}, v{VO}')
    for k in range(2): p(f'v_cmp_eq_u32 vcc, {k}, v{b}\nv_cndmask_b32 v{SL+2+k}, 0, v{a}, vcc')
    for k in (0, 1, 4, 5): p(f'v_mov_b32 v{SL+k}, 0')
    B(VO, [(0, 4, 12), (4, 2, 5)])
    p('s_waitcnt lgkmcnt(0)')
    tst()
    q_ = [('l', 0, k) for k in range(16)]
    ahead = {0: [1, 2]}
    for j in range(1, NI-1): ahead[j] = [j+2] if j+2 < NI-1 else ([NI-1] if j == NI-2 else [])
    for j in range(NI):
        nx = ahead.get(j, [])
        for n_ in nx: p(need(n_))
        todo = [(n_, k) for n_ in nx for k in range(16)]
        for k in range(16):
            i = q_.index(('l', j, k)); del q_[:i+1]
            p(f's_waitcnt vmcnt({len(q_)})')
            for tq in range(4):
                d = ACC + 4*tq
                p(f'v_mfma_f32_16x16x32_bf16 {vr(d,4)}, {ar((k >> 2)*64 + (tq*4 + (k & 3))*4,4)}, {vr(FR[j % 3] + 4*k,4)}, {"0" if k == 0 else vr(d,4)}')
                if todo and (tq == 0 or (tq == 2 and (len(nx) == 2 or j == NI-2))):
                    x = todo.pop(0); p(load(*x)); q_.append(('l',) + x)
        p(f's_add_u32 s{T+1}, s{SPO}, {j << 20}')
        for h in range(2):
            for r in range(4): p(f'v_cvt_pk_bf16_f32 v{PK+2*r+h}, v{ACC+8*h+r}, v{ACC+8*h+4+r}')
        for h in range(2): p(st(4, PK+4*h, VL, T+1, 1024*h, 'sc1')); q_.append(('s', j, h))
        tst()
    p(ssum(T+2, [(S_C, 8)], F_P_)); p(ssum(T+3, [(S_V, 2), (T+2, 0)], 0, T))
    B(a, [(0, 3, 2)])
    nw = 2*NS // 8
    p(f"""
    s_mov_b32 s{S_SRD+2}, 0x800000
    s_mov_b32 s{S_SRD+3}, 0x20000
    s_mul_i32 s{T+4}, s{S_V}, {nw}
    s_add_u32 s{T+4}, s{T+4}, s{S_WAVE}
    v_mov_b32 v{b}, 1
    s_waitcnt vmcnt(0)
    s_barrier
    s_cmp_eq_u32 s{S_WAVE}, 3
    s_cbranch_scc0 RT_q
    s_mov_b64 exec, 1
    {st(1, b, a, T+3, 0, 'sc1')}
    s_mov_b64 exec, -1
    RT_q:
    s_cmp_ge_u32 s{S_WAVE}, {nw}
    s_cbranch_scc1 RT_end
    """)
    p(ssum(SPO, [(T+4, 18), (S_C, 14)], WS_PART, T))
    p(ssum(SOO, [(T+4, 16), (S_C, 7)], S0 << 17, T))
    p(f"""
    RT_p:
    {ld(1, b, a, T+2)}
    {budget()}
    s_waitcnt vmcnt(0)
    v_cmp_ne_u32 vcc, 1, v{b}
    s_cbranch_vccz RT_pk
    s_cmp_lg_u32 s{S_BUD}, 0
    s_cbranch_scc1 RT_p
    RT_pk:
    """)
    tst()
    for k in range(16):
        if k % 4 == 0: p(f's_add_u32 s{T+1}, s{SPO}, {k*1024}')
        p(ld(4, FR[0] + 4*k, VL, T+1, (k & 3)*1024))
    for k in range(16):
        p(f's_waitcnt vmcnt({15-k})')
        for t in range(2):
            d = ACC + 8*(k & 1) + 4*t
            p(f'v_mfma_f32_16x16x32_bf16 {vr(d,4)}, {vr(SL + 2 - 2*t,4)}, {vr(FR[0] + 4*k,4)}, {"0" if k < 2 else vr(d,4)}')
    for k in range(8): p(f'v_cvt_pk_bf16_f32 v{PK+k}, v{ACC+2*k}, v{ACC+2*k+1}')
    for h in range(2): p(st(4, PK+4*h, VO, SOO, 16*h, '', S_SRD))
    tst()
    p('RT_end:')
    if o.get('ttrace'):
        p(ssum(T, [(2, 10), (S_WAVE, 8)], 0xFA00000, T+1)); B(a, [(0, 6, 2)]); p(st(1, 250, a, T))
```

```python
from geng import *
def schedule(o):
    lists = []
    S0 = o.get('S0', 52)
    for xg in range(4):
        for i in range(32):
            L = []
            j = i & 15
            mq, h = 1 + (j >> 3), 8*xg + (j & 7)
            m, nt = 1 + ((j >> 2) & 1), 4*xg + (j & 3)
            v = 2*xg + (j & 1)
            kv = lambda mt, pf=0: t_proj(m, 256*(mt + (j >> 3)), nt, pf)
            q = lambda mt: t_proj(0, 256*(mt + (j >> 2)), nt)
            L.append(t_projq(mq, i >> 4, h, 0, 1, pf=1))
            k = j & 7
            q2 = lambda mt: t_proj(0, 256*(mt + (k >> 2)), nt)
            if i < 16:
                L += [t_projq(mq, 2, h), t_projq(mq, 3, h), kv(4, 1), t_bkv(j >> 1, v)]
                if j < 8: L += [t_bq(j, xg), t_bwof(j, xg), t_att(58 + (k >> 1), 64, v, 4)]
                else: L += [t_red(8*xg + k), q2(4), t_att(32 + (k >> 1), 48, v, 4), t_wo(8 + (k >> 1), v)]
            else:
                L += [kv(2, 1), q(0), t_att(j >> 1, 16, v, 8), kv(6), t_att(16 + (j >> 1), 32, v, 8)]
                if j < 8: L += [t_wo(k >> 1, v), t_wo(4 + (k >> 1), v)]
                else:
                    L += [q2(6), t_att(48 + (k >> 1), 52, v, 4)]
                    if k < 2: L.append(t_wo(12, v))
                    else: L.append(t_att(51 + (k >> 1), 58, v, 3))
            lists.append(L)
    return lists
```

```python
import sys, struct, math
from asmlib import *
from genr import *
import geng
NAME = 'concat_heads__memory_aug_recurrent_mem_tr__linear_attn_block__prompt'
KN = NAME + '_kernel'
def f2u(x): return struct.unpack('<I', struct.pack('<f', x))[0]
S_REG = 99
S_MODE, S_VERI, S_POLV = 3, 4, 5
LDS_MISC = 163840 - 64
RDEF = dict(nB=14, nBx=9, nB2=0, gC=10, kvwait=1, pA=2, dV=6, dS=56, dA0=36, dS0=56, syncC=0, dC=60, kx='gap', posB=2, pB=9, qB=4, wu='v', nvx=2, vxf=2, two=2, p0=0, nC=0, pace=3, preA=1)
def gen(o=None):
    o = dict(RDEF, **(o or {})); o['scl'] = f2u(math.log2(math.e)/math.sqrt(128))
    lists = geng.schedule(o); o['ntask'] = max(len(l) for l in lists) + 1
    p = Prog()
    T = 40; a, b, c = 40, 41, 42
    p(f'''
    s_cmp_ge_u32 s2, 256
    s_cbranch_scc1 L_exit
    s_getpc_b64 s[6:7]
    L_pc0:
    s_load_dwordx2 s[{S_WS}:{S_WS+1}], s[0:1], 96
    s_load_dwordx2 s[{S_DBG}:{S_DBG+1}], s[0:1], 88
    s_getreg_b32 s{S_XCD}, hwreg(HW_REG_XCC_ID, 0, 3)
    s_lshr_b32 s{S_IDX}, s2, 3
    v_lshrrev_b32 v1, 6, v0
    v_readfirstlane_b32 s{S_WAVE}, v1
    v_and_b32 v1, 63, v0
    s_mov_b32 s{S_BUD}, {o.get('budget', 400000)}
    s_lshr_b32 s{S_MODE}, s2, 31
    s_lshr_b32 s{S_VERI}, s2, 31
    s_lshr_b32 s{S_POLV}, s2, 31
    s_lshr_b32 s{S_REG}, s2, 31
    ''')
    if o.get('total') or o.get('gtrace'): p('s_memrealtime s[90:91]')
    if o.get('warm', 1):
        p(ssum(T, [(S_IDX, 9), (S_WAVE, 7)], 0, T+1)); p(bits(a, [(0, 4, 14)], T, c))
        p(f's_mov_b32 s{T}, L_codeend-L_pc0-4\nv_min_u32 v{a}, s{T}, v{a}\ns_mov_b64 exec, 0xffff\nglobal_load_dword v56, v{a}, s[6:7]\ns_mov_b64 exec, -1')
    if o.get('scramble'): p(f's_and_b32 s{S_IDX}, s2, 31')
    for k in range(4): p(f'v_mov_b32 v{44+k}, -1\nv_mov_b32 v{48+k}, 0')
    p(f'''
    v_mov_b32 v{c}, {LDS_MISC}
    ds_write_b64 v{c}, v[48:49]
    s_waitcnt lgkmcnt(0)
    s_add_u32 s{S_WS}, s{S_WS}, 0x1fffff
    s_addc_u32 s{S_WS+1}, s{S_WS+1}, 0
    s_and_b32 s{S_WS}, s{S_WS}, 0xffe00000
    s_mov_b32 s{S_WS+2}, {WS_SIZE}
    s_mov_b32 s{S_WS+3}, 0x20000
    s_barrier
    ''')
    p(ssum(T, [(S_WAVE, 19), (2, 10)], 0, T+1)); p(bits(a, [(0, 6, 4)], None, c))
    p(st(4, 44, a, T, 0, 'sc1'))
    p(f's_xor_b32 s{T+1}, s{T}, 0x42000'); p(st(4, 44, a, T+1, 0, 'sc1'))
    p(f's_add_u32 s{T}, s{T}, {WS_M2 + M2_A}'); p(st(4, 44, a, T, 0, 'sc1'))
    p(ssum(T, [(S_WAVE, 19), (2, 8)], WS_M2, T+1)); p(bits(b, [(0, 4, 4)], T, c))
    p(ssum(T, [(2, 7)], WS_M2 + M2_F)); p(bits(53, [(0, 3, 4)], T, c))
    p(f'''
    v_cmp_gt_u32 vcc, 16, v1
    v_cndmask_b32 v{b}, v53, v{b}, vcc
    s_bfm_b64 exec, 24, 0
    {st(4, 44, b, '0', 0, 'sc1')}
    s_mov_b64 exec, 15
    ''')
    p(ssum(T, [(2, 8), (S_WAVE, 6)], WS_FLAG, T+1)); p(st(4, 48, a, T, 0, 'sc1'))
    p(f'''
    s_mov_b64 exec, -1
    L_role:
    s_cmp_ge_u32 s{S_XCD}, 4
    s_cbranch_scc1 L_G
    ''')
    def register(p, SB, VB):
        p(f'''
        s_mov_b32 s{S_REG}, 1
        s_lshl_b32 s{SB}, 1, s{S_IDX}
        s_lshl_b32 s{SB+2}, s{S_XCD}, 5
        v_mov_b32 v{VB+2}, s{SB}
        v_mov_b32 v{VB+3}, s{SB+1}
        v_mov_b32 v{VB}, s{SB+2}
        s_mov_b64 exec, 1
        global_atomic_add_x2 v[254:255], v{VB}, v[{VB+2}:{VB+3}], s[{S_DBG}:{S_DBG+1}] sc0 sc1
        s_mov_b64 exec, -1
        ''')
    def greg(p):
        p(f's_add_u32 s48, s{S_WAVE}, s{S_VERI}\ns_cmp_eq_u32 s48, 0\ns_cbranch_scc0 G_reg\ns_mov_b32 s49, 0x100')
        register(p, 48, 30); p('G_reg:')
    NR = 1
    def race(p, nout):
        SB = 60; VB = V_T + 20
        p(f's_cmp_lg_u32 s{S_VERI}, 0\ns_cbranch_scc1 R_race_end')
        p(ssum(SB, [(S_WAVE, 19), (2, 10)], 0, SB+1))
        p(f'''
        s_bfe_u32 s{SB+4}, s{SB}, 0x1000d
        s_xor_b32 s{SB+1}, s{SB}, 0x42000
        s_mov_b64 s[{SB+2}:{SB+3}], 0
        s_mov_b32 s{SB+5}, 2000
        s_waitcnt vmcnt({nout}) lgkmcnt(0)
        s_buffer_load_dword s{SB+2}, {sr(S_WS,4)}, s{SB} glc
        s_buffer_load_dword s{SB+3}, {sr(S_WS,4)}, s{SB+1} glc
        R_race0:
        s_mov_b64 s[{SB+6}:{SB+7}], s[{SB+2}:{SB+3}]
        s_sub_u32 s{SB+5}, s{SB+5}, 1
        s_cselect_b64 s[{SB+6}:{SB+7}], -1, s[{SB+6}:{SB+7}]
        s_cmp_eq_u64 s[{SB+6}:{SB+7}], 0
        s_cbranch_scc1 R_race0
        s_sub_u32 s{SB+6}, s{SB+6}, s{SB+7}
        s_sub_u32 s{SB+7}, 0, s{SB+6}
        s_cmp_eq_u32 s{SB+4}, 0
        s_cselect_b32 s{SB+6}, s{SB+6}, s{SB+7}
        s_add_u32 s{SB+6}, s{SB+6}, 0x101
        v_mov_b32 v{VB}, {LDS_MISC}
        v_mov_b32 v{VB+1}, s{SB+6}
        s_mov_b64 exec, 1
        ds_add_rtn_u32 v{VB+1}, v{VB}, v{VB+1}
        s_waitcnt lgkmcnt(0)
        v_readfirstlane_b32 s{SB+7}, v{VB+1}
        s_mov_b64 exec, -1
        s_add_u32 s{SB+6}, s{SB+6}, s{SB+7}
        s_cmp_lt_u32 s{SB+6}, 0x400
        s_cbranch_scc1 R_race_end
        s_and_b32 s{SB+6}, s{SB+6}, 0xff
        s_lshl_b32 s{SB+1}, s{SB+6}, 18
        s_add_u32 s{SB+1}, s{SB+1}, 0x100
        ''')
        register(p, SB, VB)
        p('R_race_end:')
    o['hook_race'] = race
    o['hook_reg'] = greg
    def verify(p, lbl, SB=48, VB=30, also=''):
        p(f'''
        s_cmp_lg_u32 s{S_VERI}, 0
        s_cbranch_scc1 {lbl}_ok
        v_and_b32 v{VB}, 7, v1
        v_lshlrev_b32 v{VB}, 5, v{VB}
        {lbl}:
        global_load_dwordx2 v[{VB+2}:{VB+3}], v{VB}, s[{S_DBG}:{S_DBG+1}] sc1
        {budget()}
        s_mov_b32 s{SB}, 0
        s_waitcnt vmcnt(0)
        ''')
        for k in range(8): p(f'v_readlane_b32 s{SB+1}, v{VB+3}, {k}\ns_lshr_b32 s{SB+1}, s{SB+1}, 8\ns_add_u32 s{SB}, s{SB}, s{SB+1}')
        p(f'''
        s_and_b32 s{SB+1}, s{SB}, 0x3ff
        s_cmp_ge_u32 s{SB+1}, 256
        s_cbranch_scc1 {lbl}_all
        s_cmp_eq_u32 s{S_BUD}, 0
        s_cbranch_scc1 {lbl}_all
        s_sleep 2
        s_branch {lbl}
        {lbl}_all:
        s_mov_b32 s{S_VERI}, 1
        s_lshr_b32 s{SB}, s{SB}, 10
        s_cmp_gt_u32 s{SB}, {512*NR}
        s_cselect_b32 s{S_POLV}, 1, 0
        v_bfe_u32 v{VB+1}, v{VB+3}, 8, 10
        v_cmp_ne_u32 s[{SB+2}:{SB+3}], 32, v{VB+1}
        v_and_b32 v{VB+1}, 0xff, v{VB+3}
        v_cmp_ne_u32 s[{SB+4}:{SB+5}], 0, v{VB+1}
        v_cmp_ne_u32 vcc, -1, v{VB+2}
        s_or_b64 s[{SB+4}:{SB+5}], s[{SB+4}:{SB+5}], s[{SB+2}:{SB+3}]
        s_or_b64 vcc, vcc, s[{SB+4}:{SB+5}]
        {'s_mov_b64 vcc, -1' if o.get('forceslow') else ''}
        s_cbranch_vccz {lbl}_ok
        v_mov_b32 v{VB}, {LDS_MISC + 8}
        s_waitcnt vmcnt(0) lgkmcnt(0)
        s_cmp_eq_u32 s{S_REG}, 1
        s_cbranch_scc0 {lbl}_t
        s_mov_b64 exec, 1
        ds_write_b32 v{VB}, v255
        s_mov_b64 exec, -1
        s_waitcnt lgkmcnt(0)
        {lbl}_t:
        s_barrier
        ds_read_b32 v{VB+1}, v{VB}
        s_waitcnt lgkmcnt(0)
        v_readfirstlane_b32 s{S_IDX}, v{VB+1}
        s_bfe_u32 s{S_IDX}, s{S_IDX}, 0x50008
        s_cmp_eq_u64 s[{SB+2}:{SB+3}], 0
        {'s_cmp_eq_u32 s2, -1' if o.get('forceslow') else ''}
        s_cbranch_scc1 L_role
        s_mov_b32 s{S_MODE}, 1
        s_and_b32 s{S_XCD}, s2, 7
        s_lshr_b32 s{S_IDX}, s2, 3
        {f's_lshr_b32 s{S_XCD}, s2, 5' if o.get('forceslow') == 2 else ''}
        {f's_and_b32 s{S_IDX}, s2, 31' if o.get('forceslow') == 2 else ''}
        s_branch L_role
        {lbl}_ok:
        ''')
    r_setup(p, o); r_weights(p, o)
    if o.get('total'): p('s_memrealtime s[6:7]')
    p(ssum(S_KVO, [(S_V, 8)], F_KV_)); p(f'v_mov_b32 v{V_T+36}, 0\nv_mov_b32 v{V_T+37}, 0')
    verify(p, 'RV', S_T, V_T+20)
    p(f's_mov_b32 s{S_POL}, {o["pol"] if "pol" in o else "s%d" % S_POLV}')
    p(f's_cmp_lg_u32 s{S_MODE}, 0\ns_cbranch_scc1 L_Rslow')
    def rstat():
        if not o.get('total'): return
        S = S_ST
        p(f'''
        s_memtime s[{S}:{S+1}]
        s_memrealtime s[{S+2}:{S+3}]
        s_waitcnt lgkmcnt(0)
        s_mov_b32 s{S+5}, s{S+2}
        s_sub_u32 s{S}, s{S}, s{S+22}
        s_sub_u32 s{S+1}, s{S+2}, s{S+24}
        s_mov_b32 s{S+2}, s{S_BUD}
        s_mov_b32 s{S+3}, s90
        s_mov_b32 s{S+4}, s{S+24}
        s_mov_b32 s{S+6}, s{S_POL}
        s_mov_b32 s{S+7}, s{S_MODE}
        s_mov_b32 s{S+8}, s6
        s_lshl2_add_u32 s36, s2, s{S_WAVE}
        s_lshl_b32 s36, s36, 7
        s_add_u32 s36, s36, {0xF900000}
        v_mov_b32 v2, 0
        ''')
        for k in range(20): p(f'v_mov_b32 v{4+k}, s{S+k}')
        for k in range(5): p(st(4, 4+4*k, 2, 36, 16*k))
    r_loop(p, o, '', '')
    p('L_Rtail:'); rstat()
    r_tail(p, o)
    if o.get('total'):
        p(f's_memrealtime s[60:61]\ns_lshl2_add_u32 s36, s2, s{S_WAVE}\ns_lshl_b32 s36, s36, 7\ns_add_u32 s36, s36, {0xF900000 + 36}\nv_mov_b32 v2, 0\ns_waitcnt lgkmcnt(0)\nv_mov_b32 v4, s60\n' + st(1, 4, 2, 36))
    p('s_endpgm\nL_Rslow:')
    r_loop(p, dict(o, trace=0), 's', 'sc1')
    p('s_branch L_Rtail\nL_exit:\ns_endpgm\nL_G:')
    geng.g_role(p, o, verify)
    body = p.finish(o.get('verbose'))
    hdr = open('cdna_kernels/' + NAME + '.s.ref').read().split('; Override launch')[0] if not o.get('nohdr') else ''
    src = hdr + '; @launch grid=(256,1,1) block=(256,1,1) lds=163840\n'
    src += f'.amdgcn_target "amdgcn-amd-amdhsa--gfx950"\n.text\n.globl {KN}\n.p2align 8\n.type {KN},@function\n{KN}:\n'
    src += body + 's_endpgm\n' + geng.table(lists, o['ntask']) + 'L_codeend:\n'
    src += f'''.section .rodata,"a"
.p2align 6
.amdhsa_kernel {KN}
  .amdhsa_next_free_vgpr 512
  .amdhsa_next_free_sgpr 102
  .amdhsa_accum_offset 256
  .amdhsa_group_segment_fixed_size 0
  .amdhsa_kernarg_size 104
  .amdhsa_user_sgpr_count 2
  .amdhsa_user_sgpr_kernarg_segment_ptr 1
  .amdhsa_system_sgpr_workgroup_id_x 1
  .amdhsa_float_denorm_mode_32 3
.end_amdhsa_kernel
'''
    return src
if __name__ == '__main__':
    src = gen(eval(sys.argv[1]) if len(sys.argv) > 1 else None)
    open('cdna_kernels/' + NAME + '.s', 'w').write(src)
    print(len(src), 'bytes')
```

```python
from asmlib import *
from genr import (S_WS, S_XCD, S_IDX, S_WAVE, S_BUD, S_DBG, V_LANE, ld, st, bits, ssum, setexec,
                  WS_FLAG, WS_KM, WS_VM, WS_KX, WS_VX, HDS, segoff, segoff_s, S_GP)
WS_Q    = 0x5000000
WS_O    = 0x5202000
WS_OB   = 0x9000000
WS_KVP  = 0x9800000
WS_KVR  = 0x9C00000
F_PROG = WS_FLAG
F_FIN  = WS_FLAG + 0x0800
F_BKV  = WS_FLAG + 0x1000
F_BRED = WS_FLAG + 0x1800
F_BQ   = WS_FLAG + 0x2000
F_OB   = WS_FLAG + 0x3000
F_OH   = WS_FLAG + 0x6000
F_O    = WS_FLAG + 0x4000
F_KV   = WS_FLAG + 0x8000
T_END, T_G1H, T_G1F, T_BKV, T_BQ, T_G3, T_TAIL, T_G3S, T_RED, T_WAIT, T_ATT = range(11)
EARLY = 0x100
S_TP = 18
S_D = 20
S_XS, S_WSRD, S_OS = 28, 32, 36
S_XO, S_WO, S_CNT, S_MX, S_MW, S_XSTEP, S_WSTEP, S_STR = 40, 41, 42, 43, 44, 45, 46, 47
S_G = 48
S_PTR = 60
S_WM, S_WN = 76, 77
S_TCH = 78
S_E = 90
S_VER = 78
S_C1, S_C2 = 80, 81
S_A = 82
P_AX, P_WQ, P_WK, P_WV, P_WO, P_BX, P_BW, P_BO = [S_PTR + 2*i for i in range(8)]
V_XD, V_WD, V_XA, V_WA, V_OO = 2, 10, 18, 20, 28
V_G = 30
V_F = 64
V_E = 192
XF = lambda b, t: V_F + b*64 + t*4
WF = lambda b, t: V_F + b*64 + 32 + t*4
lines = lambda t: [x.strip() for x in t.split('\n') if x.strip()]
LOG2E = 0x3fb8aa3b

def wait_flag(p, lbl, soff, sval, shift=0, mask=None):
    G = S_G
    p(f'''
    v_mov_b32 v{V_G}, 0
    {lbl}:
    {ld(1, V_G+1, V_G, soff)}
    s_sub_u32 s{S_BUD}, s{S_BUD}, 1
    s_max_i32 s{S_BUD}, s{S_BUD}, 0
    s_waitcnt vmcnt(0)
    v_readfirstlane_b32 s{G+10}, v{V_G+1}
    ''')
    if shift: p(f's_lshr_b32 s{G+10}, s{G+10}, {shift}')
    if mask is not None: p(f's_and_b32 s{G+10}, s{G+10}, {mask}')
    p(f'''
    s_cmp_ge_u32 s{G+10}, {sval if isinstance(sval, str) else "s%d" % sval}
    s_cbranch_scc1 {lbl}_ok
    s_cmp_eq_u32 s{S_BUD}, 0
    s_cbranch_scc1 {lbl}_ok
    s_sleep 2
    s_branch {lbl}
    {lbl}_ok:
    ''')
def signal(p, lbl, soff, val, lanes='1', stride=0):
    p(f'''
    s_waitcnt vmcnt(0)
    s_barrier
    s_cmp_eq_u32 s{S_WAVE}, 0
    s_cbranch_scc0 {lbl}
    v_mul_u32_u24 v{V_G}, {stride}, v{V_LANE}
    v_mov_b32 v{V_G+1}, {val}
    s_mov_b64 exec, {lanes}
    buffer_atomic_add v{V_G+1}, v{V_G}, {sr(S_WS,4)}, s{soff} offen sc1
    s_mov_b64 exec, -1
    {lbl}:
    ''')

def g_init(p, o):
    G = S_G
    p(f'''
    s_load_dwordx2 s[{P_AX}:{P_AX+1}], s[0:1], 0
    s_load_dwordx4 s[{G}:{G+3}], s[0:1], 16
    s_load_dwordx4 s[{G+4}:{G+7}], s[0:1], 32
    s_load_dwordx2 s[{P_BX}:{P_BX+1}], s[0:1], 56
    s_load_dwordx4 s[{P_BW}:{P_BW+3}], s[0:1], 64
    s_load_dwordx2 s[{S_OS}:{S_OS+1}], s[0:1], 80
    s_getpc_b64 s[{S_TP}:{S_TP+1}]
    G_pc:
    s_add_u32 s{S_TP}, s{S_TP}, G_table-G_pc
    s_addc_u32 s{S_TP+1}, s{S_TP+1}, 0
    s_sub_u32 s{G+8}, s{S_XCD}, 4
    s_lshl_b32 s{G+8}, s{G+8}, 5
    s_add_u32 s{G+8}, s{G+8}, s{S_IDX}
    s_mul_i32 s{G+8}, s{G+8}, {32*o['ntask']}
    s_add_u32 s{S_TP}, s{S_TP}, s{G+8}
    s_addc_u32 s{S_TP+1}, s{S_TP+1}, 0
    s_lshr_b32 s{S_WM}, s{S_WAVE}, 1
    s_and_b32 s{S_WN}, s{S_WAVE}, 1
    s_mov_b32 s{S_OS+2}, 0x800000
    s_mov_b32 s{S_OS+3}, 0x20000
    s_mov_b32 s{S_XS+3}, 0x20000
    s_mov_b32 s{S_WSRD+3}, 0x20000
    s_mov_b32 s{S_C1}, {LOG2E}
    s_mov_b32 s{S_C2}, 0x358637bd
    s_waitcnt lgkmcnt(0)
    s_mov_b64 s[{P_WQ}:{P_WQ+1}], s[{G}:{G+1}]
    s_mov_b64 s[{P_WK}:{P_WK+1}], s[{G+2}:{G+3}]
    s_mov_b64 s[{P_WV}:{P_WV+1}], s[{G+4}:{G+5}]
    s_mov_b64 s[{P_WO}:{P_WO+1}], s[{G+6}:{G+7}]
    s_mov_b64 s[{S_XS}:{S_XS+1}], s[{P_AX}:{P_AX+1}]
    s_mov_b32 s{S_XS+2}, 0x400000
    s_mov_b64 s[{S_WSRD}:{S_WSRD+1}], s[{P_WQ}:{P_WQ+1}]
    s_mov_b32 s{S_WSRD+2}, 0x800000
    ''')
    for k in list(range(2, 28, 2)) + [38]: p(f'v_mov_b64 {vr(k,2)}, 0')
    p(bits(V_OO, [(4, 2, 9), (0, 4, 4)], None, V_G))

def setup_w(p, TN, bkv=False, perm=False):
    G = S_G
    a, b, c, d = V_G, V_G+1, V_G+2, V_G+3
    rb = (5, 1) if TN == 8 else (4, 2)
    rows = 16 // TN
    p(ssum(G, [(S_WAVE, 4)])); p(bits(a, [rb + (0,)], G, c))
    p(f'v_mul_lo_u32 v{a}, v{a}, s{S_STR}')
    p(bits(b, [(0, 1, 4)], None, c)); p(f'v_add_u32 v{a}, v{a}, v{b}')
    p(bits(b, [(1, 4 if TN == 8 else 3, 0)], None, c)); p(bits(c, [rb + (0,)], None, d)); p(f'v_xor_b32 v{b}, v{b}, v{c}')
    for j in range(TN):
        k0 = rows*j
        f = (k0 & 7) if perm else ((k0 & 3) | ((k0 >> 3) << 2))
        p(f'v_xor_b32 v{c}, {f}, v{b}')
        if bkv:
            p(bits(d, [(1, 1, 11), (2, 2, 6), (0, 1, 5)], None, V_G+4, src=c)); p(f'v_add_u32 v{c}, v{d}, v{a}')
        else: p(f'v_lshl_add_u32 v{c}, v{c}, 5, v{a}')
        p(f's_mul_i32 s{G}, s{S_STR}, {k0}\ns_sub_u32 s{G}, s{G}, {1024*(j&3)}\nv_add_u32 v{V_WD+j}, s{G}, v{c}')
    p(f's_lshl_b32 s{S_WSTEP}, s{S_STR}, 6')
    p(f's_mul_i32 s{S_MW}, s{S_WAVE}, {TN*1024}\ns_add_u32 s{S_MW}, s{S_MW}, 65536')
    lg = 9 if TN == 8 else 8
    p(bits(a, [(4, 2, lg + (2 if perm else 3)), (2, 2, lg), (0, 2, 3)], ('lit', 65536), c))
    p(bits(b, [(2, 2, 0), (4, 1, 2)], None, c))
    p(f's_mul_i32 s{G}, s{S_WN}, {TN}\nv_xor_b32 v{b}, s{G}, v{b}')
    for ct in range(TN): p(f'v_xor_b32 v{c}, {ct}, v{b}\nv_lshl_add_u32 v{V_WA+ct}, v{c}, 5, v{a}')
def setup_x(p, TM, unit, sblk=None):
    G = S_G
    a, b, c = V_G, V_G+1, V_G+2
    p(f's_mul_i32 s{S_MX}, s{S_WAVE}, {TM*1024}')
    if not unit:
        p(f's_mul_i32 s{G}, s{S_WAVE}, {8*TM*2048}')
        p(bits(a, [(3, 3, 11)], G, c))
        p(bits(b, [(0, 3, 0)], None, c)); p(bits(c, [(4, 2, 0)], None, V_G+3)); p(f'v_xor_b32 v{b}, v{b}, v{c}')
        for j in range(TM):
            p(f'v_xor_b32 v{c}, {4*(j&1)}, v{b}\nv_lshl_add_u32 v{c}, v{c}, 4, v{a}\nv_add_u32 v{V_XD+j}, {j*8*2048 - 1024*(j&3)}, v{c}')
        p(f's_mul_i32 s{G}, s{S_WM}, {TM*2048}')
        p(bits(a, [(0, 4, 7)], G, c))
        p(bits(b, [(1, 3, 0)], None, c)); p(bits(c, [(4, 2, 0)], None, V_G+3)); p(f'v_xor_b32 v{b}, v{b}, v{c}')
        for s_ in range(2): p(f'v_xor_b32 v{c}, {4*s_}, v{b}\nv_lshl_add_u32 v{V_XA+s_}, v{c}, 4, v{a}')
    else:
        nb = TM // 4
        if TM == 2: p(f's_mul_i32 s{G}, s{S_WM}, s{sblk}\ns_lshl_b32 s{G+1}, s{S_WN}, 11\ns_add_u32 s{G}, s{G}, s{G+1}')
        else: p(f's_mul_i32 s{G}, s{S_WAVE}, s{sblk}')
        if nb == 2: p(f's_lshl_b32 s{G}, s{G}, 1')
        p(bits(V_XD, [(0, 6, 4)], G, c))
        if nb == 2: p(f'v_add_u32 v{V_XD+1}, s{sblk}, v{V_XD}')
        p(f's_mul_i32 s{G}, s{S_WM}, {TM*2048}')
        p(f'v_add_u32 v{V_XA}, s{G}, v{V_OO}')
        p(f's_xor_b32 s{S_XO}, s{S_XO}, s{S_GP}')

def core(p, name, TM, TN, NB, unit, swap, xfl='', hook=None, last=None, wfl='', pre=None, wrap=False, stamp=None):
    xs = S_WS if unit else S_XS
    XS, WS_ = TM*4096, TN*4096
    RB = TN*64
    QO = (16 if unit else 4)*RB
    nd = TM + TN
    def dma(buf):
        out = []
        for j in range(TM):
            v = V_XD + (j >> 2 if unit else j)
            i = [f'buffer_load_dwordx4 v{v}, {sr(xs,4)}, s{S_XO} offen offset:{1024*(j&3)} {xfl} lds']
            if j % 4 == 0: i = [f's_add_u32 m0, s{S_MX}, {buf*XS + (j//4)*4096}', 's_nop 0'] + i
            if j == TM-1: i += [f's_add_u32 s{S_XO}, s{S_XO}, {(12288 if buf & 1 else 4096) if unit else 128}'] + ([f's_bitset0_b32 s{S_XO}, 11'] if wrap else [])
            out.append(i)
        for j in range(TN):
            i = [f'buffer_load_dwordx4 v{V_WD+j}, {sr(S_WSRD,4)}, s{S_WO} offen offset:{1024*(j&3)} {wfl} lds']
            if j % 4 == 0: i = [f's_add_u32 m0, s{S_MW}, {buf*WS_ + (j//4)*4096}', 's_nop 0'] + i
            if j == TN-1: i += [f's_add_u32 s{S_WO}, s{S_WO}, s{S_WSTEP}'] + ([f's_bitset0_b32 s{S_WO}, 23'] if wrap else [])
            out.append(i)
        return out
    def reads(buf, s, fb):
        out = []
        for t in range(max(TM, TN)):
            if t < TN:
                out.append(f'ds_read_b64_tr_b16 {vr(WF(fb,t),2)}, v{V_WA+t} offset:{buf*WS_ + 32*RB*s}')
                out.append(f'ds_read_b64_tr_b16 {vr(WF(fb,t)+2,2)}, v{V_WA+t} offset:{buf*WS_ + 32*RB*s + QO}')
            if t < TM:
                if unit: out.append(f'ds_read_b128 {vr(XF(fb,t),4)}, v{V_XA} offset:{buf*XS + (t>>1)*4096 + 2048*s + (t&1)*256}')
                else: out.append(f'ds_read_b128 {vr(XF(fb,t),4)}, v{V_XA+s} offset:{buf*XS + 2048*t}')
        return out
    NM = TM*TN
    def step(fb, first, rd, dm):
        out = []; rd = list(rd); dm = list(dm)
        rsp = 2 if NM == 64 else 1
        dpos = [1 + (k*(NM-2))//max(len(dm), 1) for k in range(len(dm))]
        i = 0
        for tt in range(TM):
            for ct in (range(TN) if tt % 2 == 0 else range(TN-1, -1, -1)):
                a = (tt*TN+ct)*4
                c = '0' if first else ar(a, 4)
                A, B = vr(WF(fb,ct),4), vr(XF(fb,tt),4)
                if swap: A, B = B, A
                out.append(f'v_mfma_f32_16x16x32_bf16 {ar(a,4)}, {A}, {B}, {c}')
                if i % rsp == 0 and rd: out.append(rd.pop(0))
                if NM == 8 and rd: out.append(rd.pop(0))
                while dpos and dpos[0] <= i: dpos.pop(0); out += dm.pop(0)
                i += 1
        assert not rd and not dm
        return out
    n1 = nd if NB == 2 else TM
    def stage(buf, first=False, rem=99, carry=True):
        prev = dma((buf - 1) % NB)[n1:] if (carry and rem >= NB-1) else []
        out = step(0, first, reads(buf, 1, 1), prev)
        if rem:
            out += [f's_waitcnt vmcnt({nd*min(NB-2, rem-1)}) lgkmcnt(0)', 's_barrier']
            extra = [[x] for x in last] if (last and rem == 1) else []
            out += step(1, False, reads((buf+1) % NB, 0, 0), dma(buf)[:n1] if rem >= NB else extra)
            out += ['s_waitcnt lgkmcnt(0)']
        else:
            out += ['s_waitcnt lgkmcnt(0)']
            out += step(1, False, [], [])
        return out
    p('s_barrier')
    for b in range(NB):
        for d in dma(b): p(d)
    ne = pre(p) if pre else 0
    if stamp: stamp()
    for k in range(0, 8, 2): p(f's_mov_b64 s[{S_E+k}:{S_E+k+1}], s[{S_D+k}:{S_D+k+1}]')
    p(fetch())
    p(f's_waitcnt vmcnt({nd*(NB-1) + ne})\ns_barrier')
    if hook: hook(p)
    p(reads(0, 0, 0)); p('s_waitcnt lgkmcnt(0)')
    for b in range(NB): p(stage(b, b == 0, carry=b > 0))
    p(f's_sub_u32 s{S_CNT}, s{S_CNT}, 2\n{name}_k:')
    for b in range(NB): p(stage(b))
    p(f's_sub_u32 s{S_CNT}, s{S_CNT}, 1\ns_cmp_lg_u32 s{S_CNT}, 0\ns_cbranch_scc1 {name}_k')
    for b in range(NB): p(stage(b, rem=NB-1-b))

def fetch():
    return f's_load_dwordx8 s[{S_D}:{S_D+7}], s[{S_TP}:{S_TP+1}], 0\ns_add_u32 s{S_TP}, s{S_TP}, 32\ns_addc_u32 s{S_TP+1}, s{S_TP+1}, 0'

def epi_units(p, TM, TN):
    G = S_G
    p(ssum(G, [(S_WM, 22 if TM == 8 else 20), (S_WN, HDS if TN == 8 else 12), (S_E+3, 0)], 0, G+1)); p(f's_xor_b32 s{G}, s{G}, s{S_GP}')
    n = 0
    for tt in range(TM):
        for u in range(TN//2):
            a = (tt*TN+2*u)*4
            t0 = V_E + (n % 4)*12; n += 1
            for r in range(8): p(f'v_accvgpr_read_b32 v{t0+r}, a{a+r}')
            for r in range(4): p(f'v_cvt_pk_bf16_f32 v{t0+8+r}, v{t0+2*r}, v{t0+2*r+1}')
            if u == 2: p(f's_add_u32 s{G}, s{G}, 4096')
            p(st(4, t0+8, V_OO, G, (u&1)*2048 + (tt&1)*256, 'sc1'))
        d = (0x80000 if tt&1 else 0) - (4096 if TN == 8 else 0)
        if d: p(f's_add_u32 s{G}, s{G}, {d}')

def phi(src_a, dst, n, tmp):
    out = []
    t, e = tmp, tmp+n
    for k in range(n): out.append(f'v_accvgpr_read_b32 v{t+k}, a{src_a[k]}')
    for k in range(0, n, 2): out.append(f'v_pk_mul_f32 {vr(e+k,2)}, {vr(t+k,2)}, {sr(S_C1,2)} op_sel_hi:[1,0]')
    for k in range(n): out += [f'v_exp_f32 v{e+k}, v{e+k} clamp', f'v_max_f32 v{t+k}, 0, v{t+k}']
    for k in range(0, n, 2): out.append(f'v_pk_add_f32 {vr(e+k,2)}, {vr(e+k,2)}, {vr(t+k,2)}')
    for k in range(0, n, 2): out.append(f'v_pk_add_f32 {vr(e+k,2)}, {vr(e+k,2)}, {sr(S_C1,2)} op_sel:[0,1]')
    for k in range(0, n, 2): out.append(f'v_cvt_pk_bf16_f32 v{dst+k//2}, v{e+k}, v{e+k+1}')
    return out

def epi_bkv(p):
    G = S_G
    ONES = V_F; KV = V_F + 4
    PK = V_F + 28; VV = V_F + 36; TMP = V_F + 44
    for k in range(4): p(f'v_mov_b32 v{ONES+k}, 0x3f803f80')
    p(f's_mul_i32 s{G}, s{S_WM}, {32*6144}\ns_mul_i32 s{G+1}, s{S_WN}, {2*6144}\ns_add_u32 s{G}, s{G}, s{G+1}\ns_add_u32 s{G}, s{G}, s{S_E+3}')
    p(bits(V_G, [(0, 6, 4)], None, V_G+1))
    for hd in range(2):
        for m in range(4):
            acc = lambda ct: [((2*m+h)*8 + ct)*4 + r for h in range(2) for r in range(4)]
            for dt in range(2): p(phi(acc(4*hd+dt), PK+4*dt, 8, TMP))
            for et in range(2):
                src = acc(4*hd+2+et)
                for k in range(8): p(f'v_accvgpr_read_b32 v{TMP+k}, a{src[k]}')
                for k in range(4): p(f'v_cvt_pk_bf16_f32 v{VV+4*et+k}, v{TMP+2*k}, v{TMP+2*k+1}')
            for op in (2, 0, 1):
                for dt in range(2):
                    d = KV + (op*2+dt)*4
                    p(f'v_mfma_f32_16x16x32_bf16 {vr(d,4)}, {vr(PK+4*dt,4)}, {vr(ONES if op == 2 else VV+4*op,4)}, {"0" if m == 0 else vr(d,4)}')
        for op in (2, 0, 1):
            for dt in range(2):
                off = hd*6144 + op*2048 + dt*1024
                p(f's_add_u32 s{G+1}, s{G}, {off & ~4095}')
                p(st(4, KV + (op*2+dt)*4, V_G, G+1, off & 4095, 'sc1'))

def task_red(p):
    G = S_G
    a, b, c = V_G, V_G+1, V_G+2
    p(f's_cmp_eq_u32 s{S_WAVE}, 3\ns_cbranch_scc1 G_red_done')
    p(ssum(G, [(S_WAVE, 11)]))
    p(bits(b, [(0, 6, 4)], None, c))
    p(f'v_add_u32 v{a}, s{G}, v{b}')
    p(f's_mov_b32 s{G}, s{S_D+1}')
    for blk in range(16):
        for dt in range(2): p(ld(4, V_F + (blk*2+dt)*4, a, G, dt*1024))
        p(f's_add_u32 s{G}, s{G}, {32*6144}')
    for blk in range(1, 16):
        p(f's_waitcnt vmcnt({30-2*blk})')
        for k in range(0, 8, 2): p(f'v_pk_add_f32 {vr(V_F+k,2)}, {vr(V_F+k,2)}, {vr(V_F+8*blk+k,2)}')
    for k in range(4): p(f'v_cvt_pk_bf16_f32 v{V_E+k}, v{V_F+2*k}, v{V_F+2*k+1}')
    p(ssum(G, [(S_WAVE, 10), (S_D+3, 0)], 0, G+1))
    p(st(4, V_E, b, G, 0, 'sc1'))
    p('G_red_done:')

def epi_bq(p):
    G = S_G
    KVR = V_F
    PQ = V_F + 48
    N = V_F + 56
    TMP = V_F + 80
    U = V_F + 104
    p(f's_mul_i32 s{G}, s{S_WN}, {4*3072}\ns_add_u32 s{G}, s{G}, s{S_E+7}')
    p(bits(V_G, [(0, 6, 4)], None, V_G+1))
    for hd in range(4):
        for op in range(3): p(ld(4, KVR + (hd*3+op)*4, V_G, G, op*1024))
        p(f's_add_u32 s{G}, s{G}, 3072')
    p(ssum(G, [(S_WM, 19), (S_WN, 14), (S_E+3, 0)], 0, G+1)); p(f's_xor_b32 s{G}, s{G}, s{S_GP}')
    items = [(tt, hd) for tt in range(8) for hd in range(4)]
    def front(k):
        tt, hd = items[k]
        src = [(tt*8 + 2*hd + dt)*4 + r for dt in range(2) for r in range(4)]
        out = phi(src, PQ + 4*(k & 1), 8, TMP)
        if k == 0: out.append('s_waitcnt vmcnt(0)')
        for op in (2, 0, 1):
            out.append(f'v_mfma_f32_16x16x32_bf16 {vr(N + 12*(k&1) + 4*op,4)}, {vr(KVR + (hd*3+op)*4,4)}, {vr(PQ + 4*(k&1),4)}, 0')
        return out
    def back(k):
        tt, hd = items[k]
        n = N + 12*(k & 1); u = U + 4*(k & 1)
        out = [f'v_add_f32 v{n+8}, s{S_C2}, v{n+8}', f'v_rcp_f32 v{n+8}, v{n+8}']
        for r in range(0, 8, 2): out.append(f'v_pk_mul_f32 {vr(n+r,2)}, {vr(n+r,2)}, {vr(n+8,2)} op_sel_hi:[1,0]')
        for r in range(4): out.append(f'v_cvt_pk_bf16_f32 v{u+r}, v{n+2*r}, v{n+2*r+1}')
        out.append(f's_add_u32 s{G+1}, s{G}, {(tt>>1)*0x20000 + (hd>>1)*4096}')
        out.append(st(4, u, V_OO, G+1, (hd&1)*2048 + (tt&1)*256, 'sc1'))
        return out
    for k in range(len(items) + 1):
        if k < len(items): p(front(k))
        if k > 0: p(back(k-1))

def epi_out(p, TM, TN):
    G = S_G
    p(bits(V_G, [(0, 4, 12), (4, 1, 5), (5, 1, 4)], None, V_G+1))
    p(f's_mul_i32 s{G}, s{S_WM}, {TM*16*4096}')
    p(f's_mul_i32 s{G+1}, s{S_WN}, {TN*32}\ns_add_u32 s{G}, s{G}, s{G+1}\ns_add_u32 s{G}, s{G}, s{S_E+3}')
    n = 0
    pend = []
    for tt in range(TM):
        for u in range(TN//2):
            a = (tt*TN+2*u)*4
            t0 = V_E + (n % 4)*12; n += 1
            for r in range(8): p(f'v_accvgpr_read_b32 v{t0+r}, a{a+r}')
            p(pend)
            for r in range(4): p(f'v_cvt_pk_bf16_f32 v{t0+8+r}, v{t0+2*r}, v{t0+2*r+1}')
            pend = [f'v_permlane16_swap_b32 v{t0+8}, v{t0+10}', f'v_permlane16_swap_b32 v{t0+9}, v{t0+11}',
                    st(4, t0+8, V_G, G, u*64, '', S_OS)]
            if u == TN//2-1: pend.append(f's_add_u32 s{G}, s{G}, {16*4096}')
    p(pend)

def att_task(p, o):
    G = S_G; D = S_D
    SEG, NXT, HD, SRDY, SIG, SPF = S_A+8, S_A+9, S_A+10, S_A+11, S_A+12, S_A+13
    SX, SM_ = S_A+14, S_A+15
    a, b, c = V_G, V_G+1, V_G+2
    VL, VKM, VVM, VTR, NEG, VPG, PG, VSG, ONE = V_G+3, V_G+4, V_G+5, V_G+6, V_G+7, V_G+8, V_G+9, V_G+10, V_G+11
    Qf = lambda s_: 96*s_; Kf = lambda s_: 96*s_ + 32; KMf = lambda s_: 96*s_ + 64; VMf = lambda s_: 96*s_ + 80
    Or, Sr, P, VA = 64, 160, 184, 194
    mx, mt, rc, U = 226, 228, 230, 232
    p('s_barrier')
    p(f's_lshl2_add_u32 s{HD}, s{D+2}, s{S_WAVE}\ns_mov_b32 s{SEG}, s{D+1}\ns_mov_b32 s{SIG}, 0')
    p(f"""
    v_mul_u32_u24 v{a}, s{D+7}, v{V_LANE}
    v_add_u32 v{a}, s{D+1}, v{a}
    v_mov_b32 v{b}, s{D+1}
    v_cmp_gt_u32 vcc, s{D+3}, v{a}
    v_cndmask_b32 v{a}, v{b}, v{a}, vcc
    v_lshrrev_b32 v{a}, 2, v{a}
    v_lshlrev_b32 v{a}, 11, v{a}
    """)
    p(ssum(G, [(D+2, 8)], F_KV)); p(ssum(SPF, [(D+2, 8)], F_PROG))
    assert F_FIN - F_PROG == 2048
    SP0, SP1 = G+10, G+11
    PGL = f's_buffer_load_dword s{SP0}, {sr(S_WS,4)}, s{SPF} glc\ns_buffer_load_dword s{SP1}, {sr(S_WS,4)}, s{SPF} offset:2048 glc'
    p(f'{PGL}\nGA_w:\n{ld(1, b, a, G)}')
    p(bits(VL, [(0, 6, 4)], None, c))
    p(bits(VKM, [(4, 2, 7), (0, 3, 4)], None, c))
    p(bits(VVM, [(2, 2, 7), (0, 2, 4), (4, 1, 3)], None, c))
    p(ssum(G+3, [(S_WAVE, 14)]))
    p(bits(VTR, [(0, 2, 9), (4, 2, 6), (2, 2, 4)], G+3, c))
    p(f"""
    s_sub_u32 s{S_BUD}, s{S_BUD}, 1
    s_max_i32 s{S_BUD}, s{S_BUD}, 0
    s_movk_i32 s{G+1}, 0x408
    s_waitcnt vmcnt(0) lgkmcnt(0)
    v_cmp_ne_u32 vcc, s{G+1}, v{b}
    s_cbranch_vccz GA_wk
    s_cmp_eq_u32 s{S_BUD}, 0
    s_cbranch_scc1 GA_wk
    s_sleep 2
    s_branch GA_w
    GA_wk:
    """)
    def ready(seg):
        return [f's_add_u32 s{G+4}, s{seg}, 2', f's_cmp_ge_u32 s{SP1}, 16', f's_cselect_b32 s{G+1}, 99, s{SP0}', f's_cmp_ge_u32 s{G+1}, s{G+4}']
    kvx = o.get('kvx', 0) << 13
    blk = lambda dst, seg: segoff_s(dst, seg, G+1) + [f's_lshl_b32 s{G+1}, s{HD}, {HDS}', f's_add_u32 s{dst}, s{dst}, s{G+1}']
    def xloads(s_):
        out = []
        for h in range(2):
            first = True
            for u in (2*h, 2*h+1):
                for t in range(2):
                    i = [f's_add_u32 s{G+4}, s{SX}, {WS_Q + h*4096}', f's_add_u32 s{G+5}, s{SX}, {(WS_KX ^ kvx) + h*4096}', f's_xor_b32 s{G+4}, s{G+4}, s{S_GP}', f's_xor_b32 s{G+5}, s{G+5}, s{S_GP}'] if first else []
                    first = False
                    out.append(i + [ld(4, ar(Qf(s_)+(t*4+u)*4, 4), V_OO, G+4, (u&1)*2048 + t*256)])
                    out.append([ld(4, ar(Kf(s_)+(t*4+u)*4, 4), V_OO, G+5, (u&1)*2048 + t*256)])
        for h in range(2):
            for j in range(4):
                i = [f's_add_u32 m0, s{G+3}, {s_*8192 + h*4096}', f's_add_u32 s{G+4}, s{SX}, {(WS_VX ^ kvx) + h*4096}', f's_xor_b32 s{G+4}, s{G+4}, s{S_GP}'] if j == 0 else []
                out.append(i + [f'buffer_load_dwordx4 v{VL}, {sr(S_WS,4)}, s{G+4} offen offset:{1024*j} sc1 lds'])
        return out
    def mloads(s_):
        out = []
        for u in range(4): out.append(([f's_add_u32 s{G+4}, s{SM_}, {WS_KM}'] if u == 0 else []) + [ld(4, ar(KMf(s_)+4*u, 4), VKM, G+4, u*512)])
        for E in range(8): out.append(([f's_add_u32 s{G+4}, s{SM_}, {WS_VM}'] if E == 0 else []) + [ld(2, ar(VMf(s_)+2*E, 2), VVM, G+4, (E>>1)*512 + (E&1)*64)])
        return out
    def sigaddr(seg):
        return ssum(G+1, [(seg, 2), (D+2, 8)], F_O, G+2) + [f's_lshr_b32 s{G+2}, s{seg}, 2', f's_lshl_b32 s{G+2}, s{G+2}, 8', f's_add_u32 s{G+2}, s{G+2}, {F_OB}',
                f'v_writelane_b32 v{VSG}, s{G+1}, 0', f'v_writelane_b32 v{VSG}, s{G+2}, 1',
                f's_lshr_b32 s{G+2}, s{seg}, 1', f's_lshl_b32 s{G+2}, s{G+2}, 8', f's_add_u32 s{G+2}, s{G+2}, {F_OH}', f'v_writelane_b32 v{VSG}, s{G+2}, 2']
    SIGNAL = f'buffer_atomic_add v{ONE}, v{VSG}, {sr(S_WS,4)}, s{SIG} offen sc1'
    p(blk(SX, SEG))
    for x in xloads(0): p(x)
    p(bits(a, [(4, 2, 2)], None, c)); p(bits(b, [(0, 4, 0)], None, c))
    p(f'v_sub_u32 v{a}, v{b}, v{a}\nv_mov_b32 v{NEG}, 0xff800000\nv_mov_b32 v{ONE}, 1\nv_mov_b32 v{VSG}, 0x7ffffff0')
    for r in range(4): p(f'v_cmp_le_i32 {sr(S_A+2*r,2)}, {r}, v{a}')
    p(f's_mov_b32 s{G+6}, -1\ns_mov_b32 s{G+7}, 0\ns_mov_b32 s{G+8}, 0x{o["scl"]:08x}\ns_mov_b32 s{NXT}, s{SEG}\ns_branch GA_late1')
    S_ = lambda t, k: Sr + (t*3+k)*4
    O_ = lambda E, t: Or + (E*2+t)*4
    tiles = [(0, 0), (0, 1), (1, 0), (1, 1), (1, 2)]
    nval = [8, 12]
    P0x, P0m, P1x, P1m = P, P+2, P+4, P+8
    for s_ in range(2):
        q = []
        e = q.append
        def allred(op, base):
            for sw in ('16', '32'):
                for t in range(2): e(f'v_mov_b32 v{mt+t}, v{base+t}')
                for t in range(2): e(f'v_permlane{sw}_swap_b32 v{base+t}, v{mt+t}')
                for t in range(2): e(f'{op} v{base+t}, v{base+t}, v{mt+t}')
        p(f'GA_it{s_}:\ns_waitcnt vmcnt(8) lgkmcnt(0)')
        for E in range(8):
            for T_ in range(2): p(f'ds_read_b64_tr_b16 {vr(VA+4*E+2*T_,2)}, v{VTR} offset:{s_*8192 + (E>>1)*2048 + (E&1)*8 + T_*256}')
        p(f's_add_u32 s{NXT}, s{SEG}, s{D+7}')
        p(blk(SX, NXT)); p(ssum(SM_, [(NXT, 16), (HD, 11)], 0, G+1))
        p(ready(NXT))
        p(f's_cselect_b32 s{SRDY}, s{NXT}, 0\ns_cselect_b32 s{SM_}, s{SM_}, 0x40000000\ns_cmp_lt_u32 s{NXT}, s{D+3}\ns_cselect_b32 s{SX}, s{SX}, 0x40000000\ns_cselect_b32 s{SM_}, s{SM_}, 0x40000000')
        for u in range(4):
            for t, k in tiles:
                A = KMf(s_)+4*u if k == 0 else Kf(s_)+((k-1)*4+u)*4
                e(f'v_mfma_f32_16x16x32_bf16 {vr(S_(t,k),4)}, {ar(A,4)}, {ar(Qf(s_)+(t*4+u)*4,4)}, {"0" if u == 0 else vr(S_(t,k),4)}')
        for t in range(2):
            for r in range(4): e(f'v_cndmask_b32 v{S_(t,0)+r}, v{NEG}, v{S_(t,0)+r}, {sr(G+6,2)}')
            for r in range(4): e(f'v_cndmask_b32 v{S_(t,t+1)+r}, v{NEG}, v{S_(t,t+1)+r}, {sr(S_A+2*r,2)}')
        for t in range(2):
            s0 = S_(t, 0)
            e(f'v_max3_f32 v{mx+t}, v{s0}, v{s0+1}, v{s0+2}')
            for k in range(3, nval[t]-1, 2): e(f'v_max3_f32 v{mx+t}, v{mx+t}, v{s0+k}, v{s0+k+1}')
            e(f'v_max_f32 v{mx+t}, v{mx+t}, v{s0+nval[t]-1}')
        allred('v_max_f32', mx)
        for t in range(2): e(f'v_mul_f32 v{mx+t}, s{G+8}, v{mx+t}')
        for t in range(2):
            s0 = S_(t, 0)
            for k in range(nval[t]): e(f'v_fma_f32 v{s0+k}, v{s0+k}, s{G+8}, -v{mx+t}')
            for k in range(nval[t]): e(f'v_exp_f32 v{s0+k}, v{s0+k}')
        for dst, src, n in [(P0m, S_(0,0), 2), (P0x, S_(0,1), 2), (P1m, S_(1,0), 2), (P1x, S_(1,1), 4)]:
            for k in range(n): e(f'v_cvt_pk_bf16_f32 v{dst+k}, v{src+2*k}, v{src+2*k+1}')
        for t in range(2):
            s0 = S_(t, 0)
            for k in range(2, nval[t], 2): e(f'v_pk_add_f32 {vr(s0,2)}, {vr(s0,2)}, {vr(s0+k,2)}')
            e(f'v_add_f32 v{rc+t}, v{s0}, v{s0+1}')
        e('s_waitcnt lgkmcnt(0)'); e(PGL)
        for E in range(8):
            e(f'v_mfma_f32_16x16x16_bf16 {vr(O_(E,0),4)}, {ar(VMf(s_)+2*E,2)}, {vr(P0m,2)}, 0')
            e(f'v_mfma_f32_16x16x16_bf16 {vr(O_(E,1),4)}, {ar(VMf(s_)+2*E,2)}, {vr(P1m,2)}, 0')
            e(f'v_mfma_f32_16x16x16_bf16 {vr(O_(E,0),4)}, {vr(VA+4*E,2)}, {vr(P0x,2)}, {vr(O_(E,0),4)}')
            e(f'v_mfma_f32_16x16x32_bf16 {vr(O_(E,1),4)}, {vr(VA+4*E,4)}, {vr(P1x,4)}, {vr(O_(E,1),4)}')
            if E == 0:
                allred('v_add_f32', rc)
                for t in range(2): e(f'v_rcp_f32 v{rc+t}, v{rc+t}')
        lds_ = xloads(s_ ^ 1) + mloads(s_ ^ 1)
        cost = lambda x: 4 if x.startswith('v_mfma') else (2 if x.startswith(('v_exp', 'v_perml')) else 1)
        tot = sum(cost(x) for x in q); acc = 0; k = 0
        for x in q:
            p(x); acc += cost(x)
            while k < len(lds_) and acc*len(lds_) >= (k+1)*tot*0.95: p(lds_[k]); k += 1
        assert k == len(lds_)
        p(f's_waitcnt vmcnt({len(lds_)})'); p(SIGNAL)
        p(blk(G, SEG))
        p(sigaddr(SEG)); p(f's_mov_b32 s{SIG}, 0')
        n = 0
        for u in range(4):
            if u % 2 == 0: p(f's_add_u32 s{G+4}, s{G}, {WS_O + (u>>1)*4096}\ns_xor_b32 s{G+4}, s{G+4}, s{S_GP}')
            for t in range(2):
                u0 = U + 4*(n % 4); n += 1
                for pp in range(2):
                    d = O_(2*u+pp, t)
                    for r in (0, 2): p(f'v_pk_mul_f32 {vr(d+r,2)}, {vr(d+r,2)}, {vr(rc,2)} op_sel:[0,{t}] op_sel_hi:[1,{t}]')
                    for r in range(2): p(f'v_cvt_pk_bf16_f32 v{u0+2*pp+r}, v{d+2*r}, v{d+2*r+1}')
                p(st(4, u0, V_OO, G+4, (u&1)*2048 + t*256, 'sc1'))
        p(f"""
        s_mov_b32 s{SEG}, s{NXT}
        s_cmp_lt_u32 s{NXT}, s{D+3}
        s_cbranch_scc0 GA_end
        s_cmp_lg_u32 s{SRDY}, 0
        s_cbranch_scc1 GA_it{s_ ^ 1}
        s_waitcnt vmcnt(0) lgkmcnt(0)
        {SIGNAL}
        s_mov_b32 s{SIG}, 0x40000000
        GA_late{s_}:
        """)
        p(ready(NXT))
        p(f"""
        s_cbranch_scc1 GA_go{s_}
        s_cmp_eq_u32 s{S_BUD}, 0
        s_cbranch_scc1 GA_go{s_}
        s_sleep {o.get('attsleep', 4)}
        {PGL}
        s_sub_u32 s{S_BUD}, s{S_BUD}, 1
        s_waitcnt lgkmcnt(0)
        s_branch GA_late{s_}
        GA_go{s_}:
        """)
        p(ssum(SM_, [(NXT, 16), (HD, 11)], 0, G+1))
        for x in mloads(s_ ^ 1): p(x)
        p(f's_waitcnt vmcnt(0)\ns_branch GA_it{s_ ^ 1}')
    p(f'GA_end:\ns_waitcnt vmcnt(0) lgkmcnt(0)\n{SIGNAL}')

def g_role(p, o, verify):
    G = S_G; D = S_D
    g_init(p, o)
    def stamp():
        if o.get('gtrace'):
            p(f'''
            s_memrealtime s[{G}:{G+1}]
            s_add_u32 s98, s98, 4
            s_waitcnt lgkmcnt(0)
            v_mov_b32 v{V_G}, s{G}
            v_mov_b32 v{V_G+1}, 0
            {st(1, V_G, V_G+1, 98)}
            ''')
    fine = lambda k: (stamp if o.get('fine') == k else None)
    fs = lambda k: (stamp() if o.get('fine') == k else None)
    if o.get('gtrace'): p(ssum(98, [(S_XCD, 15), (S_IDX, 10), (S_WAVE, 8)], 0xF800000 - 4, G))
    p('G_next:'); p(fetch())
    p(f's_waitcnt lgkmcnt(0)\nG_have:\ns_mov_b32 s{S_TCH}, s{D}\ns_and_b32 s{D}, s{D}, 0xff')
    if o.get('gtrace'):
        p(f's_cmp_ge_u32 s{D}, {T_RED}\ns_cselect_b32 s{G}, 0, s{D}\ns_cmp_eq_u32 s{G}, 0\ns_cbranch_scc0 G_nst'); stamp(); p('G_nst:')
    p(f'''
    s_cmp_eq_u32 s{D}, {T_END}
    s_cbranch_scc1 G_end
    s_cmp_eq_u32 s{D}, {T_BQ}
    s_cbranch_scc1 G_nowait
    s_cmp_eq_u32 s{D+5}, 0
    s_cbranch_scc1 G_nowait
    ''')
    wait_flag(p, 'G_w', D+4, D+5, 0, 0xff)
    p(f'''
    G_nowait:
    s_mov_b32 s{S_XO}, s{D+1}
    s_mov_b32 s{S_WO}, s{D+2}
    s_mov_b32 s{S_CNT}, 8
    s_cmp_eq_u32 s{D}, {T_WAIT}
    s_cbranch_scc1 G_next
    s_cmp_eq_u32 s{D}, {T_RED}
    s_cbranch_scc1 G_red
    s_cmp_eq_u32 s{D}, {T_G3}
    s_cbranch_scc1 G_g3
    s_cmp_eq_u32 s{D}, {T_TAIL}
    s_cbranch_scc1 G_tail
    s_cmp_eq_u32 s{D}, {T_G3S}
    s_cbranch_scc1 G_g3
    s_cmp_eq_u32 s{D}, {T_ATT}
    s_cbranch_scc1 G_att
    ; ---- K = 1024 projections: choose the operands
    s_cmp_ge_u32 s{D}, {T_BKV}
    s_cselect_b64 s[{S_XS}:{S_XS+1}], s[{P_BX}:{P_BX+1}], s[{P_AX}:{P_AX+1}]
    s_cselect_b32 s{S_STR}, 6144, 8192
    s_cselect_b32 s{S_WSRD+2}, 0x600000, 0x800000
    s_cselect_b64 s[{S_WSRD}:{S_WSRD+1}], s[{P_BW}:{P_BW+1}], s[{P_WQ}:{P_WQ+1}]
    s_cselect_b32 s{G}, 0, s{D+7}
    s_and_b32 s{G}, s{G}, 3
    s_cmp_eq_u32 s{G}, 1
    s_cselect_b64 s[{S_WSRD}:{S_WSRD+1}], s[{P_WK}:{P_WK+1}], s[{S_WSRD}:{S_WSRD+1}]
    s_cmp_eq_u32 s{G}, 2
    s_cselect_b64 s[{S_WSRD}:{S_WSRD+1}], s[{P_WV}:{P_WV+1}], s[{S_WSRD}:{S_WSRD+1}]
    s_cmp_eq_u32 s{D}, {T_BKV}
    s_cbranch_scc1 G_bkv
    '''.replace('s_cselect_b32 s%d, 6144, 8192' % S_STR, 's_mov_b32 s%d, 8192\ns_cselect_b32 s%d, 6144, s%d' % (S_STR, S_STR, S_STR))
       .replace('s_cselect_b32 s%d, 0x600000, 0x800000' % (S_WSRD+2), 's_mov_b32 s%d, 0x800000\ns_cselect_b32 s%d, 0x600000, s%d' % (S_WSRD+2, S_WSRD+2, S_WSRD+2)))
    p(f's_cmp_eq_u32 s{D}, {T_G1H}\ns_cbranch_scc0 G_g1f')
    sigval = lambda w: f's_and_b32 s{G+2}, s{S_E+7}, 3\ns_cselect_b32 s{G+2}, {w}, {w << 8}'
    def touch(p):
        b = V_G+9
        p(f's_and_b32 s{G+2}, s{S_IDX}, 15\ns_and_b32 s{G}, s{D+1}, 0xfffff000'); p(ssum(G+2, [(G+2, 14), (S_WAVE, 12), (G, 0)], 0, G+1))
        p(f's_bitcmp1_b32 s{D+7}, 3\ns_cselect_b32 s{G+2}, s{G+2}, 0x40000000')
        p(bits(b, [(0, 5, 7), (5, 1, 19)], G+2, V_G+10))
        p(ld(1, V_G+10, b, '0', 0, '', S_XS))
        if not o.get('touch2', 1): return 1
        p(f's_mov_b32 s{G}, 0x100000\n' + ld(1, V_G+10, b, G, 0, '', S_XS))
        return 2
    A = S_A + 2; PF = V_G + 8
    share = f"""
    s_bfe_u32 s{G}, s{S_TCH}, 0x20008
    s_mov_b64 {sr(A,2)}, {sr(P_AX,2)}
    s_mov_b32 s{A+2}, 0x400000
    s_mov_b32 s{A+3}, 0x20000
    s_mov_b32 s{G+1}, 16384
    s_mov_b32 s{A+5}, 0x40000000
    s_cmp_eq_u32 s{G}, 1
    s_cselect_b64 {sr(A,2)}, {sr(P_BX,2)}, {sr(A,2)}
    s_cmp_eq_u32 s{G}, 2
    s_cselect_b64 {sr(A,2)}, {sr(P_BW,2)}, {sr(A,2)}
    s_cselect_b32 s{A+2}, 0x600000, s{A+2}
    s_cselect_b32 s{A+5}, s{G+1}, s{A+5}
    s_cselect_b32 s{G+1}, 24576, s{G+1}
    s_cmp_eq_u32 s{G}, 3
    s_cselect_b64 {sr(A,2)}, {sr(P_BO,2)}, {sr(A,2)}
    s_cselect_b32 s{A+2}, 0x200000, s{A+2}
    s_bfe_u32 s{G}, s{S_TCH}, 0x80010
    s_xor_b32 s{G}, s{G}, 0xff
    s_lshl2_add_u32 s{G}, s{G}, s{S_WAVE}
    s_mul_i32 s{G}, s{G}, s{G+1}
    s_mov_b32 s{A+4}, 8192
    v_lshl_add_u32 v{PF}, v{V_LANE}, 7, s{G}
    """
    last = [ld(1, PF+1, PF, so, 0, '', A) for so in ('0', A+4, A+5)]
    p(f's_mov_b32 s{S_CNT}, 4')
    E = S_E
    st_ = stamp if o.get('gtrace') else None
    setup_w(p, 4); setup_x(p, 4, False); p(share)
    core(p, 'G1H', 4, 4, 4, False, False, '', o['hook_reg'], wfl=o.get('ntq', ''), pre=touch, last=last, stamp=st_)
    verify(p, 'GV1')
    epi_units(p, 4, 4)
    p(sigval(1)); signal(p, 'G1H_s', E+6, f's{G+2}')
    p('s_branch G_have\nG_red:')
    task_red(p); signal(p, 'G_red_s', D+6, 1)
    p('s_branch G_next\nG_att:')
    att_task(p, o)
    p('s_branch G_next\nG_g3:')
    p(f"""
    s_mov_b64 s[{S_WSRD}:{S_WSRD+1}], s[{P_WO}:{P_WO+1}]
    s_mov_b32 s{S_WSRD+2}, 0x800000
    s_mov_b32 s{S_CNT}, 16
    s_mov_b32 s{G+9}, 0x80000
    s_mov_b32 s{S_STR}, 2048
    """)
    setup_w(p, 4, perm=True)
    p(f's_cmp_eq_u32 s{D}, {T_G3S}\ns_cbranch_scc1 G_g3s')
    setup_x(p, 4, True, G+9); core(p, 'G3', 4, 4, 4, True, False, 'sc1', stamp=st_)
    epi_out(p, 4, 4)
    p('s_branch G_have\nG_g3s:')
    setup_x(p, 2, True, G+9); core(p, 'G3S', 2, 4, 4, True, False, 'sc1', stamp=st_)
    epi_out(p, 2, 4)
    p('s_branch G_have\nG_g1f:')
    setup_w(p, 8); setup_x(p, 8, False)
    p(share); core(p, 'G1F', 8, 8, 2, False, False, last=last, stamp=st_)
    p(f's_cmp_eq_u32 s{E}, {T_BQ}\ns_cbranch_scc1 G_ebq')
    epi_units(p, 8, 8)
    p(sigval(2)); signal(p, 'G1F_s', E+6, f's{G+2}', '3', 2048)
    p('s_branch G_have\nG_ebq:')
    wait_flag(p, 'G_bqw', E+4, E+5)
    epi_bq(p); signal(p, 'G_bq_s', E+6, 1)
    p('s_branch G_have\nG_bkv:')
    setup_w(p, 8, True); setup_x(p, 8, False); core(p, 'GKV', 8, 8, 2, False, True, stamp=st_)
    epi_bkv(p); signal(p, 'G_bkv_s', E+6, 1)
    p('s_branch G_have\nG_tail:')
    p(f's_mov_b64 s[{S_WSRD}:{S_WSRD+1}], s[{P_BO}:{P_BO+1}]\ns_mov_b32 s{S_WSRD+2}, 0x200000\ns_mov_b32 s{G+9}, 0x20000\ns_mov_b32 s{S_STR}, 2048')
    setup_w(p, 8, perm=True); setup_x(p, 8, True, G+9); core(p, 'G3F', 8, 8, 2, True, False, 'sc1', stamp=st_)
    epi_out(p, 8, 8)
    p('s_branch G_have\nG_end:')

KVX = [0]
def t_proj(mat, row0, nt, pf=0):
    base = [WS_Q, WS_KX ^ KVX[0], WS_VX ^ KVX[0]][mat]
    return [T_G1F, row0*2048, nt*512, base + segoff(row0//32) + (nt*2 << HDS), 0, 0, F_KV + (row0//128)*2048 + (nt//2)*256, mat + 4*pf]
def t_projq(mat, blk, h, rot=0, cold=0, pf=0):
    base = [WS_Q, WS_KX ^ KVX[0], WS_VX ^ KVX[0]][mat]
    return [T_G1H, blk*128*2048 + rot*128, h*256 + rot*64*8192, base + segoff(4*blk) + (h << HDS), 0, 0, F_KV + blk*2048 + (h//4)*256, mat + 8*cold + 4*pf]
def t_bkv(mt, nt): return [T_BKV, mt*256*2048, 2048 + nt*256, WS_KVP + (2*mt*32 + 4*nt)*6144, 0, 0, F_BKV + nt*256, 0]
def t_red(h): return [T_RED, WS_KVP + h*6144, 0, WS_KVR + h*3072, F_BKV + (h//4)*256, 8, F_BRED + (h//8)*256, 0]
def t_bq(mt, nt): return [T_BQ, mt*256*2048, nt*512, WS_OB + mt*8*0x20000 + nt*0x8000 + ((mt >> 1) & 1)*0x2000, F_BRED + nt*256, 8, F_BQ + mt*256, WS_KVR + nt*8*3072]
def t_bwo(blk, n8): return [T_G3, WS_OB + blk*4*0x10000, n8*256, blk*128*4096 + 2048 + n8*256, F_BQ + (blk//2)*256, 4, 0, 0]
def t_wo(blk, n8): return [T_G3, WS_O + segoff(4*blk), n8*256, blk*128*4096 + n8*256, F_OB + blk*256, 128, 0, 1]
def t_wos(hb, n8): return [T_G3S, WS_O + segoff(2*hb), n8*256, hb*64*4096 + n8*256, F_OH + hb*256, 64, 0, 1]
def t_wait(off, val): return [T_WAIT, 0, 0, 0, off, val, 0, 0]
def t_att(seg0, seg1, v, step=1): return [T_ATT, seg0, v, seg1, 0, 0, 0, step]
def t_bwof(mt, nt): return [T_TAIL, WS_OB + mt*8*0x20000 + ((mt >> 1) & 1)*0x2000, nt*512, mt*256*4096 + 2048 + nt*512, F_BQ + mt*256, 4, 0, 0]
def warm(t, buf, share): return [t[0] | buf << 8 | (share ^ 0xff) << 16] + t[1:]
def schedule(o):
    import sched_g
    KVX[0] = o.get('kvx', 0) << 13
    return sched_g.schedule(o)
def table(lists, ntask):
    out = ['.p2align 6', '.type G_table,@object', 'G_table:']
    for L in lists:
        assert len(L) < ntask
        for t in L + [[0]*8]*(ntask - len(L)):
            out.append('.long ' + ','.join(hex(x) if x > 9 else str(x) for x in t))
    return '\n'.join(out) + '\n'
```

```python
from asmlib import *
import math
WS_B    = 0x0000000
WS_M2   = 0x0200000
M2_A    = 0x10000
WS_FLAG = 0x0400000
WS_KM   = 0x0800000
WS_VM   = 0x0C00000
WS_KX   = 0x1000000
WS_VX   = 0x1202000
HDS = 14
def segoff(seg): return (seg << 19) + ((seg >> 2) << 21)
def segoff_s(dst, seg, tmp): return [f's_lshl_b32 s{dst}, s{seg}, 19', f's_and_b32 s{tmp}, s{dst}, 0xffe00000', f's_add_u32 s{dst}, s{dst}, s{tmp}']
S_GP = 7
WS_TRACE = 0xF000000
WS_SIZE = 0x10000000 - 0x200000
NSEG = 64
S_WS = 8
S_XCD, S_IDX, S_WAVE = 12, 13, 14
S_BUD = 15
S_DBG = 16
S_V, S_C, S_J, S_H = 20, 21, 22, 23
S_STEP, S_CUR, S_NXT, S_RST = 24, 25, 26, 27
S_KXO, S_VXO, S_WUO, S_KMO = 28, 29, 30, 31
S_SRD = 32
S_T = 36
S_M_LO8, S_M_HI8, S_M_SM, S_M_C, S_M_32 = 44, 46, 48, 50, 52
S_SCL = 54
S_PERM0, S_PERM1 = 55, 56
S_POL = 57
S_NOCHK = 58
S_PRV = 59
S_PVX = 95
S_JV = 92
S_CU1 = 96
S_M_F = 100
S_KVF, S_KVO = 18, 19
F_KV_ = WS_FLAG + 0x8000
F_FIN_ = WS_FLAG + 0x0800
F_OV_ = WS_FLAG + 0x4000
F_P_ = WS_FLAG + 0x5000
WS_O_ = 0x5202000
WS_PART = 0xA000000
S_ST = 60
S_TAG, S_PFV, S_PFK, S_FBO, S_JUNK, S_SPIN = 86, 88, 89, 92, 93, 94
S_FB = 96
M2_F = 0x50000
B_F = 0x40000
V_LANE = 1
(V_CLD, V_CST, V_ALD, V_ALM, V_ALV, V_P0, V_P1, V_BST, V_BLD, V_KX, V_VX0, V_VX1, V_WU,
 V_L1W, V_L1WK, V_L1WV, V_L1R, V_L1R2, V_L2W0, V_L2W1, V_L2R, V_IDX1, V_IDX2, V_PST) = range(2, 26)
V_SELM = 26
V_SENT = 28
V_ONES = 32
V_BW = 40
V_VXD = 72
V_KXD = 104
V_ACC1 = 112
V_VWM = 136
V_FIN = 152
V_KEEP = 172
V_P = 176
V_SELA = 180
V_SELB = 184
V_T = 188
V_FA, V_TAG = 252, 253
V_FAV, V_FCV, V_FAL, V_FCL = V_T+60, V_T+61, V_T+62, V_T+63
V_PRG = 0
V_TB, V_LC = V_T+56, V_T+57
S_FB8, S_TB, S_FBO2 = 44, 97, 98
LDS3 = 20480
OOB = 0x7ffffff0
A_W1 = 0
A_WO = 192
W1 = lambda mat, tq, i: A_W1 + ((mat*2 + tq)*4 + i)*8
WO = lambda tq, ks: A_WO + (tq*2 + ks)*8
LDS1 = 0
LDS2 = 12288

def ld(n, dst, voff, soff, imm=0, fl='sc1', srd=S_WS):
    suf = {1: 'dword', 2: 'dwordx2', 4: 'dwordx4'}[n]
    d = dst if isinstance(dst, str) else vr(dst, n)
    so = soff if isinstance(soff, str) else sr(soff)
    return f'buffer_load_{suf} {d}, {vr(voff)}, {sr(srd,4)}, {so} offen offset:{imm} {fl}'
def st(n, src, voff, soff, imm=0, fl='', srd=S_WS):
    suf = {1: 'dword', 2: 'dwordx2', 4: 'dwordx4'}[n]
    so = soff if isinstance(soff, str) else sr(soff)
    return f'buffer_store_{suf} {vr(src, n)}, {vr(voff)}, {sr(srd,4)}, {so} offen offset:{imm} {fl}'
def zero(base, n): return [f'v_mov_b64 {vr(base+i,2)}, 0' for i in range(0, n, 2)]
def setexec(m): return f's_mov_b64 exec, {sr(m,2)}' if m is not None else 's_mov_b64 exec, -1'
def bits(dst, terms, base=None, tmp=None, src=V_LANE):
    out = []
    first = True
    for lo, w, sh in terms:
        if first:
            out.append(f'v_bfe_u32 v{dst}, v{src}, {lo}, {w}')
            if sh: out.append(f'v_lshlrev_b32 v{dst}, {sh}, v{dst}')
            first = False
        else:
            out.append(f'v_bfe_u32 v{tmp}, v{src}, {lo}, {w}')
            out.append(f'v_lshl_add_u32 v{dst}, v{tmp}, {sh}, v{dst}')
    if base is not None:
        out.append(f'v_add_u32 v{dst}, {base[1] if isinstance(base, tuple) else "s%d" % base}, v{dst}')
    return out
def ssum(dst, terms, lit=0, tmp=None):
    out = []
    first = True
    for s_, sh in terms:
        if first: out.append(f's_lshl_b32 s{dst}, s{s_}, {sh}'); first = False
        else: out += [f's_lshl_b32 s{tmp}, s{s_}, {sh}', f's_add_u32 s{dst}, s{dst}, s{tmp}']
    if lit: out.append(f's_add_u32 s{dst}, s{dst}, {lit}')
    return out

def r_setup(p, o):
    T = S_T
    a, b, c_ = V_T+5, V_T+6, V_T+7
    L = V_LANE
    B = lambda dst, terms, base=None: p(bits(dst, terms, base, c_))
    S = lambda terms, lit=0, dst=T+1: p(ssum(dst, terms, lit, T+3))
    p(f'''
    s_lshr_b32 s{T}, s{S_IDX}, 4
    s_lshl1_add_u32 s{S_V}, s{S_XCD}, s{T}
    s_and_b32 s{S_C}, s{S_IDX}, 15
    s_and_b32 s{S_J}, s{S_C}, 3
    s_xor_b32 s{S_JV}, s{S_J}, 2
    s_lshr_b32 s{T}, s{S_C}, 2
    s_lshl2_add_u32 s{S_H}, s{S_V}, s{T}
    s_lshl2_add_u32 s{T+4}, s{S_V}, s{S_WAVE}
    s_mov_b32 s{S_M_32}, -1
    s_mov_b32 s{S_M_32+1}, 0
    s_mov_b32 s{S_SCL}, 0x{o['scl']:08x}
    s_mov_b32 s{S_PERM0}, 0x05040100
    s_mov_b32 s{S_PERM1}, 0x07060302
    ''')
    S([(S_XCD, 14), (S_WAVE, 12)], WS_M2); B(V_CLD, [(0, 6, 4)], T+1)
    S([(S_XCD, 14), (S_IDX, 9), (S_WAVE, 7)], WS_M2); B(V_CST, [(0, 3, 4), (4, 1, 3)], T+1)
    p(f's_lshr_b32 s{T}, s{S_IDX}, 1\ns_and_b32 s{T+2}, s{S_IDX}, 1')
    S([(T, 14), (T+2, 12), (S_WAVE, 10)]); B(V_BLD, [(0, 6, 4)], T+1)
    sB = o.get('syncB', 1)
    if sB: S([(S_C, 14), (S_WAVE, 12), (S_V, 7)]); B(V_BST, [(0, 4, 3), (4, 2, 10)], T+1)
    else: S([(S_C, 14), (S_WAVE, 11), (S_V, 7)]); B(V_BST, [(0, 4, 3), (4, 1, 10), (5, 1, 18)], T+1)
    S([(T+4, 13)], WS_M2 + M2_A); B(V_ALD, [(0, 6, 4)], T+1)
    p(f'v_add_u32 v{V_ALV}, 3072, v{V_ALD}')
    S([(T+4, 13)], WS_M2 + M2_A + 2048); B(V_ALM, [(0, 6, 3)], T+1)
    S([(T+4, HDS)], WS_VX); B(V_VX0, [(4, 2, 9), (3, 1, 8), (1, 1, 6), (2, 1, 5), (0, 1, 4)], T+1)
    p(f'v_add_u32 v{V_VX1}, 4096, v{V_VX0}')
    S([(T+4, HDS), (S_C, 9)], WS_VX, S_PFV)
    S([(S_H, HDS), (S_J, 11), (S_WAVE, 9)], WS_KX, S_PFK)
    def only(reg, cond):
        p(f'v_mov_b32 v{b}, {OOB}\n{cond}\nv_cndmask_b32 v{reg}, v{b}, v{reg}, vcc')
    p(f's_lshr_b32 s{T}, s{S_IDX}, 2')
    S([(S_XCD, 12), (T, 7), (S_J, 4), (S_WAVE, 2)], WS_M2 + M2_F); B(V_FA, [(0, 2, 10)], T+1)
    only(V_FA, f'v_cmp_gt_u32 vcc, 4, v{L}')
    p(f's_and_b32 s{T}, s{S_V}, 1')
    S([(S_XCD, 12), (T, 9), (S_WAVE, 7)], WS_M2 + M2_F); B(V_FAL, [(0, 4, 2)], T+1)
    S([(S_XCD, 12), (S_WAVE, 8)], WS_M2 + M2_F + 16384); B(V_FCL, [(4, 1, 7), (0, 4, 2)], T+1)
    p(f'v_mov_b32 v{V_FAV}, -1\nv_mov_b32 v{V_FCV}, -1')
    S([(S_V, 8)], WS_FLAG); p(f'v_mov_b32 v{V_PRG}, s{T+1}\ns_lshl_b32 s{T+1}, s{S_C}, 6'); only(V_PRG, f'v_cmp_eq_u32 vcc, s{T+1}, v{L}')
    B(a, [(3, 1, 0), (5, 1, 1)]); only(V_CST, f'v_cmp_eq_u32 vcc, 0, v{a}')
    if not o.get('nB2') and not sB: only(V_BST, f'v_cmp_gt_u32 vcc, 32, v{L}')
    if o.get('two', 0):
        lg = o['two'].bit_length() - 1
        p(f's_and_b32 s{T}, s{S_V}, {(2 << lg) - 1}\ns_lshr_b32 s{T+2}, s{S_V}, {1 + lg}'); S([(T, 15), (S_C, 8), (T+2, 2)], B_F)
    else: S([(S_C, 8), (S_V, 2)], B_F)
    B(V_WU, [(2, 1, 14), (1, 1, 12), (0, 1, 7)], T+1)
    p(f'v_mov_b32 v{b}, 0x20000000\nv_cmp_gt_u32 vcc, 8, v{L}\nv_cndmask_b32 v{V_WU}, v{b}, v{V_WU}, vcc')
    p(f's_lshr_b32 s{T}, s{S_XCD}, 1\ns_and_b32 s{T+2}, s{S_XCD}, 1')
    S([(T, 14), (T+2, 12), (S_IDX, 7)], B_F, S_FBO2)
    if o.get('two', 0): p(f's_and_b32 s{T}, s{S_WAVE}, 1\ns_lshl_b32 s{T}, s{T}, 15\ns_add_u32 s{S_FBO2}, s{S_FBO2}, s{T}')
    B(V_LC, [(0, 6, 2)], ('lit', LDS3))
    S([(S_H, HDS), (S_J, 11)], WS_KX); B(V_KX, [(4, 2, 9), (0, 4, 4)], T+1)
    p(f'''
    v_and_b32 v{a}, 2, v{L}
    v_cmp_eq_u32 vcc, 0, v{a}
    v_mov_b32 v{a}, 0x4444
    v_mov_b32 v{b}, 0xeeee
    v_cndmask_b32 v{V_IDX1}, v{b}, v{a}, vcc
    v_mov_b32 v{a}, 0xe484
    v_mov_b32 v{b}, 0xee9e
    v_cndmask_b32 v{V_IDX2}, v{b}, v{a}, vcc
    v_mov_b32 v{a}, 0x84e4
    v_mov_b32 v{b}, 0x9eee
    v_cndmask_b32 v{a}, v{b}, v{a}, vcc
    v_cmp_gt_u32 vcc, 32, v{L}
    v_cndmask_b32 v{V_IDX2}, v{a}, v{V_IDX2}, vcc
    ''')
    for k in range(4): p(f'v_mov_b32 v{V_SENT+k}, -1')
    for k in range(8): p(f'v_mov_b32 v{V_ONES+k}, {"0" if k % 4 == 3 else "0x3f803f80"}')
    for tq in range(4): p(f'v_mov_b32 v{V_BW+8*tq+3}, 0\nv_mov_b32 v{V_BW+8*tq+7}, 0')
    B(a, [(0, 1, 4)]); p(f'v_mov_b32 v{b}, 0x3f80\nv_lshlrev_b32 v{a}, v{a}, v{b}')
    B(b, [(1, 3, 0)])
    for k in range(8): p(f'v_cmp_eq_u32 vcc, {k}, v{b}\nv_cndmask_b32 v{V_SELA+k}, 0, v{a}, vcc')
    B(a, [(3, 1, 4)]); p(f'v_mov_b32 v{b}, 0x3f80\nv_lshlrev_b32 v{a}, v{a}, v{b}')
    B(b, [(2, 1, 0)])
    for k in range(2): p(f'v_cmp_eq_u32 vcc, {k}, v{b}\nv_cndmask_b32 v{V_SELM+k}, 0, v{a}, vcc')
    S([(S_WAVE, 10)], LDS1); B(a, [(4, 2, 8), (1, 3, 4), (0, 1, 3)], T+1)
    B(b, [(4, 2, 5)])
    p(f'v_xor_b32 v{V_L1W}, v{a}, v{b}\nv_xor_b32 v{V_L1WK}, 16, v{V_L1W}\nv_add_u32 v{V_L1WK}, 4096, v{V_L1WK}')
    B(b, [(4, 1, 6), (5, 1, 5)])
    p(f'v_xor_b32 v{V_L1WV}, v{a}, v{b}\nv_add_u32 v{V_L1WV}, 8192, v{V_L1WV}')
    S([(S_WAVE, 11)], LDS2); B(a, [(4, 2, 9), (0, 4, 4)], T+1)
    B(b, [(4, 2, 6)])
    p(f'v_xor_b32 v{V_L2W0}, v{a}, v{b}\nv_xor_b32 v{V_L2W1}, 32, v{V_L2W0}')
    if sB: p(f's_and_b32 s{T}, s{S_WAVE}, 1'); S([(T, 7)], LDS2); B(a, [(3, 2, 9), (1, 1, 8), (5, 1, 6), (2, 1, 5), (0, 1, 4)], T+1)
    else: S([(S_WAVE, 6)], LDS2); B(a, [(3, 2, 9), (1, 1, 8), (2, 1, 5), (0, 1, 4)], T+1)
    B(b, [(3, 2, 6), (1, 1, 5)])
    p(f'v_xor_b32 v{V_L2R}, v{a}, v{b}')
    S([(S_H, 13)], WS_M2 + M2_A, T+5)
    p(f'''
    s_cmp_eq_u32 s{S_WAVE}, 1
    s_cbranch_scc1 R_su1
    s_cmp_eq_u32 s{S_WAVE}, 2
    s_cbranch_scc1 R_su2
    s_cmp_eq_u32 s{S_WAVE}, 3
    s_cbranch_scc1 R_su3
    ''')
    B(a, [(3, 1, 12), (0, 3, 7), (4, 2, 5)], ('lit', LDS1) if LDS1 else None)
    B(b, [(1, 2, 5), (3, 1, 4)])
    p(f'v_xor_b32 v{V_L1R}, v{a}, v{b}\nv_xor_b32 v{V_L1R2}, 16, v{V_L1R}')
    S([(T+5, 0), (S_J, 8)]); B(V_P0, [(5, 1, 10), (1, 2, 6), (4, 1, 5), (0, 1, 4)], T+1)
    S([(T+5, 0), (S_J, 7)], 2048); B(V_P1, [(1, 2, 5), (4, 1, 4), (0, 1, 3)], T+1)
    S([(S_H, 11), (S_J, 9)], WS_KM); B(V_PST, [(4, 2, 7), (0, 3, 4)], T+1)
    B(a, [(3, 1, 0)]); only(V_P0, f'v_cmp_eq_u32 vcc, 0, v{a}'); only(V_PST, f'v_cmp_eq_u32 vcc, 1, v{a}')
    B(a, [(3, 1, 0), (5, 1, 1)]); only(V_P1, f'v_cmp_eq_u32 vcc, 2, v{a}')
    p('s_branch R_sud\nR_su1:')
    p(f'v_cmp_gt_u32 vcc, 32, v{L}')
    S([(T+5, 0), (S_J, 8)]); B(a, [(4, 1, 10), (0, 4, 4)], T+1)
    S([(T+5, 0), (S_JV, 9)], 3072); B(b, [(0, 5, 4)], T+1)
    p(f'v_cndmask_b32 v{V_P0}, v{b}, v{a}, vcc')
    S([(S_XCD, 14), (S_IDX, 9)], WS_M2); B(a, [(0, 5, 4)], T+1)
    S([(T+5, 0), (S_J, 7)], 2048); B(b, [(0, 3, 4)], T+1)
    p(f'v_cndmask_b32 v{V_P1}, v{b}, v{a}, vcc')
    S([(S_C, 14), (S_V, 7)]); B(V_KX, [(0, 3, 4), (3, 2, 10), (5, 1, 18)], T+1)
    if not o.get('nB2'): only(V_KX, f'v_cmp_gt_u32 vcc, 32, v{L}')
    p(f'v_mov_b32 v{V_PST}, 0\nv_mov_b32 v{V_L1R}, 0\nv_mov_b32 v{V_L1R2}, 0\ns_branch R_sud\nR_su2:')
    B(a, [(5, 1, 6), (2, 1, 5), (3, 2, 3), (1, 1, 2), (0, 1, 9)], ('lit', LDS1 + 8192))
    B(b, [(0, 1, 5)])
    p(f'v_xor_b32 v{V_L1R}, v{a}, v{b}\nv_xor_b32 v{V_L1R2}, 64, v{V_L1R}')
    S([(S_H, 11), (S_JV, 9)], WS_VM); B(V_PST, [(0, 6, 3)], T+1)
    p(f'v_mov_b32 v{V_P0}, 0\nv_mov_b32 v{V_P1}, 0\ns_branch R_sud\nR_su3:')
    B(a, [(1, 1, 9), (3, 2, 7), (5, 1, 6), (2, 1, 5), (0, 1, 4)], ('lit', LDS1 + 8192))
    B(b, [(4, 1, 6), (1, 1, 5)])
    p(f'v_xor_b32 v{V_L1R}, v{a}, v{b}')
    S([(T+5, 0), (S_JV, 9)], 3072); B(V_P0, [(0, 6, 3)], T+1)
    S([(S_C, 14), (S_V, 7)], 4096); B(V_KX, [(0, 3, 4), (3, 2, 10), (5, 1, 18)], T+1)
    if not o.get('nB2'): only(V_KX, f'v_cmp_gt_u32 vcc, 32, v{L}')
    p(f'v_mov_b32 v{V_L1R2}, 0\nv_mov_b32 v{V_P1}, 0\nv_mov_b32 v{V_PST}, 0\nR_sud:')

def r_weights(p, o):
    T = S_T
    c_ = V_T+7
    W1o, WOo, WVo = V_T+24, V_T+28, V_T+32
    lqk, lv_, lo, ad = V_T+8, V_T+9, V_T+10, V_T+11
    hq, ho = V_T+36, V_T+37
    B = lambda dst, terms, base=None: p(bits(dst, terms, base, c_))
    NS = o.get('NS', 8)
    SO, SM = S_KXO, S_VXO
    p(f"""
    s_load_dwordx2 s[{T}:{T+1}], s[0:1], 16
    s_load_dwordx2 s[{T+2}:{T+3}], s[0:1], 24
    s_load_dwordx2 s[{T+4}:{T+5}], s[0:1], 32
    s_load_dwordx2 s[{T+6}:{T+7}], s[0:1], 40
    s_mul_i32 s{SM}, s{S_WAVE}, {NS*4096}
    """)
    p(ssum(S_SRD, [(S_WAVE, 21), (S_H, 8), (S_J, 6)], 0, S_SRD+1))
    B(W1o, [(2, 4, 13), (0, 2, 4)], S_SRD)
    for j in range(1, 4): p(f'v_add_u32 v{W1o+j}, {j*16*8192 - 1024*j}, v{W1o}')
    for j in range(4): p(f'v_xor_b32 v{WVo+j}, 128, v{W1o+j}')
    p(ssum(S_SRD, [(S_V, 20), (S_WAVE, 18), (S_C, 7)], 0, S_SRD+1))
    B(WOo, [(3, 3, 11), (0, 3, 4)], S_SRD)
    for j in range(1, 4): p(f'v_add_u32 v{WOo+j}, {j*8*2048 - 1024*j}, v{WOo}')
    p(f's_mov_b32 s{S_SRD+2}, 0x800000\ns_mov_b32 s{S_SRD+3}, 0x20000\ns_waitcnt lgkmcnt(0)')
    order = [(m, i) for pr in o.get('word', ((1, 2), (0, 3))) for i in range(4) for m in pr]
    def issue1(k, j):
        mat, i = order[k]
        return [f's_mov_b32 s{S_SRD}, s{T+2*mat}\ns_mov_b32 s{S_SRD+1}, s{T+2*mat+1}', f's_add_u32 m0, s{SM}, {(k % NS)*4096}',
                f's_mov_b32 s{SO}, {64*i*8192 if mat < 3 else 32*i*2048}',
                f'buffer_load_dwordx4 v{[W1o, W1o, WVo, WOo][mat]+j}, {sr(S_SRD,4)}, s{SO} offen offset:{1024*j} {o.get("ntw", [""]*4)[mat]} lds']
    def issue(k):
        return [x for kk in (k, k+1) for j in range(4) for x in (issue1(kk, j) if j == 0 else issue1(kk, j)[-1:])]
    if o.get('help', 1):
        p(ssum(SO, [(S_IDX, 18), (S_WAVE, 16), (S_XCD, 11)], 0x180, S_WUO)); B(hq, [(0, 3, 13), (3, 1, 10), (4, 1, 10), (4, 1, 9)], SO)
        p(ssum(SO, [(S_XCD, 21), (S_IDX, 16), (S_WAVE, 14)], 0x180, S_WUO)); B(ho, [(0, 4, 10)], SO)
    def helper(mats):
        p('s_bfm_b64 exec, 24, 0')
        for mat in mats: p(f's_mov_b32 s{S_SRD}, s{T+2*mat}\ns_mov_b32 s{S_SRD+1}, s{T+2*mat+1}\n' + ld(1, V_T+38, hq if mat < 3 else ho, '0', 0, '', S_SRD))
        p('s_mov_b64 exec, -1')
    assert NS == 8
    p(f's_buffer_load_dword s{S_JUNK}, {sr(S_WS,4)}, 0x7f000')
    helper((1, 2))
    for k in range(0, NS, 2):
        if k == o.get('help2', 8): helper((0, 3))
        p(issue(k))
    B(lqk, [(5, 1, 10), (4, 1, 8), (1, 1, 5), (2, 2, 3), (0, 1, 2)], SM)
    B(lv_, [(5, 1, 10), (4, 1, 8), (0, 1, 5), (3, 1, 4), (1, 1, 3), (2, 1, 2)], SM)
    B(lo, [(4, 2, 9), (0, 4, 3)], SM)
    if o.get('hook_race'): o['hook_race'](p, 4*NS + (4 if o.get('help2', 8) < 8 else 2))
    sb = 72
    for k in range(16):
        mat, i = order[k]
        if k % 2 == 0: p(f's_waitcnt vmcnt({4*(min(k+NS-1, 15) - k - 1) + (4 if k + NS > 16 else 0)})')
        for R in range(2):
            p(f'v_add_u32 v{ad}, {(k % NS)*4096 + R*2048}, v{[lqk, lqk, lv_, lo][mat]}')
            if mat < 3:
                for vv in range(4):
                    o0 = 128*(vv & 1) + 32*(vv >> 1)
                    p(f'ds_read2_b32 {vr(sb+2*(4*R+vv),2)}, v{ad} offset0:{o0} offset1:{o0+16}')
            else:
                for v1 in range(2): p(f'ds_read2_b64 {vr(sb+4*(2*R+v1),4)}, v{ad} offset0:{32*v1} offset1:{32*v1+16}')
        p('s_waitcnt lgkmcnt(0)')
        if k % 2 == 1 and k + NS < 16:
            if k - 1 + NS == o.get('help2', 8): helper((0, 3))
            p(issue(k - 1 + NS))
        if k == 9 and o.get('tlb', 0):
            p(ssum(SO, [(S_IDX, 23), (S_WAVE, 21), (S_XCD, 7)], 0, S_WUO)); p(f's_buffer_load_dword s{S_JUNK}, {sr(S_WS,4)}, s{SO} glc')
        if k + NS == 16:
            p(f's_load_dwordx2 s[{T}:{T+1}], s[0:1], 8\ns_lshl_b32 s{SO}, s{S_WAVE}, 9')
            B(W1o, [(2, 2, 12), (0, 1, 11), (4, 2, 5), (1, 1, 4)])
            p(f's_waitcnt lgkmcnt(0)\ns_mov_b32 s{S_SRD}, s{T}\ns_mov_b32 s{S_SRD+1}, s{T+1}\ns_mov_b32 s{S_SRD+2}, 16384')
            for q in range(4): p(ld(4, V_T+40+4*q, W1o, SO, 128*q, '', S_SRD))
        if mat < 3:
            for v in range(8):
                p(f'v_perm_b32 v{V_T+12}, v{sb+2*v+1}, v{sb+2*v}, s{S_PERM0}\nv_perm_b32 v{V_T+13}, v{sb+2*v+1}, v{sb+2*v}, s{S_PERM1}')
                p(f'v_accvgpr_write_b32 a{W1(mat,0,i)+v}, v{V_T+12}\nv_accvgpr_write_b32 a{W1(mat,1,i)+v}, v{V_T+13}')
        else:
            ks, R = i >> 1, i & 1
            for vv in range(4):
                for tq in range(4): p(f'v_perm_b32 v{V_T+12+tq}, v{sb+4*vv+2+(tq>>1)}, v{sb+4*vv+(tq>>1)}, s{S_PERM0 + (tq&1)}')
                for tq in range(4): p(f'v_accvgpr_write_b32 a{WO(tq,ks)+4*R+vv}, v{V_T+12+tq}')
    p('s_barrier')

def vwx_groups(reload_so):
    ACC = V_T
    out = []
    for T_ in range(2):
        for u in range(4):
            grp = []
            q = V_VXD + (T_*4+u)*4
            for tq in range(4):
                d = ACC + (T_*4+tq)*4
                grp.append(f'v_mfma_f32_16x16x32_bf16 {vr(d,4)}, {vr(q,4)}, {ar(WO(tq,u>>1)+4*(u&1),4)}, {"0" if u == 0 else vr(d,4)}')
            grp.append(ld(4, q, V_VX0 + (u >> 1), reload_so, (u & 1)*2048 + T_*128))
            out.append(grp)
    return out
def vwx_cvt(T_):
    ACC = V_T; out = []
    for tq in range(4):
        d = ACC + (T_*4+tq)*4
        out.append(f'v_cvt_pk_bf16_f32 v{V_BW+8*tq+4*T_}, v{d}, v{d+1}')
        out.append(f'v_cvt_pk_bf16_f32 v{V_BW+8*tq+4*T_+1}, v{d+2}, v{d+3}')
    return out
def delay(n):
    out = []
    while n > 0:
        k = min(n, 16); out.append('s_nop %d' % (k-1)); n -= k
    return out
def budget(): return f's_sub_u32 s{S_BUD}, s{S_BUD}, 1\ns_max_i32 s{S_BUD}, s{S_BUD}, 0'

def r_loop(p, o, sfx='', pl=''):
    T = S_T
    def stamp(k):
        if o.get('trace'): p(f's_mem{"real" if o["trace"] == 1 else ""}time s[{S_ST+2*k}:{S_ST+2*k+1}]')
        if o.get('trace') == 2 and k == 6: p(f's_memrealtime s[{S_ST+20}:{S_ST+21}]')
    def count(k):
        if o.get('counts'): p(f's_add_u32 s{S_ST+16+k}, s{S_ST+16+k}, 1')
    MEM = V_T
    a = V_T+36
    if o.get('pret', 1):
        p(ssum(T, [(S_XCD, 16), (S_IDX, 11)], WS_M2 + M2_A, T+1)); p(bits(a+2, [(0, 4, 7)], T, a))
        p(ssum(T, [(S_XCD, 14), (S_IDX, 9)], WS_M2, T+1)); p(bits(a+3, [(0, 2, 7)], T, a))
        p(f'v_cmp_gt_u32 vcc, 16, v{V_LANE}\nv_cndmask_b32 v{a+2}, v{a+3}, v{a+2}, vcc\ns_lshl_b32 s{T}, s{S_WAVE}, 19\nv_add_u32 v{a+2}, s{T}, v{a+2}')
        p(ssum(T, [(S_XCD, 12), (S_IDX, 7)], WS_M2 + M2_F, T+1)); p(f'v_writelane_b32 v{a+2}, s{T}, 20\ns_bfm_b64 exec, 21, 0')
        p(ld(1, a+3, a+2, '0')); p(setexec(None))
    if o.get('kvwait'):
        p(f'''
        v_mov_b32 v{a}, 0
        R_kv0{sfx}:
        v_readfirstlane_b32 s{S_KVF}, v{a+1}
        s_and_b32 s{T}, s{S_KVF}, 0xff
        s_cmp_ge_u32 s{T}, 8
        s_cbranch_scc1 R_kv0k{sfx}
        s_cmp_eq_u32 s{S_BUD}, 0
        s_cbranch_scc1 R_kv0k{sfx}
        {ld(1, a+1, a, S_KVO)}
        {budget()}
        s_waitcnt vmcnt(0)
        s_branch R_kv0{sfx}
        R_kv0k{sfx}:
        ''')
    p(f'''
    s_xor_b32 s{T}, s{S_GP}, {o.get('kvx', 0) << 13}
    v_xor_b32 v{V_VX0}, s{T}, v{V_VX0}
    v_xor_b32 v{V_VX1}, s{T}, v{V_VX1}
    s_xor_b32 s{S_PFV}, s{S_PFV}, s{T}
    s_xor_b32 s{S_PFK}, s{S_PFK}, s{T}
    s_bitcmp1_b32 s{S_WAVE}, 0
    s_cselect_b32 s{T}, 0, s{T}
    v_xor_b32 v{V_KX}, s{T}, v{V_KX}
    s_mov_b32 s{S_VXO}, 0
    ''')
    for T_ in range(2):
        for u in range(4): p(ld(4, V_VXD+(T_*4+u)*4, V_VX0+(u>>1), S_VXO, (u&1)*2048 + T_*128))
    for T_ in range(2): p(ld(4, V_KXD+4*T_, V_KX, S_VXO, T_*256))
    p(zero(V_ACC1, 60))
    p(f's_mov_b32 s{S_VXO}, {segoff(1)}')
    for k, grp in enumerate(vwx_groups(S_VXO)): p('s_waitcnt vmcnt(9)'); p(grp)
    p(vwx_cvt(0)); p(vwx_cvt(1))
    for k in range(0, 16, 2): p(f'v_mov_b64 {vr(MEM+k,2)}, {vr(V_T+40+k,2)}')
    p(f'''
    s_mov_b32 s{S_STEP}, 0
    s_mov_b32 s{S_CUR}, 0
    s_mov_b32 s{S_NXT}, 0x80000
    s_mov_b32 s{S_RST}, 0x100000
    s_mov_b32 s{S_KXO}, {segoff(1)}
    s_mov_b32 s{S_VXO}, {segoff(2)}
    s_mov_b32 s{S_WUO}, {segoff(3)}
    s_mov_b32 s{S_KMO}, 0
    s_lshl_b32 s{T}, s{S_POL}, 13
    v_add_u32 v{V_BST}, s{T}, v{V_BST}
    v_add_u32 v{V_BLD}, s{T}, v{V_BLD}
    v_mov_b32 v{V_TAG}, 1
    v_add_u32 v{V_WU}, s{T}, v{V_WU}
    s_add_u32 s{S_FBO2}, s{S_FBO2}, s{T}
    s_mov_b32 s{S_TB}, 1
    v_mov_b32 v{V_TB}, 1
    ds_write_b32 v{V_LC}, v{V_TB}
    s_mov_b64 s[{S_FB8}:{S_FB8+1}], 0
    s_mov_b64 s[{S_FB8+2}:{S_FB8+3}], 0
    s_mov_b64 s[{S_FB8+4}:{S_FB8+5}], 0
    s_mov_b64 s[{S_FB8+6}:{S_FB8+7}], 0
    s_bitcmp1_b32 s{S_WAVE}, 0
    s_cselect_b32 s{T+1}, s{T}, 0
    v_add_u32 v{V_KX}, s{T+1}, v{V_KX}
    s_mov_b32 s{S_TAG}, 1
    ''')
    if o.get('trace'):
        p(f's_lshl2_add_u32 s{T}, s2, s{S_WAVE}\ns_lshl_b32 s{T}, s{T}, 12\ns_add_u32 s{T}, s{T}, {WS_TRACE}\nv_lshl_add_u32 v254, v{V_LANE}, 2, s{T}\nv_mov_b32 v255, 0')
    if o.get('trace') or o.get('counts'):
        for k in range(0, 20): p(f's_mov_b32 s{S_ST+k}, 0')
    if o.get('total'): p(f's_memtime s[{S_ST+22}:{S_ST+23}]\ns_memrealtime s[{S_ST+24}:{S_ST+25}]')
    p(f's_waitcnt lgkmcnt(0)\ns_mov_b32 s{S_NOCHK}, 0')
    for w in range(1, 4): p(f's_cmp_eq_u32 s{S_WAVE}, {w}\ns_cbranch_scc1 R_cw0{sfx}{w}')
    p(f's_branch R_cw0{sfx}0')
    for w in range(4): r_body(p, o, sfx + str(w), pl, stamp, count, w, f'R_fin{sfx}')
    c0, c1 = V_T, V_T+1
    p(f'''
    R_fin{sfx}:
    s_waitcnt vmcnt(0) lgkmcnt(0)
    s_barrier
    s_cmp_eq_u32 s{S_WAVE}, 0
    s_cbranch_scc0 R_l3{sfx}
    s_lshl_b32 s{T}, s{S_V}, 8
    s_add_u32 s{T}, s{T}, {F_FIN_}
    v_mov_b32 v{c0}, 0
    v_mov_b32 v{c1}, 1
    s_mov_b64 exec, 1
    buffer_atomic_add v{c1}, v{c0}, {sr(S_WS,4)}, s{T} offen sc1
    s_mov_b64 exec, -1
    R_l3{sfx}:
    ''')


class VQ:
    def __init__(self, p): self.p = p; self.q = []
    def __call__(self, x, tag=None):
        if isinstance(x, (list, tuple)):
            for y in x: self(y, tag)
            return
        for line in x.split('\n'):
            line = line.strip()
            if line.startswith('@wait'): line = self.wait(line.split()[1])
            t = tag
            if '@' in line: line, t = line.split('@')
            if line.startswith('buffer_'): self.q.append(t)
            self.p(line)
    def unknown(self): self.q.append('?')
    def wait(self, tag):
        n = 0
        for t in reversed(self.q):
            if t == tag or t == '?': break
            n += 1
        else: raise KeyError(tag)
        return f's_waitcnt vmcnt({n})'

def r_body(p0, o, sfx, pl, stamp, count, w, fin_lbl):
    T = S_T
    p = VQ(p0)
    MEM = V_T; X = V_T + 32
    c0, c1 = V_T+58, V_T+59
    lines = lambda t: [x.strip() for x in t.split('\n') if x.strip()]
    g = lambda k, d: (o[k][w] if isinstance(o.get(k), (list, tuple)) else o.get(k, d))
    tr = o.get('trace')
    keep = [st(4, V_KEEP, V_PST, S_KMO, 0, 'sc1'), None, st(2, V_KEEP, V_PST, S_KMO, 0, 'sc1'), None][w]
    side = [keep] if keep else [st(4, V_SENT, V_KX, S_RST, 0, 'sc1')]
    if w == 1: side.append(st(1, V_TAG, V_PRG, '0', 0, 'sc1'))
    kxl = [ld(4, V_KXD, V_KX, S_KXO, 0), ld(4, V_KXD+4, V_KX, S_KXO, 256)] if w == 0 else []
    kx = o.get('kx', 'gap')
    spf = lambda base, so: [f's_add_u32 s{T}, s{base}, s{so}'] + [f's_buffer_load_dwordx2 {sr(S_M_F,2)}, {sr(S_WS,4)}, s{T} offset:{128*k+60}' for k in range(4)]
    pfv = spf(S_PFV, S_WUO) if 'v' in o.get('wu', 'vk') else []
    pfk = spf(S_PFK, S_VXO) if 'k' in o.get('wu', 'vk') else []
    postA = st(1, V_TAG, V_FA, '0', 0, pl); pA = o.get('pA', 1)
    postC = [f's_mov_b32 s{T+4}, 16384', st(1, V_TAG, V_FA, T+4, 0, pl)]
    class Rot:
        def __init__(self, reg, ad): self.reg, self.ad, self.k = reg, ad, 0
        def __call__(self):
            self.k += 1; return ld(1, self.reg, self.ad, '0', 1024*(self.k % o.get('nrep', 4)))
    FA_, FC_ = Rot(V_FAV, V_FAL), Rot(V_FCV, V_FCL)
    sA = o.get('syncA', 1); sC = o.get('syncC', 1)
    def pacer(lbl, reg, tag):
        return [f'v_cmp_gt_i32 vcc, s{tag}, v{reg}', f's_cbranch_vccz {lbl}_ok'] * o.get('pace', 3)
    def spin(lbl, reg, poll, tag):
        out = [f's_min_u32 s{S_SPIN}, s{S_BUD}, 1000', f'{lbl}:']
        for k in range(4): out += [f'v_cmp_gt_i32 vcc, s{tag}, v{reg}', poll(), f's_cbranch_vccz {lbl}_ok'] + pacer(lbl, reg, tag)
        out += [f's_sub_u32 s{S_SPIN}, s{S_SPIN}, 1', f's_cbranch_scc0 {lbl}', f'{lbl}_ok:']
        p0(out); p.unknown()
    order = [4, 5, 0, 1, 2, 3]
    mf = lambda i: [f'v_smfmac_f32_16x16x64_bf16 {vr(V_ACC1+t6*4,4)}, {vr(MEM+4*i,4)}, {ar(W1(t6>>1,t6&1,i),8)}, v{V_IDX1}' for t6 in order]
    def chk(i): return [f'v_max3_u32 v{c0}, v{MEM+4*i}, v{MEM+4*i+1}, v{MEM+4*i+2}', f'v_max_u32 v{c0}, v{c0}, v{MEM+4*i+3}', f'v_cmp_eq_u32 vcc, -1, v{c0}']
    def s1_red(mat):
        D0, D1 = V_ACC1+mat*8, V_ACC1+mat*8+4
        R = X + 4*mat
        ad = [V_L1W, V_L1WK, V_L1WV][mat]
        return [f'v_pk_add_f32 {vr(R,2)}, {vr(D0,2)}, {vr(D0+2,2)}', f'v_pk_add_f32 {vr(R+2,2)}, {vr(D1,2)}, {vr(D1+2,2)}',
                f'ds_write2_b32 v{ad}, v{R}, v{R+2} offset0:0 offset1:1', f'ds_write2_b32 v{ad}, v{R+1}, v{R+3} offset0:32 offset1:33']
    grps = vwx_groups(S_VXO)
    nvx = o.get('nvx', 4)
    vx2 = [gr[-1].replace(f', s{S_VXO} ', f', s{S_KXO} ') + '@vx' for gr in grps[8-nvx:]] if nvx else []
    vxf = o.get('vxf', 2)
    upd2 = lines(f"""
    s_add_u32 s{S_STEP}, s{S_STEP}, 1
    s_add_u32 s{S_TAG}, s{S_TAG}, 1
    v_mov_b32 v{V_TAG}, s{S_TAG}
    s_lshl_b32 s{S_TB}, 1, s{S_STEP}
    v_mov_b32 v{V_TB}, s{S_TB}
    s_mov_b32 s{S_KXO}, s{S_VXO}
    s_mov_b32 s{S_VXO}, s{S_WUO}
    s_add_u32 s{S_WUO}, s{S_STEP}, 3
    s_min_u32 s{S_WUO}, s{S_WUO}, {NSEG-1}
    s_lshl_b32 s{S_WUO}, s{S_WUO}, 19
    s_and_b32 s{S_PVX}, s{S_WUO}, 0xffe00000
    s_add_u32 s{S_WUO}, s{S_WUO}, s{S_PVX}
    s_add_u32 s{S_KMO}, s{S_KMO}, 0x10000
    s_add_u32 s{S_NXT}, s{S_NXT}, 0x80000
    s_and_b32 s{S_NXT}, s{S_NXT}, 0x180000
    s_xor_b32 s{S_RST}, s{S_CUR}, 0x100000
    s_mov_b32 s{S_NOCHK}, s{S_BUD}
    """)
    nC = o.get('nC', 0)
    assert nC <= nvx
    cm = [x for gr in grps[8-nC:] for x in gr[:-1]] if nC else []
    if o.get('lite'): upd2 = upd2[:1] + [f's_mov_b32 m0, s{S_STEP}', f'v_writelane_b32 v255, s{S_ST}, m0', f's_memrealtime s[{S_ST}:{S_ST+1}]'] + upd2[1:]
    cwork = upd2[:1] + weave(cm, upd2[1:] + zero(V_VWM, 36), 0, 1, 2) + (['s_nop 0']*8 if o.get('noVW') else vwx_cvt(1))
    def taker(work):
        def take(n):
            while n > 0 and work:
                x = work.pop(0); p(x); n -= 2 if x.startswith('v_mfma') else 1
            p(delay(n))
        return take
    for i in range(4):
        p0(f'R_cr{i}{sfx}:\ns_cmp_eq_u32 s{S_NOCHK}, 0\ns_cbranch_scc1 R_cg{i}{sfx}')
        for k in range(i, 4): p0(ld(4, MEM+4*k, V_CLD, S_CUR, 1024*k))
        count(0); p0(budget())
        p0(f's_mov_b32 s{S_NOCHK}, s{S_BUD}')
        if i == 0: p0(zero(V_ACC1, 24)); p0(f's_branch R_cw0{sfx}')
        else:
            p0(f's_waitcnt vmcnt({3-i})'); p0(chk(i))
            p0(f's_cbranch_vccz R_cg{i}{sfx}\ns_branch R_cr{i}{sfx}')
    p(f'R_step{sfx}:')
    take = taker(cwork)
    if sC:
        take(1); p(FC_()); take(max(o.get('dC', 20) - 1, 0))
        spin(f'R_fc{sfx}', V_FCV, FC_, S_STEP)
        take(o.get('dC2', 0))
    else: take(o.get('dC', 30))
    for i in range(4):
        p(ld(4, MEM+4*i, V_CLD, S_CUR, 1024*i), f'c{i}')
        if i < 3: take(o.get('gC', 0))
    p(cwork)
    pre = o.get('preA', 2) if sA else 0
    m = mf(0); ck = chk(0); c2 = [x.replace(f'v{c0}', f'v{c1}') for x in chk(1)]
    p([f'R_cw0{sfx}:', '@wait c0', m[0], ck[0], ck[1], m[1], ck[2], m[2], '@wait c1', c2[0], m[3], c2[1], f's_cbranch_vccnz R_cr0{sfx}', f'R_cg0{sfx}:', c2[2], m[4], m[5]])
    for i in range(1, 4):
        p(f's_cbranch_vccnz R_cr{i}{sfx}\nR_cg{i}{sfx}:')
        m = mf(i)
        if i < 3:
            ck = chk(i+1)
            p([m[0], f'@wait c{i+1}', m[1], ck[0], m[2], ck[1], m[3], ck[2], m[4], m[5]])
        else:
            stamp(0)
            rv = s1_red(2)
            p([m[0]] + ([postA] if pA == 0 else []) + [m[1], m[2], rv[0], m[3], rv[1], m[4], rv[2], m[5], rv[3]])
    Q = V_T + 16
    if pA == 1: p(postA)
    if pre >= 4: p(FA_())
    p(s1_red(0))
    if pA == 2: p(postA)
    if pre >= 3: p(FA_())
    p(s1_red(1))
    if pA == 3: p(postA)
    if pre >= 2: p(FA_())
    p(f's_cmp_eq_u32 s{S_STEP}, {NSEG-1}\ns_waitcnt lgkmcnt(4)\ns_barrier')
    if w == 3:
        for wv in range(4): p(f'ds_read_b128 {vr(Q+4*wv,4)}, v{V_L1R} offset:{wv*1024}')
    if pre >= 1: p(FA_())
    p(f's_waitcnt lgkmcnt({4 if w == 3 else 0})\ns_barrier')
    stamp(1)
    GV = V_T + 44; GX = V_T
    lv = [ld(4, GV, V_ALV, S_CUR, 0), ld(4, GV+4, V_ALV, S_CUR, 1024) + '@v']
    ls = [ld(4, GX, V_ALD, S_CUR, 0) + '@x0', ld(4, GX+4, V_ALD, S_CUR, 1024) + '@x1', ld(2, GX+8, V_ALM, S_CUR, 0) + '@m']
    strip = lambda l: [x.split('@')[0] for x in l]
    zw = zero(V_ACC1, 24)
    ool = []
    def vt_persist():
        out = []
        for r in range(4):
            ad = V_L1R if r < 2 else V_L1R2
            for wv in range(4): out.append(f'ds_read_b32 v{Q+4*wv+r}, v{ad} offset:{wv*1024 + r*128}')
        fin_ = ['s_waitcnt lgkmcnt(0)']
        for wv in range(1, 4):
            for k in (0, 2): fin_.append(f'v_pk_add_f32 {vr(Q+k,2)}, {vr(Q+k,2)}, {vr(Q+4*wv+k,2)}')
        fin_ += [f'v_cvt_pk_bf16_f32 v{V_KEEP}, v{Q}, v{Q+1}', f'v_cvt_pk_bf16_f32 v{V_KEEP+1}, v{Q+2}, v{Q+3}']
        return out, fin_
    if w == 0:
        Q0 = V_T
        for wv in range(4):
            p(f'ds_read_b128 {vr(Q0+8*wv,4)}, v{V_L1R} offset:{wv*1024}\nds_read_b128 {vr(Q0+8*wv+4,4)}, v{V_L1R2} offset:{wv*1024}')
        if sA: p(FA_())
        p('s_waitcnt lgkmcnt(4)')
        for k in range(0, 8, 2): p(f'v_pk_add_f32 {vr(Q0+k,2)}, {vr(Q0+k,2)}, {vr(Q0+8+k,2)}')
        p('s_waitcnt lgkmcnt(2)')
        for k in range(0, 8, 2): p(f'v_pk_add_f32 {vr(Q0+k,2)}, {vr(Q0+k,2)}, {vr(Q0+16+k,2)}')
        p('s_waitcnt lgkmcnt(1)')
        for k in range(0, 4, 2): p(f'v_pk_add_f32 {vr(Q0+k,2)}, {vr(Q0+k,2)}, {vr(Q0+24+k,2)}')
        for k in range(2): p(f'v_cvt_pk_bf16_f32 v{V_KEEP+k}, v{Q0+2*k}, v{Q0+2*k+1}')
        if sA and o.get('ev0', 1): p(f'v_cmp_gt_i32 vcc, s{S_TAG}, v{V_FAV}')
        p('s_waitcnt lgkmcnt(0)')
        for k in range(4, 8, 2): p(f'v_pk_add_f32 {vr(Q0+k,2)}, {vr(Q0+k,2)}, {vr(Q0+24+k,2)}')
        for k in range(2, 4): p(f'v_cvt_pk_bf16_f32 v{V_KEEP+k}, v{Q0+2*k}, v{Q0+2*k+1}')
        p(f's_cbranch_scc1 R_last{sfx}')
        ool += [f'R_last{sfx}:', keep, f's_branch {fin_lbl}']
        S = V_T + 32; SP = V_T + 52
        mm = [f'v_mfma_f32_16x16x32_bf16 {vr(S+4,4)}, {vr(V_KXD,4)}, {vr(V_KEEP,4)}, 0',
              f'v_mfma_f32_16x16x32_bf16 {vr(S+8,4)}, {vr(V_KXD+4,4)}, {vr(V_KEEP,4)}, 0',
              f'v_mfma_f32_16x16x32_bf16 {vr(S,4)}, {vr(V_KEEP,4)}, {vr(V_KEEP,4)}, 0']
        pub = lines(f"""
        v_cvt_pk_bf16_f32 v{SP}, v{S+4}, v{S+5}
        v_cvt_pk_bf16_f32 v{SP+1}, v{S+6}, v{S+7}
        v_cvt_pk_bf16_f32 v{SP+2}, v{S+8}, v{S+9}
        v_cvt_pk_bf16_f32 v{SP+3}, v{S+10}, v{S+11}
        {st(4, SP, V_P0, S_CUR, 0, pl)}
        v_cvt_pk_bf16_f32 v{c0}, v{S}, v{S+1}
        v_cvt_pk_bf16_f32 v{c1}, v{S+2}, v{S+3}
        {st(2, c0, V_P1, S_CUR, 0, pl)}
        """)
        take = taker(zw)
        if sA and o.get('ev0', 1):
            p([mm[0], f's_cbranch_vccnz R_nv{sfx}', lv[0], mm[1], lv[1], mm[2]] + pub)
            p.unknown()
            stamp(2)
            take(o.get('dA0', 16))
            p(f'R_nvj{sfx}:')
            sub = Prog(); q2 = VQ(sub)
            sub([f'R_nv{sfx}:', FA_(), mm[1], mm[2]] + pub + zero(V_ACC1, 24)[:min(12, o.get('dA0', 16))])
            if tr: sub(f's_memtime s[{S_ST+4}:{S_ST+5}]')
            sub([f's_min_u32 s{S_SPIN}, s{S_BUD}, 2000', f'R_fa{sfx}:'])
            for k in range(4): sub([f'v_cmp_gt_i32 vcc, s{S_TAG}, v{V_FAV}', FA_(), f's_cbranch_vccz R_fa{sfx}_ok'] + pacer(f'R_fa{sfx}', V_FAV, S_TAG))
            sub([f's_sub_u32 s{S_SPIN}, s{S_SPIN}, 1', f's_cbranch_scc0 R_fa{sfx}', f'R_fa{sfx}_ok:'] + strip(lv) + delay(o.get('dS0', 24)) + [f's_branch R_nvj{sfx}'])
            ool += sub.L
        else:
            p(mm + pub)
            stamp(2)
            if sA: spin(f'R_fa{sfx}', V_FAV, FA_, S_TAG)
            p(lv); take(o.get('dA0', 16))
        p(ls); p(zw)
    else:
        if w == 3:
            if sA and o.get('pre3', 1): p(FA_())
            for wv in range(1, 4):
                p(f's_waitcnt lgkmcnt({3-wv})')
                for k in (0, 2): p(f'v_pk_add_f32 {vr(Q+k,2)}, {vr(Q+k,2)}, {vr(Q+4*wv+k,2)}')
            p(f'v_cvt_pk_bf16_f32 v{Q+4}, v{Q}, v{Q+1}\nv_cvt_pk_bf16_f32 v{Q+5}, v{Q+2}, v{Q+3}')
            p(st(2, Q+4, V_P0, S_CUR, 0, pl))
        if w == 2:
            rd, fin_ = vt_persist()
            p(f's_cbranch_scc1 R_last{sfx}')
            ool += [f'R_last{sfx}:'] + rd + fin_ + [keep, f's_branch {fin_lbl}']
        else: p(f's_cbranch_scc1 {fin_lbl}')
        if sA: spin(f'R_fa{sfx}', V_FAV, FA_, S_TAG)
        work = list(zw)
        if w == 2: work = rd + work
        take = taker(work)
        take(g('dV', 0))
        stamp(2)
        p(lv)
        take(g('dS', 36))
        p(ls); p(work)
        if w == 1: p([st(4, V_SENT, V_P0, S_RST, 0, pl), st(4, V_SENT, V_P1, S_RST, 0, pl)])
        if w == 2: p(fin_)
        if w == 3 and o.get('kvwait'):
            p(f's_and_b32 s{T}, s{S_KVF}, 0xff\ns_cmp_ge_u32 s{T}, 8\ns_cbranch_scc0 R_kvc{sfx}\nR_kvk{sfx}:')
            ool += lines(f"""
            R_kvc{sfx}:
            s_cmp_eq_u32 s{S_BUD}, 0
            s_cbranch_scc1 R_kvk{sfx}
            s_sleep 4
            s_buffer_load_dword s{S_KVF}, {sr(S_WS,4)}, s{S_KVO} glc
            {budget()}
            s_waitcnt lgkmcnt(0)
            s_and_b32 s{T}, s{S_KVF}, 0xff
            s_cmp_ge_u32 s{T}, 8
            s_cbranch_scc0 R_kvc{sfx}
            s_branch R_kvk{sfx}
            """)
    SX, SM = V_T+12, V_T+52
    mx, mt = V_T+10, V_T+11
    vwm = [f'v_smfmac_f32_16x16x64_bf16 {vr(V_VWM+4*tq,4)}, {vr(GV+4*ks,4)}, {ar(WO(tq,ks),8)}, v{V_IDX1}' for tq in range(4) for ks in range(2)]
    vwm_cvt = []
    for tq in range(4):
        D = V_VWM+4*tq
        vwm_cvt.append([f'v_pk_add_f32 {vr(D,2)}, {vr(D,2)}, {vr(D+2,2)}', f'v_cvt_pk_bf16_f32 v{V_BW+8*tq+2}, v{D}, v{D+1}', f'v_cvt_pk_bf16_f32 v{V_BW+8*tq+6}, v{D}, v{D+1}'])
    vck = [f'v_max3_u32 v{c0}, v{GV}, v{GV+1}, v{GV+2}', f'v_max3_u32 v{c1}, v{GV+3}, v{GV+4}, v{GV+5}', f'v_max3_u32 v{c0}, v{c0}, v{GV+6}, v{GV+7}',
           f'v_max_u32 v{c0}, v{c0}, v{c1}', f'v_cmp_eq_u32 vcc, -1, v{c0}']
    p(f'@wait v\nR_aw0{sfx}:')
    p(weave(vwm, vck + vwm_cvt[0][:2]))
    p(f's_cbranch_vccnz R_ar0{sfx}\nR_ag0{sfx}:')
    p(vwm_cvt[0][2:] + vwm_cvt[1][:1])
    late = vwm_cvt[1][1:] + vwm_cvt[2] + vwm_cvt[3]
    def asum(fill, wt):
        return [wt[0], f'v_mfma_f32_16x16x32_bf16 {vr(SX,4)}, {vr(V_SELA,4)}, {vr(GX,4)}, 0',
        wt[1], f'v_mfma_f32_16x16x32_bf16 {vr(SX,4)}, {vr(V_SELB,4)}, {vr(GX+4,4)}, {vr(SX,4)}',
        wt[2], f'v_mfma_f32_16x16x16_bf16 {vr(SM,4)}, {vr(V_SELM,2)}, {vr(GX+8,2)}, 0'] + fill[:5] + [
        f'v_max3_f32 v{mx}, v{SX}, v{SX+1}, v{SX+2}'] + fill[5:] + [
        f'v_cmp_u_f32 vcc, v{SX}, v{SM}',
        f'v_max3_f32 v{mx}, v{mx}, v{SX+3}, v{SM}']
    p(asum(late[:7], ['@wait x0', '@wait x1', '@wait m']))
    p(f'R_ag1{sfx}:')
    E = V_T + 32
    src = [SX, SX+1, SM, SX+2, SX+3]
    prem = [f'v_mul_f32 v{E+k}, s{S_SCL}, v{src[k]}' for k in range(5)]
    sB = o.get('syncB', 1); pB = o.get('posB', 2)
    LR = V_T + 38
    postB = lambda k: (f's_waitcnt lgkmcnt(0)\nv_lshl_add_u32 v{LR}, v{LR}, 30, v{V_WU}\n' + st(1, V_TB, LR, '0', 0, 'sc1')) if (sB and pB == k) else ''
    p(f"""
    {prem[4]}
    {late[7]}
    v_max_f32_dpp v{mt}, v{mx}, v{mx} quad_perm:[2,3,0,1] row_mask:0xf bank_mask:0xf
    v_max_f32_dpp v{mx}, v{mx}, v{mx} quad_perm:[2,3,0,1] row_mask:0xf bank_mask:0xf
    {prem[0]}
    {prem[1]}
    s_cbranch_vccnz R_ar1{sfx}
    R_ah1{sfx}:
    """)
    stamp(3)
    if kx == 'A': p(kxl)
    p(f"""
    v_permlane16_swap_b32 v{mx}, v{mt}
    v_max_f32 v{c0}, v{mx}, v{mt}
    v_max_f32 v{c1}, v{mx}, v{mt}
    {f'ds_sub_rtn_u32 v{LR}, v{V_LC}, v{V_SENT}' if sB else prem[2]}
    {prem[3]}
    v_permlane32_swap_b32 v{c0}, v{c1}
    v_max_f32 v{mx}, v{c0}, v{c1}
    {postB(1)}
    """)
    fm = [f'v_fma_f32 v{E+k}, -v{mx}, s{S_SCL}, v{E+k}' for k in range(5)]
    if sB: fm[2] = prem[2] + '\n' + fm[2]
    p(f"""
    {fm[0]}
    {fm[1]}
    v_exp_f32 v{E}, v{E}
    {fm[2]}
    v_exp_f32 v{E+1}, v{E+1}
    {fm[3]}
    v_exp_f32 v{E+2}, v{E+2}
    {fm[4]}
    v_exp_f32 v{E+3}, v{E+3}
    v_cvt_pk_bf16_f32 v{V_P}, v{E}, v{E+1}
    v_exp_f32 v{E+4}, v{E+4}
    v_cvt_pk_bf16_f32 v{V_P+1}, v{E+2}, 0
    v_cvt_pk_bf16_f32 v{V_P+3}, v{E+2}, 0
    v_cvt_pk_bf16_f32 v{V_P+2}, v{E+3}, v{E+4}
    {f's_add_u32 s{S_CU1}, s{S_CUR}, 0x40000' if o.get('nB2') else ''}
    {postB(2)}
    """)
    fin = [f'v_smfmac_f32_16x16x64_bf16 {vr(V_FIN,4)}, {vr(V_P,4)}, {vr(V_ONES,8)}, v{V_IDX2}'] + \
          [f'v_smfmac_f32_16x16x64_bf16 {vr(V_FIN+4+4*tq,4)}, {vr(V_P,4)}, {vr(V_BW+8*tq,8)}, v{V_IDX2}' for tq in range(4)]
    O = V_T + 40; rc = V_T + 48
    D = V_FIN
    if kx == 'fin' and w == 0: p(weave(fin[:2], kxl) + [fin[2]]); vxf = 0
    else: p(weave(fin[:2], vx2[:vxf]) + [fin[2]])
    p(f"""
    v_pk_add_f32 {vr(rc,2)}, {vr(D,2)}, {vr(D+2,2)}
    {fin[3]}
    v_rcp_f32 v{rc}, v{rc}
    {fin[4]}
    v_rcp_f32 v{rc+1}, v{rc+1}
    {postB(3)}
    """)
    for tq in range(4):
        D = V_FIN + 4 + 4*tq
        p(f'v_pk_add_f32 {vr(D,2)}, {vr(D,2)}, {vr(D+2,2)}\nv_mul_f32 v{O+tq}, v{D}, v{rc}')
        if tq < 3: p(f'v_mul_f32 v{O+4+tq}, v{D+1}, v{rc+1}')
    p(f"""
    ds_write_b128 v{V_L2W0}, {vr(O,4)}
    v_mul_f32 v{O+7}, v{D+1}, v{rc+1}
    ds_write_b128 v{V_L2W1}, {vr(O+4,4)} offset:256
    """)
    sd = o.get('side', 'gap')
    nb, nb2 = o.get('nB', 16), o.get('nB2', 0)
    p(vx2[vxf:])
    if kx == 'gap': p(kxl)
    if sd == 'gap': p(side)
    half = not nb2 and not sB
    if half: p(setexec(S_M_32))
    p('s_waitcnt lgkmcnt(0)\ns_barrier')
    stamp(4)
    Z = V_T + 32
    if not sB or w < 2:
        for wv in range(4): p(f'ds_read_b128 {vr(Z+4*wv,4)}, v{V_L2R} offset:{wv*2048}')
        if half: p(setexec(None))
        for wv in range(1, 4):
            p(f's_waitcnt lgkmcnt({3-wv})')
            for k in (0, 2): p(f'v_pk_add_f32 {vr(Z+k,2)}, {vr(Z+k,2)}, {vr(Z+4*wv+k,2)}')
        p(f'v_cvt_pk_bf16_f32 v{Z+4}, v{Z}, v{Z+1}\nv_cvt_pk_bf16_f32 v{Z+5}, v{Z+2}, v{Z+3}')
        p(st(2, Z+4, V_BST, S_CUR, 0, 'sc1'))
    elif sB: nb = min(32 - 4*nC, nb + o.get('nBx', 9))
    stamp(5)
    if sd == 'B': p(side)
    if kx == 'B': p(kxl)
    GB = [V_T + 48, V_T + 52]; BS = V_T + 40
    at = {}
    def put(i, x): at.setdefault(i, []).extend(x if isinstance(x, list) else [x])
    if sB:
        FL = f's_buffer_load_dwordx8 {sr(S_FB8,8)}, {sr(S_WS,4)}, s{S_FBO2} glc'
        two = o.get('two', 0)
        if two:
            n_ = 4 // two
            FL = '\n'.join(f's_buffer_load_dword{"x%d" % n_ if n_ > 1 else ""} {sr(S_FB8 + n_*k, n_)}, {sr(S_WS,4)}, s{S_FBO2} offset:{k << 16} glc' for k in range(two))
        if w == 3 or (two and w == 2):
            for i in range(o.get('p0', 0), nb, o.get('pB', 5)): put(i, FL)
            F = S_FB8
            chkB = [f's_and_b64 {sr(T,2)}, {sr(F,2)}, {sr(F+2,2)}', f's_and_b64 {sr(T+2,2)}, {sr(F+4,2)}, {sr(F+6,2)}', f's_and_b64 {sr(T,2)}, {sr(T,2)}, {sr(T+2,2)}',
                    f's_and_b32 s{T}, s{T}, s{T+1}', f's_and_b32 s{T}, s{T}, s{S_TB}', f's_cbranch_scc1 R_fb{sfx}_ok']
            if two: chkB = chkB[:1] + chkB[3:5] + chkB[5:] + ['s_nop 1']
            put(nb, [f's_min_u32 s{S_SPIN}, s{S_BUD}, 2000', f'R_fb{sfx}:'] + chkB*o.get('qB', 2) + [FL, f's_sub_u32 s{S_SPIN}, s{S_SPIN}, 1', f's_cbranch_scc0 R_fb{sfx}', f'R_fb{sfx}_ok:'])
        put(nb, ['s_barrier'] + delay(o.get('dB2', 0)))
    put(nb, ld(4, GB[0], V_BLD, S_CUR, 0) + '@b0')
    if tr: put(nb, f's_mem{"real" if tr == 1 else ""}time s[{S_ST+14}:{S_ST+15}]')
    if nb2: put(nb2, ld(4, GB[1], V_BLD, S_CU1, 0) + '@b1')
    if kx == 'P': put(max(nb, nb2), kxl)
    if sC: put(nb + o.get('pC', 6), postC)
    if vx2: put(4*(8-nvx), '@wait vx')
    fill = ([] if tr else pfk)
    if w == 3 and o.get('kvwait'):
        fill = fill + lines(f"""
        s_add_u32 s{S_KVO}, s{S_STEP}, 4
        s_min_u32 s{S_KVO}, s{S_KVO}, 63
        s_lshr_b32 s{S_KVO}, s{S_KVO}, 2
        s_lshl3_add_u32 s{S_KVO}, s{S_KVO}, s{S_V}
        s_lshl_b32 s{S_KVO}, s{S_KVO}, 8
        s_add_u32 s{S_KVO}, s{S_KVO}, {F_KV_}
        """)
    cv = ['s_nop 0']*8 if o.get('noVW') else vwx_cvt(0)
    c = 0
    for k, grp in enumerate(grps[:8-nC]):
        for x in (grp if k < 8-nvx else grp[:-1]):
            if x.startswith('v_mfma'):
                p(at.pop(c, [])); c += 1
                p('s_nop 2' if o.get('noVW') else x)
                if c >= 18 and cv: p(cv.pop(0))
                if fill and (c > nb or not sB): p(fill.pop(0))
            elif not o.get('noVX'): p(x)
    for i in sorted(at): p(at[i])
    p(cv + fill)
    p(f's_mov_b32 s{S_PRV}, s{S_CUR}\ns_mov_b32 s{S_CUR}, s{S_NXT}')
    if tr:
        p('s_waitcnt lgkmcnt(0)')
        for k in range(8): p(f'v_writelane_b32 v255, s{S_ST+2*k}, {k}')
        for k in range(3): p(f'v_writelane_b32 v255, s{S_ST+16+k}, {8+k}')
        p(f'v_writelane_b32 v255, s{S_ST+20}, 11')
        p([f's_lshl_b32 s{T}, s{S_STEP}, 6', 's_mov_b64 exec, 0xffff', st(1, 255, 254, T), 's_mov_b64 exec, -1'] + pfk[:4])
    if w == 3 and o.get('kvwait'):
        p(f's_and_b32 s{T}, s{S_STEP}, 3\ns_cbranch_scc1 R_kvn{sfx}\ns_buffer_load_dword s{S_KVF}, {sr(S_WS,4)}, s{S_KVO} glc\nR_kvn{sfx}:')
    if sC:
        for k in range(o.get('preC', 2)): p(FC_()); p(delay(o.get('gapC', 10)))
    def bsum(s_, fill=[]):
        out = [f'v_mfma_f32_16x16x32_bf16 {vr(BS,4)}, {vr(V_SELA,4)}, {vr(GB[s_],4)}, 0'] + fill
        out += [f'v_cmp_u_f32 vcc, v{BS}, v{BS}']
        out += [f'v_add_f32_dpp v{BS+k}, v{BS+k}, v{BS+k} row_ror:8 row_mask:0xf bank_mask:0xf' for k in range(4)]
        out += [f'v_cvt_pk_bf16_f32 v{BS+4}, v{BS}, v{BS+1}', f'v_cvt_pk_bf16_f32 v{BS+5}, v{BS+2}, v{BS+3}']
        return out
    p('@wait b0')
    p(bsum(0, ([FC_()] if sC else []) + pfv))
    p(f's_cbranch_vccnz R_br{sfx}')
    w1 = None
    if nb2:
        p.q.append('x'); w1 = p.wait('b1'); p.q.pop()
    p(f'R_bg{sfx}:\n' + st(2, BS+4, V_CST, S_CUR, 0, pl))
    stamp(6)
    p(f's_branch R_step{sfx}')
    p0(ool)
    p0(f'R_ar0{sfx}:\ns_cmp_eq_u32 s{S_BUD}, 0\ns_cbranch_scc1 R_ag0{sfx}')
    p0(strip(lv + ls)); count(1); count(3); p0(budget()); p0(zero(V_VWM, 16))
    p0(f's_waitcnt vmcnt(0)\ns_branch R_aw0{sfx}\nR_ar1{sfx}:\ns_cmp_eq_u32 s{S_BUD}, 0\ns_cbranch_scc1 R_ah1{sfx}')
    p0(strip(ls)); count(1); p0(budget())
    p0(asum([], ['s_waitcnt vmcnt(2)', 's_waitcnt vmcnt(1)', 's_waitcnt vmcnt(0)']))
    p0(f's_branch R_ag1{sfx}\nR_br{sfx}:')
    if nb2:
        p0([ld(4, GB[0], V_BLD, S_PRV, 0), w1]); count(2)
        p0(bsum(1)); p0(f's_cbranch_vccz R_bg{sfx}\ns_branch R_br3{sfx}')
    p0(f'R_br2{sfx}:\ns_cmp_eq_u32 s{S_BUD}, 0\ns_cbranch_scc1 R_bg{sfx}')
    p0(ld(4, GB[0], V_BLD, S_PRV, 0))
    p0(f'R_br3{sfx}:'); count(2); p0(budget())
    p0('s_waitcnt vmcnt(0)'); p0(bsum(0))
    p0(f's_cbranch_vccz R_bg{sfx}\ns_branch R_br2{sfx}')

def r_tail(p, o):
    T = S_T
    S0 = o.get('S0', 56); NS = 64 - S0; NI = NS // 2
    assert S0 >= 48 and NS % 4 == 0
    a, b, c_ = 2, 3, 4
    VL, VF, VO, VZ, FL = 5, 6, 7, 8, 9
    SL = 10
    ACC = 16
    PK = 32
    FR = [40, 104, 168]
    SFO, SPO, SOO, SMK = 28, 29, 30, 31
    B = lambda dst, terms, base=None: p(bits(dst, terms, base, c_))
    def tst():
        if o.get('ttrace'): p(f's_memrealtime s[60:61]\ns_waitcnt lgkmcnt(0)\ns_mov_b32 m0, s62\nv_writelane_b32 v250, s60, m0\ns_add_u32 s62, s62, 1')
    if o.get('ttrace'): p('s_mov_b32 s62, 0\nv_mov_b32 v250, 0')
    tst()
    p(ssum(SFO, [(S_V, 8)], F_OV_ + 192))
    B(VZ, [(0, 4, 2)]); p(ld(1, FL, VZ, SFO))
    p(f's_load_dwordx2 s[{S_SRD}:{S_SRD+1}], s[0:1], 80')
    p(ssum(T, [(S_WAVE, 14)])); B(VL, [(0, 6, 4)]); p(f'v_add_u32 v{a}, s{T}, v{VL}')
    for q in range(16): p(f'ds_write_b128 v{a}, {ar(A_WO + 4*q,4)} offset:{q*1024}')
    B(VF, [(4, 2, 9), (0, 4, 4)])
    p(f's_lshr_b32 s{T+2}, s{S_WAVE}, 1\ns_and_b32 s{T+3}, s{S_WAVE}, 1')
    p(ssum(SOO, [(T+2, 19), (S_V, HDS+2), (T+3, 8)], WS_O_, T)); p(f's_xor_b32 s{SOO}, s{SOO}, s{S_GP}')
    p(ssum(SPO, [(S_WAVE, 18), (S_C, 14), (S_V, 11)], WS_PART, T))
    p(f's_add_u32 s{SMK}, s{T+2}, {S0-48}')
    def need(j):
        return f"""
        s_add_u32 s{T+1}, s{SMK}, {2*j}
        RT_n{j}:
        v_readlane_b32 s{T}, v{FL}, s{T+1}
        s_cmp_ge_u32 s{T}, 4
        s_cbranch_scc1 RT_k{j}
        s_cmp_eq_u32 s{S_BUD}, 0
        s_cbranch_scc1 RT_k{j}
        {ld(1, FL, VZ, SFO)}
        {budget()}
        s_waitcnt vmcnt(0)
        s_branch RT_n{j}
        RT_k{j}:
        """
    def load(j, k):
        out = [f's_add_u32 s{T+1}, s{SOO}, {segoff(S0 + 2*j) + ((k >> 2) << HDS) + ((k >> 1) & 1)*4096}'] if k % 2 == 0 else []
        return out + [ld(4, FR[j % 3] + 4*k, VF, T+1, (k & 1)*2048)]
    p('s_waitcnt lgkmcnt(0)\ns_barrier')
    rd = [f'ds_read_b128 {ar(4*q,4)}, v{VL} offset:{q*1024}' for q in range(64)]
    p(rd[:16]); p('s_waitcnt vmcnt(0)')
    p(need(0))
    for k in range(16): p(load(0, k)); p(rd[16+3*k:19+3*k])
    B(a, [(0, 1, 4)]); p(f'v_mov_b32 v{b}, 0x3f80\nv_lshlrev_b32 v{a}, v{a}, v{b}')
    B(b, [(1, 3, 0)]); B(VO, [(4, 2, 1)]); p(f'v_sub_u32 v{b}, v{b}, v{VO}')
    for k in range(2): p(f'v_cmp_eq_u32 vcc, {k}, v{b}\nv_cndmask_b32 v{SL+2+k}, 0, v{a}, vcc')
    for k in (0, 1, 4, 5): p(f'v_mov_b32 v{SL+k}, 0')
    B(VO, [(0, 4, 12), (4, 2, 5)])
    p('s_waitcnt lgkmcnt(0)')
    tst()
    q_ = [('l', 0, k) for k in range(16)]
    ahead = {0: [1, 2]}
    for j in range(1, NI-1): ahead[j] = [j+2] if j+2 < NI-1 else ([NI-1] if j == NI-2 else [])
    for j in range(NI):
        nx = ahead.get(j, [])
        for n_ in nx: p(need(n_))
        todo = [(n_, k) for n_ in nx for k in range(16)]
        for k in range(16):
            i = q_.index(('l', j, k)); del q_[:i+1]
            p(f's_waitcnt vmcnt({len(q_)})')
            for tq in range(4):
                d = ACC + 4*tq
                p(f'v_mfma_f32_16x16x32_bf16 {vr(d,4)}, {ar((k >> 2)*64 + (tq*4 + (k & 3))*4,4)}, {vr(FR[j % 3] + 4*k,4)}, {"0" if k == 0 else vr(d,4)}')
                if todo and (tq == 0 or (tq == 2 and (len(nx) == 2 or j == NI-2))):
                    x = todo.pop(0); p(load(*x)); q_.append(('l',) + x)
        p(f's_add_u32 s{T+1}, s{SPO}, {j << 20}')
        for h in range(2):
            for r in range(4): p(f'v_cvt_pk_bf16_f32 v{PK+2*r+h}, v{ACC+8*h+r}, v{ACC+8*h+4+r}')
        for h in range(2): p(st(4, PK+4*h, VL, T+1, 1024*h, 'sc1')); q_.append(('s', j, h))
        tst()
    p(ssum(T+2, [(S_C, 8)], F_P_)); p(ssum(T+3, [(S_V, 2), (T+2, 0)], 0, T))
    B(a, [(0, 3, 2)])
    nw = 2*NS // 8
    p(f"""
    s_mov_b32 s{S_SRD+2}, 0x800000
    s_mov_b32 s{S_SRD+3}, 0x20000
    s_mul_i32 s{T+4}, s{S_V}, {nw}
    s_add_u32 s{T+4}, s{T+4}, s{S_WAVE}
    v_mov_b32 v{b}, 1
    s_waitcnt vmcnt(0)
    s_barrier
    s_cmp_eq_u32 s{S_WAVE}, 3
    s_cbranch_scc0 RT_q
    s_mov_b64 exec, 1
    {st(1, b, a, T+3, 0, 'sc1')}
    s_mov_b64 exec, -1
    RT_q:
    s_cmp_ge_u32 s{S_WAVE}, {nw}
    s_cbranch_scc1 RT_end
    """)
    p(ssum(SPO, [(T+4, 18), (S_C, 14)], WS_PART, T))
    p(ssum(SOO, [(T+4, 16), (S_C, 7)], S0 << 17, T))
    p(f"""
    RT_p:
    {ld(1, b, a, T+2)}
    {budget()}
    s_waitcnt vmcnt(0)
    v_cmp_ne_u32 vcc, 1, v{b}
    s_cbranch_vccz RT_pk
    s_cmp_lg_u32 s{S_BUD}, 0
    s_cbranch_scc1 RT_p
    RT_pk:
    """)
    tst()
    for k in range(16):
        if k % 4 == 0: p(f's_add_u32 s{T+1}, s{SPO}, {k*1024}')
        p(ld(4, FR[0] + 4*k, VL, T+1, (k & 3)*1024))
    for k in range(16):
        p(f's_waitcnt vmcnt({15-k})')
        for t in range(2):
            d = ACC + 8*(k & 1) + 4*t
            p(f'v_mfma_f32_16x16x32_bf16 {vr(d,4)}, {vr(SL + 2 - 2*t,4)}, {vr(FR[0] + 4*k,4)}, {"0" if k < 2 else vr(d,4)}')
    for k in range(8): p(f'v_cvt_pk_bf16_f32 v{PK+k}, v{ACC+2*k}, v{ACC+2*k+1}')
    for h in range(2): p(st(4, PK+4*h, VO, SOO, 16*h, '', S_SRD))
    tst()
    p('RT_end:')
    if o.get('ttrace'):
        p(ssum(T, [(2, 10), (S_WAVE, 8)], 0xFA00000, T+1)); B(a, [(0, 6, 2)]); p(st(1, 250, a, T))
```

```python
from geng import *
def schedule(o):
    lists = []
    S0 = o.get('S0', 56)
    for xg in range(4):
        for i in range(32):
            L = []
            j = i & 15; k = j & 7
            mq, h = 1 + (j >> 3), 8*xg + (j & 7)
            m, nt = 1 + ((j >> 2) & 1), 4*xg + (j & 3)
            v = 2*xg + (j & 1)
            kv = lambda mt: t_proj(m, 256*(mt + (j >> 3)), nt)
            n64 = 16*xg + j
            q = lambda mt: t_proj(0, 256*(mt + (j >> 2)), nt)
            q2 = lambda mt: t_proj(0, 256*(mt + (k >> 2)), nt)
            L.append(t_projq(mq, i >> 4, h, 0, 1))
            if i < 16:
                L += [warm(t_projq(mq, 2, h), 0, 32 + (n64 >> 1) if n64 & 1 else 255), t_projq(mq, 3, h), warm(kv(4), 1, n64), t_bkv(j >> 1, v)]
                if j < 8: L += [t_bq(j, xg), t_bwof(j, xg), t_att(56 + (k >> 1), 64, v, 4)]
                else: L += [t_red(8*xg + k), q2(4), t_att(32 + (k >> 1), 48, v, 4), t_wo(8 + (k >> 1), v)]
            else:
                L += [warm(kv(2), 2, n64), q(0), t_att(j >> 1, 16, v, 8), warm(kv(6), 3, n64 >> 1 if n64 & 1 else 255), t_att(16 + (j >> 1), 32, v, 8)]
                if j < 8: L += [t_wo(k >> 1, v), t_wo(4 + (k >> 1), v)]
                else:
                    L += [q2(6), t_att(48 + (k >> 1), 56, v, 4), t_wos(24 + (k >> 1), v)]
            lists.append(L)
    return lists
```

```python
import sys, struct, math
from asmlib import *
from genr import *
import geng
NAME = 'concat_heads__memory_aug_recurrent_mem_tr__linear_attn_block__prompt'
KN = NAME + '_kernel'
def f2u(x): return struct.unpack('<I', struct.pack('<f', x))[0]
S_REG = 99
S_MODE, S_VERI, S_POLV = 3, 4, 5
LDS_MISC = 163840 - 64
RDEF = dict(nB=12, nBx=9, nB2=0, gC=6, kvwait=1, pA=2, dV=6, dS=56, dA0=36, dS0=56, syncC=0, dC=54, kx='gap', posB=2, pB=9, qB=4, wu='v', nvx=2, vxf=2, two=2, p0=0, nC=0, pace=2, dB2=4, preA=1)
def gen(o=None):
    o = dict(RDEF, **(o or {})); o['scl'] = f2u(math.log2(math.e)/math.sqrt(128))
    lists = geng.schedule(o); o['ntask'] = max(len(l) for l in lists) + 1
    p = Prog()
    T = 40; a, b, c = 40, 41, 42
    p(f'''
    s_cmp_ge_u32 s2, 256
    s_cbranch_scc1 L_exit
    s_getpc_b64 s[6:7]
    L_pc0:
    s_load_dwordx2 s[{S_WS}:{S_WS+1}], s[0:1], 96
    s_load_dwordx2 s[{S_DBG}:{S_DBG+1}], s[0:1], 88
    s_getreg_b32 s{S_XCD}, hwreg(HW_REG_XCC_ID, 0, 3)
    s_lshr_b32 s{S_IDX}, s2, 3
    v_lshrrev_b32 v1, 6, v0
    v_readfirstlane_b32 s{S_WAVE}, v1
    v_and_b32 v1, 63, v0
    s_mov_b32 s{S_BUD}, {o.get('budget', 400000)}
    s_lshr_b32 s{S_MODE}, s2, 31
    s_lshr_b32 s{S_VERI}, s2, 31
    s_lshr_b32 s{S_POLV}, s2, 31
    s_lshr_b32 s{S_REG}, s2, 31
    ''')
    if o.get('total') or o.get('gtrace'): p('s_memrealtime s[90:91]')
    if o.get('warm', 1):
        p(ssum(T, [(S_IDX, 9), (S_WAVE, 7)], 0, T+1)); p(bits(a, [(0, 4, 14)], T, c))
        p(f's_mov_b32 s{T}, L_codeend-L_pc0-4\nv_min_u32 v{a}, s{T}, v{a}\ns_mov_b64 exec, 0xffff\nglobal_load_dword v56, v{a}, s[6:7]\ns_mov_b64 exec, -1')
    if o.get('scramble'): p(f's_and_b32 s{S_IDX}, s2, 31')
    for k in range(4): p(f'v_mov_b32 v{44+k}, -1\nv_mov_b32 v{48+k}, 0')
    p(f'''
    v_mov_b32 v{c}, {LDS_MISC}
    ds_write_b64 v{c}, v[48:49]
    s_waitcnt lgkmcnt(0)
    s_add_u32 s{S_WS}, s{S_WS}, 0x1fffff
    s_addc_u32 s{S_WS+1}, s{S_WS+1}, 0
    s_and_b32 s{S_WS}, s{S_WS}, 0xffe00000
    s_mov_b32 s{S_WS+2}, {WS_SIZE}
    s_mov_b32 s{S_WS+3}, 0x20000
    s_barrier
    ''')
    p(ssum(T, [(S_WAVE, 19), (2, 10)], 0, T+1)); p(bits(a, [(0, 6, 4)], None, c))
    p(st(4, 44, a, T, 0, 'sc1'))
    p(f's_xor_b32 s{T+1}, s{T}, 0x42000'); p(st(4, 44, a, T+1, 0, 'sc1'))
    p(f's_add_u32 s{T}, s{T}, {WS_M2 + M2_A}'); p(st(4, 44, a, T, 0, 'sc1'))
    p(ssum(T, [(S_WAVE, 19), (2, 8)], WS_M2, T+1)); p(bits(b, [(0, 4, 4)], T, c))
    p(ssum(T, [(2, 7)], WS_M2 + M2_F)); p(bits(53, [(0, 3, 4)], T, c))
    p(f'''
    v_cmp_gt_u32 vcc, 16, v1
    v_cndmask_b32 v{b}, v53, v{b}, vcc
    s_bfm_b64 exec, 24, 0
    {st(4, 44, b, '0', 0, 'sc1')}
    s_mov_b64 exec, 15
    ''')
    p(ssum(T, [(2, 8), (S_WAVE, 6)], WS_FLAG, T+1)); p(st(4, 48, a, T, 0, 'sc1'))
    p(f'''
    s_mov_b64 exec, -1
    L_role:
    s_cmp_ge_u32 s{S_XCD}, 4
    s_cbranch_scc1 L_G
    ''')
    def register(p, SB, VB):
        p(f'''
        s_mov_b32 s{S_REG}, 1
        s_lshl_b32 s{SB}, 1, s{S_IDX}
        s_lshl_b32 s{SB+2}, s{S_XCD}, 5
        v_mov_b32 v{VB+2}, s{SB}
        v_mov_b32 v{VB+3}, s{SB+1}
        v_mov_b32 v{VB}, s{SB+2}
        s_mov_b64 exec, 1
        global_atomic_add_x2 v[254:255], v{VB}, v[{VB+2}:{VB+3}], s[{S_DBG}:{S_DBG+1}] sc0 sc1
        s_mov_b64 exec, -1
        ''')
    def greg(p):
        p(f's_add_u32 s48, s{S_WAVE}, s{S_VERI}\ns_cmp_eq_u32 s48, 0\ns_cbranch_scc0 G_reg\ns_mov_b32 s49, 0x100')
        register(p, 48, 30); p('G_reg:')
    NR = 1
    def race(p, nout):
        SB = 60; VB = V_T + 20
        p(f's_cmp_lg_u32 s{S_VERI}, 0\ns_cbranch_scc1 R_race_end')
        p(ssum(SB, [(S_WAVE, 19), (2, 10)], 0, SB+1))
        p(f'''
        s_bfe_u32 s{SB+4}, s{SB}, 0x1000d
        s_xor_b32 s{SB+1}, s{SB}, 0x42000
        s_mov_b64 s[{SB+2}:{SB+3}], 0
        s_mov_b32 s{SB+5}, 2000
        s_waitcnt vmcnt({nout}) lgkmcnt(0)
        s_buffer_load_dword s{SB+2}, {sr(S_WS,4)}, s{SB} glc
        s_buffer_load_dword s{SB+3}, {sr(S_WS,4)}, s{SB+1} glc
        R_race0:
        s_mov_b64 s[{SB+6}:{SB+7}], s[{SB+2}:{SB+3}]
        s_sub_u32 s{SB+5}, s{SB+5}, 1
        s_cselect_b64 s[{SB+6}:{SB+7}], -1, s[{SB+6}:{SB+7}]
        s_cmp_eq_u64 s[{SB+6}:{SB+7}], 0
        s_cbranch_scc1 R_race0
        s_sub_u32 s{SB+6}, s{SB+6}, s{SB+7}
        s_sub_u32 s{SB+7}, 0, s{SB+6}
        s_cmp_eq_u32 s{SB+4}, 0
        s_cselect_b32 s{SB+6}, s{SB+6}, s{SB+7}
        s_add_u32 s{SB+6}, s{SB+6}, 0x101
        v_mov_b32 v{VB}, {LDS_MISC}
        v_mov_b32 v{VB+1}, s{SB+6}
        s_mov_b64 exec, 1
        ds_add_rtn_u32 v{VB+1}, v{VB}, v{VB+1}
        s_waitcnt lgkmcnt(0)
        v_readfirstlane_b32 s{SB+7}, v{VB+1}
        s_mov_b64 exec, -1
        s_add_u32 s{SB+6}, s{SB+6}, s{SB+7}
        s_cmp_lt_u32 s{SB+6}, 0x400
        s_cbranch_scc1 R_race_end
        s_and_b32 s{SB+6}, s{SB+6}, 0xff
        s_lshl_b32 s{SB+1}, s{SB+6}, 18
        s_add_u32 s{SB+1}, s{SB+1}, 0x100
        ''')
        register(p, SB, VB)
        p('R_race_end:')
    o['hook_race'] = race
    o['hook_reg'] = greg
    def verify(p, lbl, SB=48, VB=30, also=''):
        p(f'''
        s_cmp_lg_u32 s{S_VERI}, 0
        s_cbranch_scc1 {lbl}_ok
        v_and_b32 v{VB}, 7, v1
        v_lshlrev_b32 v{VB}, 5, v{VB}
        {lbl}:
        global_load_dwordx2 v[{VB+2}:{VB+3}], v{VB}, s[{S_DBG}:{S_DBG+1}] sc1
        {budget()}
        s_mov_b32 s{SB}, 0
        s_waitcnt vmcnt(0)
        ''')
        for k in range(8): p(f'v_readlane_b32 s{SB+1}, v{VB+3}, {k}\ns_lshr_b32 s{SB+1}, s{SB+1}, 8\ns_add_u32 s{SB}, s{SB}, s{SB+1}')
        p(f'''
        s_and_b32 s{SB+1}, s{SB}, 0x3ff
        s_cmp_ge_u32 s{SB+1}, 256
        s_cbranch_scc1 {lbl}_all
        s_cmp_eq_u32 s{S_BUD}, 0
        s_cbranch_scc1 {lbl}_all
        s_sleep 2
        s_branch {lbl}
        {lbl}_all:
        s_mov_b32 s{S_VERI}, 1
        s_lshr_b32 s{SB}, s{SB}, 10
        s_cmp_gt_u32 s{SB}, {512*NR}
        s_cselect_b32 s{S_POLV}, 1, 0
        s_xor_b32 s{S_GP}, s{S_POLV}, {o.get('gside', 1)}
        s_lshl_b32 s{S_GP}, s{S_GP}, 13
        v_bfe_u32 v{VB+1}, v{VB+3}, 8, 10
        v_cmp_ne_u32 s[{SB+2}:{SB+3}], 32, v{VB+1}
        v_and_b32 v{VB+1}, 0xff, v{VB+3}
        v_cmp_ne_u32 s[{SB+4}:{SB+5}], 0, v{VB+1}
        v_cmp_ne_u32 vcc, -1, v{VB+2}
        s_or_b64 s[{SB+4}:{SB+5}], s[{SB+4}:{SB+5}], s[{SB+2}:{SB+3}]
        s_or_b64 vcc, vcc, s[{SB+4}:{SB+5}]
        {'s_mov_b64 vcc, -1' if o.get('forceslow') else ''}
        s_cbranch_vccz {lbl}_ok
        v_mov_b32 v{VB}, {LDS_MISC + 8}
        s_waitcnt vmcnt(0) lgkmcnt(0)
        s_cmp_eq_u32 s{S_REG}, 1
        s_cbranch_scc0 {lbl}_t
        s_mov_b64 exec, 1
        ds_write_b32 v{VB}, v255
        s_mov_b64 exec, -1
        s_waitcnt lgkmcnt(0)
        {lbl}_t:
        s_barrier
        ds_read_b32 v{VB+1}, v{VB}
        s_waitcnt lgkmcnt(0)
        v_readfirstlane_b32 s{S_IDX}, v{VB+1}
        s_bfe_u32 s{S_IDX}, s{S_IDX}, 0x50008
        s_cmp_eq_u64 s[{SB+2}:{SB+3}], 0
        {'s_cmp_eq_u32 s2, -1' if o.get('forceslow') else ''}
        s_cbranch_scc1 L_role
        s_mov_b32 s{S_MODE}, 1
        s_and_b32 s{S_XCD}, s2, 7
        s_lshr_b32 s{S_IDX}, s2, 3
        {f's_lshr_b32 s{S_XCD}, s2, 5' if o.get('forceslow') == 2 else ''}
        {f's_and_b32 s{S_IDX}, s2, 31' if o.get('forceslow') == 2 else ''}
        s_branch L_role
        {lbl}_ok:
        ''')
    r_setup(p, o); r_weights(p, o)
    if o.get('total'): p('s_memrealtime s[60:61]\ns_waitcnt lgkmcnt(0)\ns_mov_b32 s6, s60')
    p(ssum(S_KVO, [(S_V, 8)], F_KV_)); p(f'v_mov_b32 v{V_T+36}, 0\nv_mov_b32 v{V_T+37}, 0')
    verify(p, 'RV', S_T, V_T+20)
    p(f's_mov_b32 s{S_POL}, {o["pol"] if "pol" in o else "s%d" % S_POLV}')
    p(f's_cmp_lg_u32 s{S_MODE}, 0\ns_cbranch_scc1 L_Rslow')
    def rstat():
        if not o.get('total'): return
        S = S_ST
        p(f'''
        s_memtime s[{S}:{S+1}]
        s_memrealtime s[{S+2}:{S+3}]
        s_waitcnt lgkmcnt(0)
        s_mov_b32 s{S+5}, s{S+2}
        s_sub_u32 s{S}, s{S}, s{S+22}
        s_sub_u32 s{S+1}, s{S+2}, s{S+24}
        s_mov_b32 s{S+2}, s{S_BUD}
        s_mov_b32 s{S+3}, s90
        s_mov_b32 s{S+4}, s{S+24}
        s_mov_b32 s{S+6}, s{S_POL}
        s_mov_b32 s{S+7}, s{S_MODE}
        s_mov_b32 s{S+8}, s6
        s_lshl2_add_u32 s36, s2, s{S_WAVE}
        s_lshl_b32 s36, s36, 7
        s_add_u32 s36, s36, {0xF900000}
        v_mov_b32 v2, 0
        ''')
        for k in range(20): p(f'v_mov_b32 v{4+k}, s{S+k}')
        for k in range(5): p(st(4, 4+4*k, 2, 36, 16*k))
        if o.get('lite'): p(ssum(36, [(2, 10), (S_WAVE, 8)], 0xFB00000, 37)); p(f'v_lshlrev_b32 v2, 2, v1\n' + st(1, 255, 2, 36))
    r_loop(p, o, '', '')
    p('L_Rtail:'); rstat()
    r_tail(p, o)
    if o.get('total'):
        p(f's_memrealtime s[60:61]\ns_lshl2_add_u32 s36, s2, s{S_WAVE}\ns_lshl_b32 s36, s36, 7\ns_add_u32 s36, s36, {0xF900000 + 36}\nv_mov_b32 v2, 0\ns_waitcnt lgkmcnt(0)\nv_mov_b32 v4, s60\n' + st(1, 4, 2, 36))
    p('s_endpgm\nL_Rslow:')
    r_loop(p, dict(o, trace=0), 's', 'sc1')
    p('s_branch L_Rtail\nL_exit:\ns_endpgm\nL_G:')
    geng.g_role(p, o, verify)
    body = p.finish(o.get('verbose'))
    hdr = open('cdna_kernels/' + NAME + '.s.ref').read().split('; Override launch')[0] if not o.get('nohdr') else ''
    src = hdr + '; @launch grid=(256,1,1) block=(256,1,1) lds=163840\n'
    src += f'.amdgcn_target "amdgcn-amd-amdhsa--gfx950"\n.text\n.globl {KN}\n.p2align 8\n.type {KN},@function\n{KN}:\n'
    src += body + 's_endpgm\n' + geng.table(lists, o['ntask']) + 'L_codeend:\n'
    src += f'''.section .rodata,"a"
.p2align 6
.amdhsa_kernel {KN}
  .amdhsa_next_free_vgpr 512
  .amdhsa_next_free_sgpr 102
  .amdhsa_accum_offset 256
  .amdhsa_group_segment_fixed_size 0
  .amdhsa_kernarg_size 104
  .amdhsa_user_sgpr_count 2
  .amdhsa_user_sgpr_kernarg_segment_ptr 1
  .amdhsa_system_sgpr_workgroup_id_x 1
  .amdhsa_float_denorm_mode_32 3
.end_amdhsa_kernel
'''
    return src
if __name__ == '__main__':
    src = gen(eval(sys.argv[1]) if len(sys.argv) > 1 else None)
    open('cdna_kernels/' + NAME + '.s', 'w').write(src)
    print(len(src), 'bytes')
```

```python
from asmlib import *
import math
WS_B    = 0x0000000
WS_M2   = 0x0200000
M2_A    = 0x10000
WS_FLAG = 0x0400000
WS_KM   = 0x0800000
WS_VM   = 0x0C00000
WS_KX   = 0x1000000
WS_VX   = 0x1202000
HDS = 14
def segoff(seg): return (seg << 19) + ((seg >> 2) << 21)
def segoff_s(dst, seg, tmp): return [f's_lshl_b32 s{dst}, s{seg}, 19', f's_and_b32 s{tmp}, s{dst}, 0xffe00000', f's_add_u32 s{dst}, s{dst}, s{tmp}']
S_GP = 7
WS_TRACE = 0xF000000
WS_SIZE = 0x10000000 - 0x200000
NSEG = 64
S_WS = 8
S_XCD, S_IDX, S_WAVE = 12, 13, 14
S_BUD = 15
S_DBG = 16
S_V, S_C, S_J, S_H = 20, 21, 22, 23
S_STEP, S_CUR, S_NXT, S_RST = 24, 25, 26, 27
S_KXO, S_VXO, S_WUO, S_KMO = 28, 29, 30, 31
S_SRD = 32
S_T = 36
S_M_LO8, S_M_HI8, S_M_SM, S_M_C, S_M_32 = 44, 46, 48, 50, 52
S_SCL = 54
S_PERM0, S_PERM1 = 55, 56
S_POL = 57
S_NOCHK = 58
S_PRV = 59
S_PVX = 95
S_JV = 92
S_CU1 = 96
S_M_F = 100
S_KVF, S_KVO = 18, 19
F_KV_ = WS_FLAG + 0x8000
F_FIN_ = WS_FLAG + 0x0800
F_OV_ = WS_FLAG + 0x4000
F_P_ = WS_FLAG + 0x5000
WS_O_ = 0x5202000
WS_PART = 0xA000000
S_ST = 60
S_TAG, S_PFV, S_PFK, S_FBO, S_JUNK, S_SPIN = 86, 88, 89, 92, 93, 94
S_FB = 96
M2_F = 0x50000
B_F = 0x40000
V_LANE = 1
(V_CLD, V_CST, V_ALD, V_ALM, V_ALV, V_P0, V_P1, V_BST, V_BLD, V_KX, V_VX0, V_VX1, V_WU,
 V_L1W, V_L1WK, V_L1WV, V_L1R, V_L1R2, V_L2W0, V_L2W1, V_L2R, V_IDX1, V_IDX2, V_PST) = range(2, 26)
V_SELM = 26
V_SENT = 28
V_ONES = 32
V_BW = 40
V_VXD = 72
V_KXD = 104
V_ACC1 = 112
V_VWM = 136
V_FIN = 152
V_KEEP = 172
V_P = 176
V_SELA = 180
V_SELB = 184
V_T = 188
V_FA, V_TAG = 252, 253
V_FAV, V_FCV, V_FAL, V_FCL = V_T+60, V_T+61, V_T+62, V_T+63
V_PRG = 0
V_TB, V_LC = V_T+56, V_T+57
S_FB8, S_TB, S_FBO2 = 44, 97, 98
LDS3 = 20480
OOB = 0x7ffffff0
A_W1 = 0
A_WO = 192
W1 = lambda mat, tq, i: A_W1 + ((mat*2 + tq)*4 + i)*8
WO = lambda tq, ks: A_WO + (tq*2 + ks)*8
LDS1 = 0
LDS2 = 12288

def ld(n, dst, voff, soff, imm=0, fl='sc1', srd=S_WS):
    suf = {1: 'dword', 2: 'dwordx2', 4: 'dwordx4'}[n]
    d = dst if isinstance(dst, str) else vr(dst, n)
    so = soff if isinstance(soff, str) else sr(soff)
    return f'buffer_load_{suf} {d}, {vr(voff)}, {sr(srd,4)}, {so} offen offset:{imm} {fl}'
def st(n, src, voff, soff, imm=0, fl='', srd=S_WS):
    suf = {1: 'dword', 2: 'dwordx2', 4: 'dwordx4'}[n]
    so = soff if isinstance(soff, str) else sr(soff)
    return f'buffer_store_{suf} {vr(src, n)}, {vr(voff)}, {sr(srd,4)}, {so} offen offset:{imm} {fl}'
def zero(base, n): return [f'v_mov_b64 {vr(base+i,2)}, 0' for i in range(0, n, 2)]
def setexec(m): return f's_mov_b64 exec, {sr(m,2)}' if m is not None else 's_mov_b64 exec, -1'
def bits(dst, terms, base=None, tmp=None, src=V_LANE):
    out = []
    first = True
    for lo, w, sh in terms:
        if first:
            out.append(f'v_bfe_u32 v{dst}, v{src}, {lo}, {w}')
            if sh: out.append(f'v_lshlrev_b32 v{dst}, {sh}, v{dst}')
            first = False
        else:
            out.append(f'v_bfe_u32 v{tmp}, v{src}, {lo}, {w}')
            out.append(f'v_lshl_add_u32 v{dst}, v{tmp}, {sh}, v{dst}')
    if base is not None:
        out.append(f'v_add_u32 v{dst}, {base[1] if isinstance(base, tuple) else "s%d" % base}, v{dst}')
    return out
def ssum(dst, terms, lit=0, tmp=None):
    out = []
    first = True
    for s_, sh in terms:
        if first: out.append(f's_lshl_b32 s{dst}, s{s_}, {sh}'); first = False
        else: out += [f's_lshl_b32 s{tmp}, s{s_}, {sh}', f's_add_u32 s{dst}, s{dst}, s{tmp}']
    if lit: out.append(f's_add_u32 s{dst}, s{dst}, {lit}')
    return out

def r_setup(p, o):
    T = S_T
    a, b, c_ = V_T+5, V_T+6, V_T+7
    L = V_LANE
    B = lambda dst, terms, base=None: p(bits(dst, terms, base, c_))
    S = lambda terms, lit=0, dst=T+1: p(ssum(dst, terms, lit, T+3))
    p(f'''
    s_lshr_b32 s{T}, s{S_IDX}, 4
    s_lshl1_add_u32 s{S_V}, s{S_XCD}, s{T}
    s_and_b32 s{S_C}, s{S_IDX}, 15
    s_and_b32 s{S_J}, s{S_C}, 3
    s_xor_b32 s{S_JV}, s{S_J}, 2
    s_lshr_b32 s{T}, s{S_C}, 2
    s_lshl2_add_u32 s{S_H}, s{S_V}, s{T}
    s_lshl2_add_u32 s{T+4}, s{S_V}, s{S_WAVE}
    s_mov_b32 s{S_M_32}, -1
    s_mov_b32 s{S_M_32+1}, 0
    s_mov_b32 s{S_SCL}, 0x{o['scl']:08x}
    s_mov_b32 s{S_PERM0}, 0x05040100
    s_mov_b32 s{S_PERM1}, 0x07060302
    ''')
    S([(S_XCD, 14), (S_WAVE, 12)], WS_M2); B(V_CLD, [(0, 6, 4)], T+1)
    S([(S_XCD, 14), (S_IDX, 9), (S_WAVE, 7)], WS_M2); B(V_CST, [(0, 3, 4), (4, 1, 3)], T+1)
    p(f's_lshr_b32 s{T}, s{S_IDX}, 1\ns_and_b32 s{T+2}, s{S_IDX}, 1')
    S([(T, 14), (T+2, 12), (S_WAVE, 10)]); B(V_BLD, [(0, 6, 4)], T+1)
    sB = o.get('syncB', 1)
    if sB: S([(S_C, 14), (S_WAVE, 12), (S_V, 7)]); B(V_BST, [(0, 4, 3), (4, 2, 10)], T+1)
    else: S([(S_C, 14), (S_WAVE, 11), (S_V, 7)]); B(V_BST, [(0, 4, 3), (4, 1, 10), (5, 1, 18)], T+1)
    S([(T+4, 13)], WS_M2 + M2_A); B(V_ALD, [(0, 6, 4)], T+1)
    p(f'v_add_u32 v{V_ALV}, 3072, v{V_ALD}')
    S([(T+4, 13)], WS_M2 + M2_A + 2048); B(V_ALM, [(0, 6, 3)], T+1)
    S([(T+4, HDS)], WS_VX); B(V_VX0, [(4, 2, 9), (3, 1, 8), (1, 1, 6), (2, 1, 5), (0, 1, 4)], T+1)
    p(f'v_add_u32 v{V_VX1}, 4096, v{V_VX0}')
    S([(T+4, HDS), (S_C, 9)], WS_VX, S_PFV)
    S([(S_H, HDS), (S_J, 11), (S_WAVE, 9)], WS_KX, S_PFK)
    def only(reg, cond):
        p(f'v_mov_b32 v{b}, {OOB}\n{cond}\nv_cndmask_b32 v{reg}, v{b}, v{reg}, vcc')
    p(f's_lshr_b32 s{T}, s{S_IDX}, 2')
    S([(S_XCD, 12), (T, 7), (S_J, 4), (S_WAVE, 2)], WS_M2 + M2_F); B(V_FA, [(0, 2, 10)], T+1)
    only(V_FA, f'v_cmp_gt_u32 vcc, 4, v{L}')
    p(f's_and_b32 s{T}, s{S_V}, 1')
    S([(S_XCD, 12), (T, 9), (S_WAVE, 7)], WS_M2 + M2_F); B(V_FAL, [(0, 4, 2)], T+1)
    S([(S_XCD, 12), (S_WAVE, 8)], WS_M2 + M2_F + 16384); B(V_FCL, [(4, 1, 7), (0, 4, 2)], T+1)
    p(f'v_mov_b32 v{V_FAV}, -1\nv_mov_b32 v{V_FCV}, -1')
    S([(S_V, 8)], WS_FLAG); p(f'v_mov_b32 v{V_PRG}, s{T+1}\ns_lshl_b32 s{T+1}, s{S_C}, 6'); only(V_PRG, f'v_cmp_eq_u32 vcc, s{T+1}, v{L}')
    B(a, [(3, 1, 0), (5, 1, 1)]); only(V_CST, f'v_cmp_eq_u32 vcc, 0, v{a}')
    if not o.get('nB2') and not sB: only(V_BST, f'v_cmp_gt_u32 vcc, 32, v{L}')
    if o.get('two', 0):
        lg = o['two'].bit_length() - 1
        p(f's_and_b32 s{T}, s{S_V}, {(2 << lg) - 1}\ns_lshr_b32 s{T+2}, s{S_V}, {1 + lg}'); S([(T, 15), (S_C, 8), (T+2, 2)], B_F)
    else: S([(S_C, 8), (S_V, 2)], B_F)
    B(V_WU, [(2, 1, 14), (1, 1, 12), (0, 1, 7)], T+1)
    p(f'v_mov_b32 v{b}, 0x20000000\nv_cmp_gt_u32 vcc, 8, v{L}\nv_cndmask_b32 v{V_WU}, v{b}, v{V_WU}, vcc')
    p(f's_lshr_b32 s{T}, s{S_XCD}, 1\ns_and_b32 s{T+2}, s{S_XCD}, 1')
    S([(T, 14), (T+2, 12), (S_IDX, 7)], B_F, S_FBO2)
    if o.get('two', 0): p(f's_and_b32 s{T}, s{S_WAVE}, 1\ns_lshl_b32 s{T}, s{T}, 15\ns_add_u32 s{S_FBO2}, s{S_FBO2}, s{T}')
    B(V_LC, [(0, 6, 2)], ('lit', LDS3))
    S([(S_H, HDS), (S_J, 11)], WS_KX); B(V_KX, [(4, 2, 9), (0, 4, 4)], T+1)
    p(f'''
    v_and_b32 v{a}, 2, v{L}
    v_cmp_eq_u32 vcc, 0, v{a}
    v_mov_b32 v{a}, 0x4444
    v_mov_b32 v{b}, 0xeeee
    v_cndmask_b32 v{V_IDX1}, v{b}, v{a}, vcc
    v_mov_b32 v{a}, 0xe484
    v_mov_b32 v{b}, 0xee9e
    v_cndmask_b32 v{V_IDX2}, v{b}, v{a}, vcc
    v_mov_b32 v{a}, 0x84e4
    v_mov_b32 v{b}, 0x9eee
    v_cndmask_b32 v{a}, v{b}, v{a}, vcc
    v_cmp_gt_u32 vcc, 32, v{L}
    v_cndmask_b32 v{V_IDX2}, v{a}, v{V_IDX2}, vcc
    ''')
    for k in range(4): p(f'v_mov_b32 v{V_SENT+k}, -1')
    for k in range(8): p(f'v_mov_b32 v{V_ONES+k}, {"0" if k % 4 == 3 else "0x3f803f80"}')
    for tq in range(4): p(f'v_mov_b32 v{V_BW+8*tq+3}, 0\nv_mov_b32 v{V_BW+8*tq+7}, 0')
    B(a, [(0, 1, 4)]); p(f'v_mov_b32 v{b}, 0x3f80\nv_lshlrev_b32 v{a}, v{a}, v{b}')
    B(b, [(1, 3, 0)])
    for k in range(8): p(f'v_cmp_eq_u32 vcc, {k}, v{b}\nv_cndmask_b32 v{V_SELA+k}, 0, v{a}, vcc')
    B(a, [(3, 1, 4)]); p(f'v_mov_b32 v{b}, 0x3f80\nv_lshlrev_b32 v{a}, v{a}, v{b}')
    B(b, [(2, 1, 0)])
    for k in range(2): p(f'v_cmp_eq_u32 vcc, {k}, v{b}\nv_cndmask_b32 v{V_SELM+k}, 0, v{a}, vcc')
    S([(S_WAVE, 10)], LDS1); B(a, [(4, 2, 8), (1, 3, 4), (0, 1, 3)], T+1)
    B(b, [(4, 2, 5)])
    p(f'v_xor_b32 v{V_L1W}, v{a}, v{b}\nv_xor_b32 v{V_L1WK}, 16, v{V_L1W}\nv_add_u32 v{V_L1WK}, 4096, v{V_L1WK}')
    B(b, [(4, 1, 6), (5, 1, 5)])
    p(f'v_xor_b32 v{V_L1WV}, v{a}, v{b}\nv_add_u32 v{V_L1WV}, 8192, v{V_L1WV}')
    S([(S_WAVE, 11)], LDS2); B(a, [(4, 2, 9), (0, 4, 4)], T+1)
    B(b, [(4, 2, 6)])
    p(f'v_xor_b32 v{V_L2W0}, v{a}, v{b}\nv_xor_b32 v{V_L2W1}, 32, v{V_L2W0}')
    if sB: p(f's_and_b32 s{T}, s{S_WAVE}, 1'); S([(T, 7)], LDS2); B(a, [(3, 2, 9), (1, 1, 8), (5, 1, 6), (2, 1, 5), (0, 1, 4)], T+1)
    else: S([(S_WAVE, 6)], LDS2); B(a, [(3, 2, 9), (1, 1, 8), (2, 1, 5), (0, 1, 4)], T+1)
    B(b, [(3, 2, 6), (1, 1, 5)])
    p(f'v_xor_b32 v{V_L2R}, v{a}, v{b}')
    S([(S_H, 13)], WS_M2 + M2_A, T+5)
    p(f'''
    s_cmp_eq_u32 s{S_WAVE}, 1
    s_cbranch_scc1 R_su1
    s_cmp_eq_u32 s{S_WAVE}, 2
    s_cbranch_scc1 R_su2
    s_cmp_eq_u32 s{S_WAVE}, 3
    s_cbranch_scc1 R_su3
    ''')
    B(a, [(3, 1, 12), (0, 3, 7), (4, 2, 5)], ('lit', LDS1) if LDS1 else None)
    B(b, [(1, 2, 5), (3, 1, 4)])
    p(f'v_xor_b32 v{V_L1R}, v{a}, v{b}\nv_xor_b32 v{V_L1R2}, 16, v{V_L1R}')
    S([(T+5, 0), (S_J, 8)]); B(V_P0, [(5, 1, 10), (1, 2, 6), (4, 1, 5), (0, 1, 4)], T+1)
    S([(T+5, 0), (S_J, 7)], 2048); B(V_P1, [(1, 2, 5), (4, 1, 4), (0, 1, 3)], T+1)
    S([(S_H, 11), (S_J, 9)], WS_KM); B(V_PST, [(4, 2, 7), (0, 3, 4)], T+1)
    B(a, [(3, 1, 0)]); only(V_P0, f'v_cmp_eq_u32 vcc, 0, v{a}'); only(V_PST, f'v_cmp_eq_u32 vcc, 1, v{a}')
    B(a, [(3, 1, 0), (5, 1, 1)]); only(V_P1, f'v_cmp_eq_u32 vcc, 2, v{a}')
    p('s_branch R_sud\nR_su1:')
    p(f'v_cmp_gt_u32 vcc, 32, v{L}')
    S([(T+5, 0), (S_J, 8)]); B(a, [(4, 1, 10), (0, 4, 4)], T+1)
    S([(T+5, 0), (S_JV, 9)], 3072); B(b, [(0, 5, 4)], T+1)
    p(f'v_cndmask_b32 v{V_P0}, v{b}, v{a}, vcc')
    S([(S_XCD, 14), (S_IDX, 9)], WS_M2); B(a, [(0, 5, 4)], T+1)
    S([(T+5, 0), (S_J, 7)], 2048); B(b, [(0, 3, 4)], T+1)
    p(f'v_cndmask_b32 v{V_P1}, v{b}, v{a}, vcc')
    S([(S_C, 14), (S_V, 7)]); B(V_KX, [(0, 3, 4), (3, 2, 10), (5, 1, 18)], T+1)
    if not o.get('nB2'): only(V_KX, f'v_cmp_gt_u32 vcc, 32, v{L}')
    p(f'v_mov_b32 v{V_PST}, 0\nv_mov_b32 v{V_L1R}, 0\nv_mov_b32 v{V_L1R2}, 0\ns_branch R_sud\nR_su2:')
    B(a, [(5, 1, 6), (2, 1, 5), (3, 2, 3), (1, 1, 2), (0, 1, 9)], ('lit', LDS1 + 8192))
    B(b, [(0, 1, 5)])
    p(f'v_xor_b32 v{V_L1R}, v{a}, v{b}\nv_xor_b32 v{V_L1R2}, 64, v{V_L1R}')
    S([(S_H, 11), (S_JV, 9)], WS_VM); B(V_PST, [(0, 6, 3)], T+1)
    p(f'v_mov_b32 v{V_P0}, 0\nv_mov_b32 v{V_P1}, 0\ns_branch R_sud\nR_su3:')
    B(a, [(1, 1, 9), (3, 2, 7), (5, 1, 6), (2, 1, 5), (0, 1, 4)], ('lit', LDS1 + 8192))
    B(b, [(4, 1, 6), (1, 1, 5)])
    p(f'v_xor_b32 v{V_L1R}, v{a}, v{b}')
    S([(T+5, 0), (S_JV, 9)], 3072); B(V_P0, [(0, 6, 3)], T+1)
    S([(S_C, 14), (S_V, 7)], 4096); B(V_KX, [(0, 3, 4), (3, 2, 10), (5, 1, 18)], T+1)
    if not o.get('nB2'): only(V_KX, f'v_cmp_gt_u32 vcc, 32, v{L}')
    p(f'v_mov_b32 v{V_L1R2}, 0\nv_mov_b32 v{V_P1}, 0\nv_mov_b32 v{V_PST}, 0\nR_sud:')

def r_weights(p, o):
    T = S_T
    c_ = V_T+7
    W1o, WOo, WVo = V_T+24, V_T+28, V_T+32
    lqk, lv_, lo, ad = V_T+8, V_T+9, V_T+10, V_T+11
    hq, ho = V_T+36, V_T+37
    B = lambda dst, terms, base=None: p(bits(dst, terms, base, c_))
    NS = o.get('NS', 8)
    SO, SM = S_KXO, S_VXO
    p(f"""
    s_load_dwordx2 s[{T}:{T+1}], s[0:1], 16
    s_load_dwordx2 s[{T+2}:{T+3}], s[0:1], 24
    s_load_dwordx2 s[{T+4}:{T+5}], s[0:1], 32
    s_load_dwordx2 s[{T+6}:{T+7}], s[0:1], 40
    s_mul_i32 s{SM}, s{S_WAVE}, {NS*4096}
    """)
    p(ssum(S_SRD, [(S_WAVE, 21), (S_H, 8), (S_J, 6)], 0, S_SRD+1))
    B(W1o, [(2, 4, 13), (0, 2, 4)], S_SRD)
    for j in range(1, 4): p(f'v_add_u32 v{W1o+j}, {j*16*8192 - 1024*j}, v{W1o}')
    for j in range(4): p(f'v_xor_b32 v{WVo+j}, 128, v{W1o+j}')
    p(ssum(S_SRD, [(S_V, 20), (S_WAVE, 18), (S_C, 7)], 0, S_SRD+1))
    B(WOo, [(3, 3, 11), (0, 3, 4)], S_SRD)
    for j in range(1, 4): p(f'v_add_u32 v{WOo+j}, {j*8*2048 - 1024*j}, v{WOo}')
    p(f's_mov_b32 s{S_SRD+2}, 0x800000\ns_mov_b32 s{S_SRD+3}, 0x20000\ns_waitcnt lgkmcnt(0)')
    order = [(m, i) for pr in o.get('word', ((1, 2), (0, 3))) for i in range(4) for m in pr]
    def issue1(k, j):
        mat, i = order[k]
        return [f's_mov_b32 s{S_SRD}, s{T+2*mat}\ns_mov_b32 s{S_SRD+1}, s{T+2*mat+1}', f's_add_u32 m0, s{SM}, {(k % NS)*4096}',
                f's_mov_b32 s{SO}, {64*i*8192 if mat < 3 else 32*i*2048}',
                f'buffer_load_dwordx4 v{[W1o, W1o, WVo, WOo][mat]+j}, {sr(S_SRD,4)}, s{SO} offen offset:{1024*j} {o.get("ntw", [""]*4)[mat]} lds']
    def issue(k):
        return [x for kk in (k, k+1) for j in range(4) for x in (issue1(kk, j) if j == 0 else issue1(kk, j)[-1:])]
    if o.get('help', 1):
        p(ssum(SO, [(S_IDX, 18), (S_WAVE, 16), (S_XCD, 11)], 0x180, S_WUO)); B(hq, [(0, 3, 13), (3, 1, 10), (4, 1, 10), (4, 1, 9)], SO)
        p(ssum(SO, [(S_XCD, 21), (S_IDX, 16), (S_WAVE, 14)], 0x180, S_WUO)); B(ho, [(0, 4, 10)], SO)
    def helper(mats):
        p('s_bfm_b64 exec, 24, 0')
        for mat in mats: p(f's_mov_b32 s{S_SRD}, s{T+2*mat}\ns_mov_b32 s{S_SRD+1}, s{T+2*mat+1}\n' + ld(1, V_T+38, hq if mat < 3 else ho, '0', 0, '', S_SRD))
        p('s_mov_b64 exec, -1')
    assert NS == 8
    rp = o.get('racepos', 2)
    if rp == 0: o['hook_race1'](p)
    helper((1, 2))
    if rp == 1: o['hook_race1'](p)
    for k in range(0, NS, 2):
        if k == o.get('help2', 8): helper((0, 3))
        p(issue(k))
        if rp == k + 2: o['hook_race1'](p)
    B(lqk, [(5, 1, 10), (4, 1, 8), (1, 1, 5), (2, 2, 3), (0, 1, 2)], SM)
    B(lv_, [(5, 1, 10), (4, 1, 8), (0, 1, 5), (3, 1, 4), (1, 1, 3), (2, 1, 2)], SM)
    B(lo, [(4, 2, 9), (0, 4, 3)], SM)
    if o.get('hook_race'): o['hook_race'](p, 4*NS + (4 if o.get('help2', 8) < 8 else 2))
    sb = 72
    for k in range(16):
        mat, i = order[k]
        if k % 2 == 0: p(f's_waitcnt vmcnt({4*(min(k+NS-1, 15) - k - 1) + (4 if k + NS > 16 else 0)})')
        for R in range(2):
            p(f'v_add_u32 v{ad}, {(k % NS)*4096 + R*2048}, v{[lqk, lqk, lv_, lo][mat]}')
            if mat < 3:
                for vv in range(4):
                    o0 = 128*(vv & 1) + 32*(vv >> 1)
                    p(f'ds_read2_b32 {vr(sb+2*(4*R+vv),2)}, v{ad} offset0:{o0} offset1:{o0+16}')
            else:
                for v1 in range(2): p(f'ds_read2_b64 {vr(sb+4*(2*R+v1),4)}, v{ad} offset0:{32*v1} offset1:{32*v1+16}')
        p('s_waitcnt lgkmcnt(0)')
        if k % 2 == 1 and k + NS < 16:
            if k - 1 + NS == o.get('help2', 8): helper((0, 3))
            p(issue(k - 1 + NS))
        if k == 9 and o.get('tlb', 0):
            p(ssum(SO, [(S_IDX, 23), (S_WAVE, 21), (S_XCD, 7)], 0, S_WUO)); p(f's_buffer_load_dword s{S_JUNK}, {sr(S_WS,4)}, s{SO} glc')
        if k + NS == 16:
            p(f's_load_dwordx2 s[{T}:{T+1}], s[0:1], 8\ns_lshl_b32 s{SO}, s{S_WAVE}, 9')
            B(W1o, [(2, 2, 12), (0, 1, 11), (4, 2, 5), (1, 1, 4)])
            p(f's_waitcnt lgkmcnt(0)\ns_mov_b32 s{S_SRD}, s{T}\ns_mov_b32 s{S_SRD+1}, s{T+1}\ns_mov_b32 s{S_SRD+2}, 16384')
            for q in range(4): p(ld(4, V_T+40+4*q, W1o, SO, 128*q, '', S_SRD))
        if mat < 3:
            for v in range(8):
                p(f'v_perm_b32 v{V_T+12}, v{sb+2*v+1}, v{sb+2*v}, s{S_PERM0}\nv_perm_b32 v{V_T+13}, v{sb+2*v+1}, v{sb+2*v}, s{S_PERM1}')
                p(f'v_accvgpr_write_b32 a{W1(mat,0,i)+v}, v{V_T+12}\nv_accvgpr_write_b32 a{W1(mat,1,i)+v}, v{V_T+13}')
        else:
            ks, R = i >> 1, i & 1
            for vv in range(4):
                for tq in range(4): p(f'v_perm_b32 v{V_T+12+tq}, v{sb+4*vv+2+(tq>>1)}, v{sb+4*vv+(tq>>1)}, s{S_PERM0 + (tq&1)}')
                for tq in range(4): p(f'v_accvgpr_write_b32 a{WO(tq,ks)+4*R+vv}, v{V_T+12+tq}')
    p('s_barrier')

def vwx_groups(reload_so):
    ACC = V_T
    out = []
    for T_ in range(2):
        for u in range(4):
            grp = []
            q = V_VXD + (T_*4+u)*4
            for tq in range(4):
                d = ACC + (T_*4+tq)*4
                grp.append(f'v_mfma_f32_16x16x32_bf16 {vr(d,4)}, {vr(q,4)}, {ar(WO(tq,u>>1)+4*(u&1),4)}, {"0" if u == 0 else vr(d,4)}')
            grp.append(ld(4, q, V_VX0 + (u >> 1), reload_so, (u & 1)*2048 + T_*128))
            out.append(grp)
    return out
def vwx_cvt(T_):
    ACC = V_T; out = []
    for tq in range(4):
        d = ACC + (T_*4+tq)*4
        out.append(f'v_cvt_pk_bf16_f32 v{V_BW+8*tq+4*T_}, v{d}, v{d+1}')
        out.append(f'v_cvt_pk_bf16_f32 v{V_BW+8*tq+4*T_+1}, v{d+2}, v{d+3}')
    return out
def delay(n):
    out = []
    while n > 0:
        k = min(n, 16); out.append('s_nop %d' % (k-1)); n -= k
    return out
def budget(): return f's_sub_u32 s{S_BUD}, s{S_BUD}, 1\ns_max_i32 s{S_BUD}, s{S_BUD}, 0'

def r_loop(p, o, sfx='', pl=''):
    T = S_T
    def stamp(k):
        if o.get('trace'): p(f's_mem{"real" if o["trace"] == 1 else ""}time s[{S_ST+2*k}:{S_ST+2*k+1}]')
        if o.get('trace') == 2 and k == 6: p(f's_memrealtime s[{S_ST+20}:{S_ST+21}]')
    def count(k):
        if o.get('counts'): p(f's_add_u32 s{S_ST+16+k}, s{S_ST+16+k}, 1')
    MEM = V_T
    a = V_T+36
    if o.get('pret', 1):
        p(ssum(T, [(S_XCD, 16), (S_IDX, 11)], WS_M2 + M2_A, T+1)); p(bits(a+2, [(0, 4, 7)], T, a))
        p(ssum(T, [(S_XCD, 14), (S_IDX, 9)], WS_M2, T+1)); p(bits(a+3, [(0, 2, 7)], T, a))
        p(f'v_cmp_gt_u32 vcc, 16, v{V_LANE}\nv_cndmask_b32 v{a+2}, v{a+3}, v{a+2}, vcc\ns_lshl_b32 s{T}, s{S_WAVE}, 19\nv_add_u32 v{a+2}, s{T}, v{a+2}')
        p(ssum(T, [(S_XCD, 12), (S_IDX, 7)], WS_M2 + M2_F, T+1)); p(f'v_writelane_b32 v{a+2}, s{T}, 20\ns_bfm_b64 exec, 21, 0')
        p(ld(1, a+3, a+2, '0')); p(setexec(None))
    if o.get('kvwait'):
        p(f'''
        v_mov_b32 v{a}, 0
        R_kv0{sfx}:
        v_readfirstlane_b32 s{S_KVF}, v{a+1}
        s_and_b32 s{T}, s{S_KVF}, 0xff
        s_cmp_ge_u32 s{T}, 8
        s_cbranch_scc1 R_kv0k{sfx}
        s_cmp_eq_u32 s{S_BUD}, 0
        s_cbranch_scc1 R_kv0k{sfx}
        {ld(1, a+1, a, S_KVO)}
        {budget()}
        s_waitcnt vmcnt(0)
        s_branch R_kv0{sfx}
        R_kv0k{sfx}:
        ''')
    p(f'''
    s_xor_b32 s{T}, s{S_GP}, {o.get('kvx', 0) << 13}
    v_xor_b32 v{V_VX0}, s{T}, v{V_VX0}
    v_xor_b32 v{V_VX1}, s{T}, v{V_VX1}
    s_xor_b32 s{S_PFV}, s{S_PFV}, s{T}
    s_xor_b32 s{S_PFK}, s{S_PFK}, s{T}
    s_bitcmp1_b32 s{S_WAVE}, 0
    s_cselect_b32 s{T}, 0, s{T}
    v_xor_b32 v{V_KX}, s{T}, v{V_KX}
    s_mov_b32 s{S_VXO}, 0
    ''')
    for T_ in range(2):
        for u in range(4): p(ld(4, V_VXD+(T_*4+u)*4, V_VX0+(u>>1), S_VXO, (u&1)*2048 + T_*128))
    for T_ in range(2): p(ld(4, V_KXD+4*T_, V_KX, S_VXO, T_*256))
    p(zero(V_ACC1, 60))
    p(f's_mov_b32 s{S_VXO}, {segoff(1)}')
    for k, grp in enumerate(vwx_groups(S_VXO)): p('s_waitcnt vmcnt(9)'); p(grp)
    p(vwx_cvt(0)); p(vwx_cvt(1))
    for k in range(0, 16, 2): p(f'v_mov_b64 {vr(MEM+k,2)}, {vr(V_T+40+k,2)}')
    p(f'''
    s_mov_b32 s{S_STEP}, 0
    s_mov_b32 s{S_CUR}, 0
    s_mov_b32 s{S_NXT}, 0x80000
    s_mov_b32 s{S_RST}, 0x100000
    s_mov_b32 s{S_KXO}, {segoff(1)}
    s_mov_b32 s{S_VXO}, {segoff(2)}
    s_mov_b32 s{S_WUO}, {segoff(3)}
    s_mov_b32 s{S_KMO}, 0
    s_lshl_b32 s{T}, s{S_POL}, 13
    v_add_u32 v{V_BST}, s{T}, v{V_BST}
    v_add_u32 v{V_BLD}, s{T}, v{V_BLD}
    v_mov_b32 v{V_TAG}, 1
    v_add_u32 v{V_WU}, s{T}, v{V_WU}
    s_add_u32 s{S_FBO2}, s{S_FBO2}, s{T}
    s_mov_b32 s{S_TB}, 1
    v_mov_b32 v{V_TB}, 1
    ds_write_b32 v{V_LC}, v{V_TB}
    s_mov_b64 s[{S_FB8}:{S_FB8+1}], 0
    s_mov_b64 s[{S_FB8+2}:{S_FB8+3}], 0
    s_mov_b64 s[{S_FB8+4}:{S_FB8+5}], 0
    s_mov_b64 s[{S_FB8+6}:{S_FB8+7}], 0
    s_bitcmp1_b32 s{S_WAVE}, 0
    s_cselect_b32 s{T+1}, s{T}, 0
    v_add_u32 v{V_KX}, s{T+1}, v{V_KX}
    s_mov_b32 s{S_TAG}, 1
    ''')
    if o.get('trace'):
        p(f's_lshl2_add_u32 s{T}, s2, s{S_WAVE}\ns_lshl_b32 s{T}, s{T}, 12\ns_add_u32 s{T}, s{T}, {WS_TRACE}\nv_lshl_add_u32 v254, v{V_LANE}, 2, s{T}\nv_mov_b32 v255, 0')
    if o.get('trace') or o.get('counts'):
        for k in range(0, 20): p(f's_mov_b32 s{S_ST+k}, 0')
    if o.get('total'): p(f's_memtime s[{S_ST+22}:{S_ST+23}]\ns_memrealtime s[{S_ST+24}:{S_ST+25}]')
    p(f's_waitcnt lgkmcnt(0)\ns_mov_b32 s{S_NOCHK}, 0')
    for w in range(1, 4): p(f's_cmp_eq_u32 s{S_WAVE}, {w}\ns_cbranch_scc1 R_cw0{sfx}{w}')
    p(f's_branch R_cw0{sfx}0')
    for w in range(4): r_body(p, o, sfx + str(w), pl, stamp, count, w, f'R_fin{sfx}')
    c0, c1 = V_T, V_T+1
    p(f'''
    R_fin{sfx}:
    s_waitcnt vmcnt(0) lgkmcnt(0)
    s_barrier
    s_cmp_eq_u32 s{S_WAVE}, 0
    s_cbranch_scc0 R_l3{sfx}
    s_lshl_b32 s{T}, s{S_V}, 8
    s_add_u32 s{T}, s{T}, {F_FIN_}
    v_mov_b32 v{c0}, 0
    v_mov_b32 v{c1}, 1
    s_mov_b64 exec, 1
    buffer_atomic_add v{c1}, v{c0}, {sr(S_WS,4)}, s{T} offen sc1
    s_mov_b64 exec, -1
    R_l3{sfx}:
    ''')


class VQ:
    def __init__(self, p): self.p = p; self.q = []
    def __call__(self, x, tag=None):
        if isinstance(x, (list, tuple)):
            for y in x: self(y, tag)
            return
        for line in x.split('\n'):
            line = line.strip()
            if line.startswith('@wait'): line = self.wait(line.split()[1])
            t = tag
            if '@' in line: line, t = line.split('@')
            if line.startswith('buffer_'): self.q.append(t)
            self.p(line)
    def unknown(self): self.q.append('?')
    def wait(self, tag):
        n = 0
        for t in reversed(self.q):
            if t == tag or t == '?': break
            n += 1
        else: raise KeyError(tag)
        return f's_waitcnt vmcnt({n})'

def r_body(p0, o, sfx, pl, stamp, count, w, fin_lbl):
    T = S_T
    p = VQ(p0)
    MEM = V_T; X = V_T + 32
    c0, c1 = V_T+58, V_T+59
    lines = lambda t: [x.strip() for x in t.split('\n') if x.strip()]
    g = lambda k, d: (o[k][w] if isinstance(o.get(k), (list, tuple)) else o.get(k, d))
    tr = o.get('trace')
    keep = [st(4, V_KEEP, V_PST, S_KMO, 0, 'sc1'), None, st(2, V_KEEP, V_PST, S_KMO, 0, 'sc1'), None][w]
    side = [keep] if keep else [st(4, V_SENT, V_KX, S_RST, 0, 'sc1')]
    if w == 1: side.append(st(1, V_TAG, V_PRG, '0', 0, 'sc1'))
    kxl = [ld(4, V_KXD, V_KX, S_KXO, 0), ld(4, V_KXD+4, V_KX, S_KXO, 256)] if w == 0 else []
    kx = o.get('kx', 'gap')
    spf = lambda base, so: [f's_add_u32 s{T}, s{base}, s{so}'] + [f's_buffer_load_dwordx2 {sr(S_M_F,2)}, {sr(S_WS,4)}, s{T} offset:{128*k+60}' for k in range(4)]
    pfv = spf(S_PFV, S_WUO) if 'v' in o.get('wu', 'vk') else []
    pfk = spf(S_PFK, S_VXO) if 'k' in o.get('wu', 'vk') else []
    postA = st(1, V_TAG, V_FA, '0', 0, pl); pA = o.get('pA', 1)
    postC = [f's_mov_b32 s{T+4}, 16384', st(1, V_TAG, V_FA, T+4, 0, pl)]
    class Rot:
        def __init__(self, reg, ad): self.reg, self.ad, self.k = reg, ad, 0
        def __call__(self):
            self.k += 1; return ld(1, self.reg, self.ad, '0', 1024*(self.k % o.get('nrep', 4)))
    FA_, FC_ = Rot(V_FAV, V_FAL), Rot(V_FCV, V_FCL)
    sA = o.get('syncA', 1); sC = o.get('syncC', 1)
    def pacer(lbl, reg, tag):
        return [f'v_cmp_gt_i32 vcc, s{tag}, v{reg}', f's_cbranch_vccz {lbl}_ok'] * o.get('pace', 3)
    def spin(lbl, reg, poll, tag):
        out = [f's_min_u32 s{S_SPIN}, s{S_BUD}, 1000', f'{lbl}:']
        for k in range(4): out += [f'v_cmp_gt_i32 vcc, s{tag}, v{reg}', poll(), f's_cbranch_vccz {lbl}_ok'] + pacer(lbl, reg, tag)
        out += [f's_sub_u32 s{S_SPIN}, s{S_SPIN}, 1', f's_cbranch_scc0 {lbl}', f'{lbl}_ok:']
        p0(out); p.unknown()
    order = [4, 5, 0, 1, 2, 3]
    mf = lambda i: [f'v_smfmac_f32_16x16x64_bf16 {vr(V_ACC1+t6*4,4)}, {vr(MEM+4*i,4)}, {ar(W1(t6>>1,t6&1,i),8)}, v{V_IDX1}' for t6 in order]
    def chk(i): return [f'v_max3_u32 v{c0}, v{MEM+4*i}, v{MEM+4*i+1}, v{MEM+4*i+2}', f'v_max_u32 v{c0}, v{c0}, v{MEM+4*i+3}', f'v_cmp_eq_u32 vcc, -1, v{c0}']
    def s1_red(mat):
        D0, D1 = V_ACC1+mat*8, V_ACC1+mat*8+4
        R = X + 4*mat
        ad = [V_L1W, V_L1WK, V_L1WV][mat]
        return [f'v_pk_add_f32 {vr(R,2)}, {vr(D0,2)}, {vr(D0+2,2)}', f'v_pk_add_f32 {vr(R+2,2)}, {vr(D1,2)}, {vr(D1+2,2)}',
                f'ds_write2_b32 v{ad}, v{R}, v{R+2} offset0:0 offset1:1', f'ds_write2_b32 v{ad}, v{R+1}, v{R+3} offset0:32 offset1:33']
    grps = vwx_groups(S_VXO)
    nvx = o.get('nvx', 4)
    vx2 = [gr[-1].replace(f', s{S_VXO} ', f', s{S_KXO} ') + '@vx' for gr in grps[8-nvx:]] if nvx else []
    vxf = o.get('vxf', 2)
    upd2 = lines(f"""
    s_add_u32 s{S_STEP}, s{S_STEP}, 1
    s_add_u32 s{S_TAG}, s{S_TAG}, 1
    v_mov_b32 v{V_TAG}, s{S_TAG}
    s_lshl_b32 s{S_TB}, 1, s{S_STEP}
    v_mov_b32 v{V_TB}, s{S_TB}
    s_mov_b32 s{S_KXO}, s{S_VXO}
    s_mov_b32 s{S_VXO}, s{S_WUO}
    s_add_u32 s{S_WUO}, s{S_STEP}, 3
    s_min_u32 s{S_WUO}, s{S_WUO}, {NSEG-1}
    s_lshl_b32 s{S_WUO}, s{S_WUO}, 19
    s_and_b32 s{S_PVX}, s{S_WUO}, 0xffe00000
    s_add_u32 s{S_WUO}, s{S_WUO}, s{S_PVX}
    s_add_u32 s{S_KMO}, s{S_KMO}, 0x10000
    s_add_u32 s{S_NXT}, s{S_NXT}, 0x80000
    s_and_b32 s{S_NXT}, s{S_NXT}, 0x180000
    s_xor_b32 s{S_RST}, s{S_CUR}, 0x100000
    s_mov_b32 s{S_NOCHK}, s{S_BUD}
    """)
    nC = o.get('nC', 0)
    assert nC <= nvx
    cm = [x for gr in grps[8-nC:] for x in gr[:-1]] if nC else []
    if o.get('lite'): upd2 = upd2[:1] + [f's_mov_b32 m0, s{S_STEP}', f'v_writelane_b32 v255, s{S_ST}, m0', f's_memrealtime s[{S_ST}:{S_ST+1}]'] + upd2[1:]
    cwork = upd2[:1] + weave(cm, upd2[1:] + zero(V_VWM, 36), 0, 1, 2) + (['s_nop 0']*8 if o.get('noVW') else vwx_cvt(1))
    def taker(work):
        def take(n):
            while n > 0 and work:
                x = work.pop(0); p(x); n -= 2 if x.startswith('v_mfma') else 1
            p(delay(n))
        return take
    for i in range(4):
        p0(f'R_cr{i}{sfx}:\ns_cmp_eq_u32 s{S_NOCHK}, 0\ns_cbranch_scc1 R_cg{i}{sfx}')
        for k in range(i, 4): p0(ld(4, MEM+4*k, V_CLD, S_CUR, 1024*k))
        count(0); p0(budget())
        p0(f's_mov_b32 s{S_NOCHK}, s{S_BUD}')
        if i == 0: p0(zero(V_ACC1, 24)); p0(f's_branch R_cw0{sfx}')
        else:
            p0(f's_waitcnt vmcnt({3-i})'); p0(chk(i))
            p0(f's_cbranch_vccz R_cg{i}{sfx}\ns_branch R_cr{i}{sfx}')
    p(f'R_step{sfx}:')
    take = taker(cwork)
    if sC:
        take(1); p(FC_()); take(max(o.get('dC', 20) - 1, 0))
        spin(f'R_fc{sfx}', V_FCV, FC_, S_STEP)
        take(o.get('dC2', 0))
    else: take(o.get('dC', 30))
    for i in range(4):
        p(ld(4, MEM+4*i, V_CLD, S_CUR, 1024*i), f'c{i}')
        if i < 3: take(o.get('gC', 0))
    p(cwork)
    pre = o.get('preA', 2) if sA else 0
    m = mf(0); ck = chk(0); c2 = [x.replace(f'v{c0}', f'v{c1}') for x in chk(1)]
    p([f'R_cw0{sfx}:', '@wait c0', m[0], ck[0], ck[1], m[1], ck[2], m[2], '@wait c1', c2[0], m[3], c2[1], f's_cbranch_vccnz R_cr0{sfx}', f'R_cg0{sfx}:', c2[2], m[4], m[5]])
    for i in range(1, 4):
        p(f's_cbranch_vccnz R_cr{i}{sfx}\nR_cg{i}{sfx}:')
        m = mf(i)
        if i < 3:
            ck = chk(i+1)
            p([m[0], f'@wait c{i+1}', m[1], ck[0], m[2], ck[1], m[3], ck[2], m[4], m[5]])
        else:
            stamp(0)
            rv = s1_red(2)
            p([m[0]] + ([postA] if pA == 0 else []) + [m[1], m[2], rv[0], m[3], rv[1], m[4], rv[2], m[5], rv[3]])
    Q = V_T + 16
    if pA == 1: p(postA)
    if pre >= 4: p(FA_())
    p(s1_red(0))
    if pA == 2: p(postA)
    if pre >= 3: p(FA_())
    p(s1_red(1))
    if pA == 3: p(postA)
    if pre >= 2: p(FA_())
    p(f's_cmp_eq_u32 s{S_STEP}, {NSEG-1}\ns_waitcnt lgkmcnt(4)\ns_barrier')
    if w == 3:
        for wv in range(4): p(f'ds_read_b128 {vr(Q+4*wv,4)}, v{V_L1R} offset:{wv*1024}')
    if pre >= 1: p(FA_())
    p(f's_waitcnt lgkmcnt({4 if w == 3 else 0})\ns_barrier')
    stamp(1)
    GV = V_T + 44; GX = V_T
    lv = [ld(4, GV, V_ALV, S_CUR, 0), ld(4, GV+4, V_ALV, S_CUR, 1024) + '@v']
    ls = [ld(4, GX, V_ALD, S_CUR, 0) + '@x0', ld(4, GX+4, V_ALD, S_CUR, 1024) + '@x1', ld(2, GX+8, V_ALM, S_CUR, 0) + '@m']
    strip = lambda l: [x.split('@')[0] for x in l]
    zw = zero(V_ACC1, 24)
    ool = []
    def vt_persist():
        out = []
        for r in range(4):
            ad = V_L1R if r < 2 else V_L1R2
            for wv in range(4): out.append(f'ds_read_b32 v{Q+4*wv+r}, v{ad} offset:{wv*1024 + r*128}')
        fin_ = ['s_waitcnt lgkmcnt(0)']
        for wv in range(1, 4):
            for k in (0, 2): fin_.append(f'v_pk_add_f32 {vr(Q+k,2)}, {vr(Q+k,2)}, {vr(Q+4*wv+k,2)}')
        fin_ += [f'v_cvt_pk_bf16_f32 v{V_KEEP}, v{Q}, v{Q+1}', f'v_cvt_pk_bf16_f32 v{V_KEEP+1}, v{Q+2}, v{Q+3}']
        return out, fin_
    if w == 0:
        Q0 = V_T
        for wv in range(4):
            p(f'ds_read_b128 {vr(Q0+8*wv,4)}, v{V_L1R} offset:{wv*1024}\nds_read_b128 {vr(Q0+8*wv+4,4)}, v{V_L1R2} offset:{wv*1024}')
        if sA: p(FA_())
        p('s_waitcnt lgkmcnt(4)')
        for k in range(0, 8, 2): p(f'v_pk_add_f32 {vr(Q0+k,2)}, {vr(Q0+k,2)}, {vr(Q0+8+k,2)}')
        p('s_waitcnt lgkmcnt(2)')
        for k in range(0, 8, 2): p(f'v_pk_add_f32 {vr(Q0+k,2)}, {vr(Q0+k,2)}, {vr(Q0+16+k,2)}')
        p('s_waitcnt lgkmcnt(1)')
        for k in range(0, 4, 2): p(f'v_pk_add_f32 {vr(Q0+k,2)}, {vr(Q0+k,2)}, {vr(Q0+24+k,2)}')
        for k in range(2): p(f'v_cvt_pk_bf16_f32 v{V_KEEP+k}, v{Q0+2*k}, v{Q0+2*k+1}')
        if sA and o.get('ev0', 1): p(f'v_cmp_gt_i32 vcc, s{S_TAG}, v{V_FAV}')
        p('s_waitcnt lgkmcnt(0)')
        for k in range(4, 8, 2): p(f'v_pk_add_f32 {vr(Q0+k,2)}, {vr(Q0+k,2)}, {vr(Q0+24+k,2)}')
        for k in range(2, 4): p(f'v_cvt_pk_bf16_f32 v{V_KEEP+k}, v{Q0+2*k}, v{Q0+2*k+1}')
        p(f's_cbranch_scc1 R_last{sfx}')
        ool += [f'R_last{sfx}:', keep, f's_branch {fin_lbl}']
        S = V_T + 32; SP = V_T + 52
        mm = [f'v_mfma_f32_16x16x32_bf16 {vr(S+4,4)}, {vr(V_KXD,4)}, {vr(V_KEEP,4)}, 0',
              f'v_mfma_f32_16x16x32_bf16 {vr(S+8,4)}, {vr(V_KXD+4,4)}, {vr(V_KEEP,4)}, 0',
              f'v_mfma_f32_16x16x32_bf16 {vr(S,4)}, {vr(V_KEEP,4)}, {vr(V_KEEP,4)}, 0']
        pub = lines(f"""
        v_cvt_pk_bf16_f32 v{SP}, v{S+4}, v{S+5}
        v_cvt_pk_bf16_f32 v{SP+1}, v{S+6}, v{S+7}
        v_cvt_pk_bf16_f32 v{SP+2}, v{S+8}, v{S+9}
        v_cvt_pk_bf16_f32 v{SP+3}, v{S+10}, v{S+11}
        {st(4, SP, V_P0, S_CUR, 0, pl)}
        v_cvt_pk_bf16_f32 v{c0}, v{S}, v{S+1}
        v_cvt_pk_bf16_f32 v{c1}, v{S+2}, v{S+3}
        {st(2, c0, V_P1, S_CUR, 0, pl)}
        """)
        take = taker(zw)
        if sA and o.get('ev0', 1):
            p([mm[0], f's_cbranch_vccnz R_nv{sfx}', lv[0], mm[1], lv[1], mm[2]] + pub)
            p.unknown()
            stamp(2)
            take(o.get('dA0', 16))
            p(f'R_nvj{sfx}:')
            sub = Prog(); q2 = VQ(sub)
            sub([f'R_nv{sfx}:', FA_(), mm[1], mm[2]] + pub + zero(V_ACC1, 24)[:min(12, o.get('dA0', 16))])
            if tr: sub(f's_memtime s[{S_ST+4}:{S_ST+5}]')
            sub([f's_min_u32 s{S_SPIN}, s{S_BUD}, 2000', f'R_fa{sfx}:'])
            for k in range(4): sub([f'v_cmp_gt_i32 vcc, s{S_TAG}, v{V_FAV}', FA_(), f's_cbranch_vccz R_fa{sfx}_ok'] + pacer(f'R_fa{sfx}', V_FAV, S_TAG))
            sub([f's_sub_u32 s{S_SPIN}, s{S_SPIN}, 1', f's_cbranch_scc0 R_fa{sfx}', f'R_fa{sfx}_ok:'] + strip(lv) + delay(o.get('dS0', 24)) + [f's_branch R_nvj{sfx}'])
            ool += sub.L
        else:
            p(mm + pub)
            stamp(2)
            if sA: spin(f'R_fa{sfx}', V_FAV, FA_, S_TAG)
            p(lv); take(o.get('dA0', 16))
        p(ls); p(zw)
    else:
        if w == 3:
            if sA and o.get('pre3', 1): p(FA_())
            for wv in range(1, 4):
                p(f's_waitcnt lgkmcnt({3-wv})')
                for k in (0, 2): p(f'v_pk_add_f32 {vr(Q+k,2)}, {vr(Q+k,2)}, {vr(Q+4*wv+k,2)}')
            p(f'v_cvt_pk_bf16_f32 v{Q+4}, v{Q}, v{Q+1}\nv_cvt_pk_bf16_f32 v{Q+5}, v{Q+2}, v{Q+3}')
            p(st(2, Q+4, V_P0, S_CUR, 0, pl))
        if w == 2:
            rd, fin_ = vt_persist()
            p(f's_cbranch_scc1 R_last{sfx}')
            ool += [f'R_last{sfx}:'] + rd + fin_ + [keep, f's_branch {fin_lbl}']
        else: p(f's_cbranch_scc1 {fin_lbl}')
        if sA: spin(f'R_fa{sfx}', V_FAV, FA_, S_TAG)
        work = list(zw)
        if w == 2: work = rd + work
        take = taker(work)
        take(g('dV', 0))
        stamp(2)
        p(lv)
        take(g('dS', 36))
        p(ls); p(work)
        if w == 1: p([st(4, V_SENT, V_P0, S_RST, 0, pl), st(4, V_SENT, V_P1, S_RST, 0, pl)])
        if w == 2: p(fin_)
        if w == 3 and o.get('kvwait'):
            p(f's_and_b32 s{T}, s{S_KVF}, 0xff\ns_cmp_ge_u32 s{T}, 8\ns_cbranch_scc0 R_kvc{sfx}\nR_kvk{sfx}:')
            ool += lines(f"""
            R_kvc{sfx}:
            s_cmp_eq_u32 s{S_BUD}, 0
            s_cbranch_scc1 R_kvk{sfx}
            s_sleep 4
            s_buffer_load_dword s{S_KVF}, {sr(S_WS,4)}, s{S_KVO} glc
            {budget()}
            s_waitcnt lgkmcnt(0)
            s_and_b32 s{T}, s{S_KVF}, 0xff
            s_cmp_ge_u32 s{T}, 8
            s_cbranch_scc0 R_kvc{sfx}
            s_branch R_kvk{sfx}
            """)
    SX, SM = V_T+12, V_T+52
    mx, mt = V_T+10, V_T+11
    vwm = [f'v_smfmac_f32_16x16x64_bf16 {vr(V_VWM+4*tq,4)}, {vr(GV+4*ks,4)}, {ar(WO(tq,ks),8)}, v{V_IDX1}' for tq in range(4) for ks in range(2)]
    vwm_cvt = []
    for tq in range(4):
        D = V_VWM+4*tq
        vwm_cvt.append([f'v_pk_add_f32 {vr(D,2)}, {vr(D,2)}, {vr(D+2,2)}', f'v_cvt_pk_bf16_f32 v{V_BW+8*tq+2}, v{D}, v{D+1}', f'v_cvt_pk_bf16_f32 v{V_BW+8*tq+6}, v{D}, v{D+1}'])
    vck = [f'v_max3_u32 v{c0}, v{GV}, v{GV+1}, v{GV+2}', f'v_max3_u32 v{c1}, v{GV+3}, v{GV+4}, v{GV+5}', f'v_max3_u32 v{c0}, v{c0}, v{GV+6}, v{GV+7}',
           f'v_max_u32 v{c0}, v{c0}, v{c1}', f'v_cmp_eq_u32 vcc, -1, v{c0}']
    p(f'@wait v\nR_aw0{sfx}:')
    p(weave(vwm, vck + vwm_cvt[0][:2]))
    p(f's_cbranch_vccnz R_ar0{sfx}\nR_ag0{sfx}:')
    p(vwm_cvt[0][2:] + vwm_cvt[1][:1])
    late = vwm_cvt[1][1:] + vwm_cvt[2] + vwm_cvt[3]
    def asum(fill, wt):
        return [wt[0], f'v_mfma_f32_16x16x32_bf16 {vr(SX,4)}, {vr(V_SELA,4)}, {vr(GX,4)}, 0',
        wt[1], f'v_mfma_f32_16x16x32_bf16 {vr(SX,4)}, {vr(V_SELB,4)}, {vr(GX+4,4)}, {vr(SX,4)}',
        wt[2], f'v_mfma_f32_16x16x16_bf16 {vr(SM,4)}, {vr(V_SELM,2)}, {vr(GX+8,2)}, 0'] + fill[:5] + [
        f'v_max3_f32 v{mx}, v{SX}, v{SX+1}, v{SX+2}'] + fill[5:] + [
        f'v_cmp_u_f32 vcc, v{SX}, v{SM}',
        f'v_max3_f32 v{mx}, v{mx}, v{SX+3}, v{SM}']
    p(asum(late[:7], ['@wait x0', '@wait x1', '@wait m']))
    p(f'R_ag1{sfx}:')
    E = V_T + 32
    src = [SX, SX+1, SM, SX+2, SX+3]
    prem = [f'v_mul_f32 v{E+k}, s{S_SCL}, v{src[k]}' for k in range(5)]
    sB = o.get('syncB', 1); pB = o.get('posB', 2)
    LR = V_T + 38
    postB = lambda k: (f's_waitcnt lgkmcnt(0)\nv_lshl_add_u32 v{LR}, v{LR}, 30, v{V_WU}\n' + st(1, V_TB, LR, '0', 0, 'sc1')) if (sB and pB == k) else ''
    p(f"""
    {prem[4]}
    {late[7]}
    v_max_f32_dpp v{mt}, v{mx}, v{mx} quad_perm:[2,3,0,1] row_mask:0xf bank_mask:0xf
    v_max_f32_dpp v{mx}, v{mx}, v{mx} quad_perm:[2,3,0,1] row_mask:0xf bank_mask:0xf
    {prem[0]}
    {prem[1]}
    s_cbranch_vccnz R_ar1{sfx}
    R_ah1{sfx}:
    """)
    stamp(3)
    if kx == 'A': p(kxl)
    p(f"""
    v_permlane16_swap_b32 v{mx}, v{mt}
    v_max_f32 v{c0}, v{mx}, v{mt}
    v_max_f32 v{c1}, v{mx}, v{mt}
    {f'ds_sub_rtn_u32 v{LR}, v{V_LC}, v{V_SENT}' if sB else prem[2]}
    {prem[3]}
    v_permlane32_swap_b32 v{c0}, v{c1}
    v_max_f32 v{mx}, v{c0}, v{c1}
    {postB(1)}
    """)
    fm = [f'v_fma_f32 v{E+k}, -v{mx}, s{S_SCL}, v{E+k}' for k in range(5)]
    if sB: fm[2] = prem[2] + '\n' + fm[2]
    p(f"""
    {fm[0]}
    {fm[1]}
    v_exp_f32 v{E}, v{E}
    {fm[2]}
    v_exp_f32 v{E+1}, v{E+1}
    {fm[3]}
    v_exp_f32 v{E+2}, v{E+2}
    {fm[4]}
    v_exp_f32 v{E+3}, v{E+3}
    v_cvt_pk_bf16_f32 v{V_P}, v{E}, v{E+1}
    v_exp_f32 v{E+4}, v{E+4}
    v_cvt_pk_bf16_f32 v{V_P+1}, v{E+2}, 0
    v_cvt_pk_bf16_f32 v{V_P+3}, v{E+2}, 0
    v_cvt_pk_bf16_f32 v{V_P+2}, v{E+3}, v{E+4}
    {f's_add_u32 s{S_CU1}, s{S_CUR}, 0x40000' if o.get('nB2') else ''}
    {postB(2)}
    """)
    fin = [f'v_smfmac_f32_16x16x64_bf16 {vr(V_FIN,4)}, {vr(V_P,4)}, {vr(V_ONES,8)}, v{V_IDX2}'] + \
          [f'v_smfmac_f32_16x16x64_bf16 {vr(V_FIN+4+4*tq,4)}, {vr(V_P,4)}, {vr(V_BW+8*tq,8)}, v{V_IDX2}' for tq in range(4)]
    O = V_T + 40; rc = V_T + 48
    D = V_FIN
    if kx == 'fin' and w == 0: p(weave(fin[:2], kxl) + [fin[2]]); vxf = 0
    else: p(weave(fin[:2], vx2[:vxf]) + [fin[2]])
    p(f"""
    v_pk_add_f32 {vr(rc,2)}, {vr(D,2)}, {vr(D+2,2)}
    {fin[3]}
    v_rcp_f32 v{rc}, v{rc}
    {fin[4]}
    v_rcp_f32 v{rc+1}, v{rc+1}
    {postB(3)}
    """)
    for tq in range(4):
        D = V_FIN + 4 + 4*tq
        p(f'v_pk_add_f32 {vr(D,2)}, {vr(D,2)}, {vr(D+2,2)}\nv_mul_f32 v{O+tq}, v{D}, v{rc}')
        if tq < 3: p(f'v_mul_f32 v{O+4+tq}, v{D+1}, v{rc+1}')
    p(f"""
    ds_write_b128 v{V_L2W0}, {vr(O,4)}
    v_mul_f32 v{O+7}, v{D+1}, v{rc+1}
    ds_write_b128 v{V_L2W1}, {vr(O+4,4)} offset:256
    """)
    sd = o.get('side', 'gap')
    nb, nb2 = o.get('nB', 16), o.get('nB2', 0)
    p(vx2[vxf:])
    if kx == 'gap': p(kxl)
    if sd == 'gap': p(side)
    half = not nb2 and not sB
    if half: p(setexec(S_M_32))
    p('s_waitcnt lgkmcnt(0)\ns_barrier')
    stamp(4)
    Z = V_T + 32
    if not sB or w < 2:
        for wv in range(4): p(f'ds_read_b128 {vr(Z+4*wv,4)}, v{V_L2R} offset:{wv*2048}')
        if half: p(setexec(None))
        for wv in range(1, 4):
            p(f's_waitcnt lgkmcnt({3-wv})')
            for k in (0, 2): p(f'v_pk_add_f32 {vr(Z+k,2)}, {vr(Z+k,2)}, {vr(Z+4*wv+k,2)}')
        p(f'v_cvt_pk_bf16_f32 v{Z+4}, v{Z}, v{Z+1}\nv_cvt_pk_bf16_f32 v{Z+5}, v{Z+2}, v{Z+3}')
        p(st(2, Z+4, V_BST, S_CUR, 0, 'sc1'))
    elif sB: nb = min(32 - 4*nC, nb + o.get('nBx', 9))
    stamp(5)
    if sd == 'B': p(side)
    if kx == 'B': p(kxl)
    GB = [V_T + 48, V_T + 52]; BS = V_T + 40
    at = {}
    def put(i, x): at.setdefault(i, []).extend(x if isinstance(x, list) else [x])
    if sB:
        FL = f's_buffer_load_dwordx8 {sr(S_FB8,8)}, {sr(S_WS,4)}, s{S_FBO2} glc'
        two = o.get('two', 0)
        if two:
            n_ = 4 // two
            FL = '\n'.join(f's_buffer_load_dword{"x%d" % n_ if n_ > 1 else ""} {sr(S_FB8 + n_*k, n_)}, {sr(S_WS,4)}, s{S_FBO2} offset:{k << 16} glc' for k in range(two))
        if w == 3 or (two and w == 2):
            for i in range(o.get('p0', 0), nb, o.get('pB', 5)): put(i, FL)
            F = S_FB8
            chkB = [f's_and_b64 {sr(T,2)}, {sr(F,2)}, {sr(F+2,2)}', f's_and_b64 {sr(T+2,2)}, {sr(F+4,2)}, {sr(F+6,2)}', f's_and_b64 {sr(T,2)}, {sr(T,2)}, {sr(T+2,2)}',
                    f's_and_b32 s{T}, s{T}, s{T+1}', f's_and_b32 s{T}, s{T}, s{S_TB}', f's_cbranch_scc1 R_fb{sfx}_ok']
            if two: chkB = chkB[:1] + chkB[3:5] + chkB[5:] + ['s_nop 1']
            put(nb, [f's_min_u32 s{S_SPIN}, s{S_BUD}, 2000', f'R_fb{sfx}:'] + chkB*o.get('qB', 2) + [FL, f's_sub_u32 s{S_SPIN}, s{S_SPIN}, 1', f's_cbranch_scc0 R_fb{sfx}', f'R_fb{sfx}_ok:'])
        put(nb, ['s_barrier'] + delay(o.get('dB2', 0)))
    put(nb, ld(4, GB[0], V_BLD, S_CUR, 0) + '@b0')
    if tr: put(nb, f's_mem{"real" if tr == 1 else ""}time s[{S_ST+14}:{S_ST+15}]')
    if nb2: put(nb2, ld(4, GB[1], V_BLD, S_CU1, 0) + '@b1')
    if kx == 'P': put(max(nb, nb2), kxl)
    if sC: put(nb + o.get('pC', 6), postC)
    if vx2: put(4*(8-nvx), '@wait vx')
    fill = ([] if tr else pfk)
    if w == 3 and o.get('kvwait'):
        fill = fill + lines(f"""
        s_add_u32 s{S_KVO}, s{S_STEP}, 4
        s_min_u32 s{S_KVO}, s{S_KVO}, 63
        s_lshr_b32 s{S_KVO}, s{S_KVO}, 2
        s_lshl3_add_u32 s{S_KVO}, s{S_KVO}, s{S_V}
        s_lshl_b32 s{S_KVO}, s{S_KVO}, 8
        s_add_u32 s{S_KVO}, s{S_KVO}, {F_KV_}
        """)
    cv = ['s_nop 0']*8 if o.get('noVW') else vwx_cvt(0)
    c = 0
    for k, grp in enumerate(grps[:8-nC]):
        for x in (grp if k < 8-nvx else grp[:-1]):
            if x.startswith('v_mfma'):
                p(at.pop(c, [])); c += 1
                p('s_nop 2' if o.get('noVW') else x)
                if c >= 18 and cv: p(cv.pop(0))
                if fill and (c > nb or not sB): p(fill.pop(0))
            elif not o.get('noVX'): p(x)
    for i in sorted(at): p(at[i])
    p(cv + fill)
    p(f's_mov_b32 s{S_PRV}, s{S_CUR}\ns_mov_b32 s{S_CUR}, s{S_NXT}')
    if tr:
        p('s_waitcnt lgkmcnt(0)')
        for k in range(8): p(f'v_writelane_b32 v255, s{S_ST+2*k}, {k}')
        for k in range(3): p(f'v_writelane_b32 v255, s{S_ST+16+k}, {8+k}')
        p(f'v_writelane_b32 v255, s{S_ST+20}, 11')
        p([f's_lshl_b32 s{T}, s{S_STEP}, 6', 's_mov_b64 exec, 0xffff', st(1, 255, 254, T), 's_mov_b64 exec, -1'] + pfk[:4])
    if w == 3 and o.get('kvwait'):
        p(f's_and_b32 s{T}, s{S_STEP}, 3\ns_cbranch_scc1 R_kvn{sfx}\ns_buffer_load_dword s{S_KVF}, {sr(S_WS,4)}, s{S_KVO} glc\nR_kvn{sfx}:')
    if sC:
        for k in range(o.get('preC', 2)): p(FC_()); p(delay(o.get('gapC', 10)))
    def bsum(s_, fill=[]):
        out = [f'v_mfma_f32_16x16x32_bf16 {vr(BS,4)}, {vr(V_SELA,4)}, {vr(GB[s_],4)}, 0'] + fill
        out += [f'v_cmp_u_f32 vcc, v{BS}, v{BS}']
        out += [f'v_add_f32_dpp v{BS+k}, v{BS+k}, v{BS+k} row_ror:8 row_mask:0xf bank_mask:0xf' for k in range(4)]
        out += [f'v_cvt_pk_bf16_f32 v{BS+4}, v{BS}, v{BS+1}', f'v_cvt_pk_bf16_f32 v{BS+5}, v{BS+2}, v{BS+3}']
        return out
    p('@wait b0')
    p(bsum(0, ([FC_()] if sC else []) + pfv))
    p(f's_cbranch_vccnz R_br{sfx}')
    w1 = None
    if nb2:
        p.q.append('x'); w1 = p.wait('b1'); p.q.pop()
    p(f'R_bg{sfx}:\n' + st(2, BS+4, V_CST, S_CUR, 0, pl))
    stamp(6)
    p(f's_branch R_step{sfx}')
    p0(ool)
    p0(f'R_ar0{sfx}:\ns_cmp_eq_u32 s{S_BUD}, 0\ns_cbranch_scc1 R_ag0{sfx}')
    p0(strip(lv + ls)); count(1); count(3); p0(budget()); p0(zero(V_VWM, 16))
    p0(f's_waitcnt vmcnt(0)\ns_branch R_aw0{sfx}\nR_ar1{sfx}:\ns_cmp_eq_u32 s{S_BUD}, 0\ns_cbranch_scc1 R_ah1{sfx}')
    p0(strip(ls)); count(1); p0(budget())
    p0(asum([], ['s_waitcnt vmcnt(2)', 's_waitcnt vmcnt(1)', 's_waitcnt vmcnt(0)']))
    p0(f's_branch R_ag1{sfx}\nR_br{sfx}:')
    if nb2:
        p0([ld(4, GB[0], V_BLD, S_PRV, 0), w1]); count(2)
        p0(bsum(1)); p0(f's_cbranch_vccz R_bg{sfx}\ns_branch R_br3{sfx}')
    p0(f'R_br2{sfx}:\ns_cmp_eq_u32 s{S_BUD}, 0\ns_cbranch_scc1 R_bg{sfx}')
    p0(ld(4, GB[0], V_BLD, S_PRV, 0))
    p0(f'R_br3{sfx}:'); count(2); p0(budget())
    p0('s_waitcnt vmcnt(0)'); p0(bsum(0))
    p0(f's_cbranch_vccz R_bg{sfx}\ns_branch R_br2{sfx}')

def r_tail(p, o):
    T = S_T
    S0 = o.get('S0', 56); NS = 64 - S0; NI = NS // 2
    assert S0 >= 48 and NS % 4 == 0
    a, b, c_ = 2, 3, 4
    VL, VF, VO, VZ, FL = 5, 6, 7, 8, 9
    SL = 10
    ACC = 16
    PK = 32
    FR = [40, 104, 168]
    SFO, SPO, SOO, SMK = 28, 29, 30, 31
    B = lambda dst, terms, base=None: p(bits(dst, terms, base, c_))
    def tst():
        if o.get('ttrace'): p(f's_memrealtime s[60:61]\ns_waitcnt lgkmcnt(0)\ns_mov_b32 m0, s62\nv_writelane_b32 v250, s60, m0\ns_add_u32 s62, s62, 1')
    if o.get('ttrace'): p('s_mov_b32 s62, 0\nv_mov_b32 v250, 0')
    tst()
    p(ssum(SFO, [(S_V, 8)], F_OV_ + 192))
    B(VZ, [(0, 4, 2)]); p(ld(1, FL, VZ, SFO))
    p(f's_load_dwordx2 s[{S_SRD}:{S_SRD+1}], s[0:1], 80')
    p(ssum(T, [(S_WAVE, 14)])); B(VL, [(0, 6, 4)]); p(f'v_add_u32 v{a}, s{T}, v{VL}')
    for q in range(16): p(f'ds_write_b128 v{a}, {ar(A_WO + 4*q,4)} offset:{q*1024}')
    B(VF, [(4, 2, 9), (0, 4, 4)])
    p(f's_lshr_b32 s{T+2}, s{S_WAVE}, 1\ns_and_b32 s{T+3}, s{S_WAVE}, 1')
    p(ssum(SOO, [(T+2, 19), (S_V, HDS+2), (T+3, 8)], WS_O_, T)); p(f's_xor_b32 s{SOO}, s{SOO}, s{S_GP}')
    p(ssum(SPO, [(S_WAVE, 18), (S_C, 14), (S_V, 11)], WS_PART, T))
    p(f's_add_u32 s{SMK}, s{T+2}, {S0-48}')
    def need(j):
        return f"""
        s_add_u32 s{T+1}, s{SMK}, {2*j}
        RT_n{j}:
        v_readlane_b32 s{T}, v{FL}, s{T+1}
        s_cmp_ge_u32 s{T}, 4
        s_cbranch_scc1 RT_k{j}
        s_cmp_eq_u32 s{S_BUD}, 0
        s_cbranch_scc1 RT_k{j}
        {ld(1, FL, VZ, SFO)}
        {budget()}
        s_waitcnt vmcnt(0)
        s_branch RT_n{j}
        RT_k{j}:
        """
    def load(j, k):
        out = [f's_add_u32 s{T+1}, s{SOO}, {segoff(S0 + 2*j) + ((k >> 2) << HDS) + ((k >> 1) & 1)*4096}'] if k % 2 == 0 else []
        return out + [ld(4, FR[j % 3] + 4*k, VF, T+1, (k & 1)*2048)]
    p('s_waitcnt lgkmcnt(0)\ns_barrier')
    rd = [f'ds_read_b128 {ar(4*q,4)}, v{VL} offset:{q*1024}' for q in range(64)]
    p(rd[:16]); p('s_waitcnt vmcnt(0)')
    p(need(0))
    for k in range(16): p(load(0, k)); p(rd[16+3*k:19+3*k])
    B(a, [(0, 1, 4)]); p(f'v_mov_b32 v{b}, 0x3f80\nv_lshlrev_b32 v{a}, v{a}, v{b}')
    B(b, [(1, 3, 0)]); B(VO, [(4, 2, 1)]); p(f'v_sub_u32 v{b}, v{b}, v{VO}')
    for k in range(2): p(f'v_cmp_eq_u32 vcc, {k}, v{b}\nv_cndmask_b32 v{SL+2+k}, 0, v{a}, vcc')
    for k in (0, 1, 4, 5): p(f'v_mov_b32 v{SL+k}, 0')
    B(VO, [(0, 4, 12), (4, 2, 5)])
    p('s_waitcnt lgkmcnt(0)')
    tst()
    q_ = [('l', 0, k) for k in range(16)]
    ahead = {0: [1, 2]}
    for j in range(1, NI-1): ahead[j] = [j+2] if j+2 < NI-1 else ([NI-1] if j == NI-2 else [])
    for j in range(NI):
        nx = ahead.get(j, [])
        for n_ in nx: p(need(n_))
        todo = [(n_, k) for n_ in nx for k in range(16)]
        for k in range(16):
            i = q_.index(('l', j, k)); del q_[:i+1]
            p(f's_waitcnt vmcnt({len(q_)})')
            for tq in range(4):
                d = ACC + 4*tq
                p(f'v_mfma_f32_16x16x32_bf16 {vr(d,4)}, {ar((k >> 2)*64 + (tq*4 + (k & 3))*4,4)}, {vr(FR[j % 3] + 4*k,4)}, {"0" if k == 0 else vr(d,4)}')
                if todo and (tq == 0 or (tq == 2 and (len(nx) == 2 or j == NI-2))):
                    x = todo.pop(0); p(load(*x)); q_.append(('l',) + x)
        p(f's_add_u32 s{T+1}, s{SPO}, {j << 20}')
        for h in range(2):
            for r in range(4): p(f'v_cvt_pk_bf16_f32 v{PK+2*r+h}, v{ACC+8*h+r}, v{ACC+8*h+4+r}')
        for h in range(2): p(st(4, PK+4*h, VL, T+1, 1024*h, 'sc1')); q_.append(('s', j, h))
        tst()
    p(ssum(T+2, [(S_C, 8)], F_P_)); p(ssum(T+3, [(S_V, 2), (T+2, 0)], 0, T))
    B(a, [(0, 3, 2)])
    nw = 2*NS // 8
    p(f"""
    s_mov_b32 s{S_SRD+2}, 0x800000
    s_mov_b32 s{S_SRD+3}, 0x20000
    s_mul_i32 s{T+4}, s{S_V}, {nw}
    s_add_u32 s{T+4}, s{T+4}, s{S_WAVE}
    v_mov_b32 v{b}, 1
    s_waitcnt vmcnt(0)
    s_barrier
    s_cmp_eq_u32 s{S_WAVE}, 3
    s_cbranch_scc0 RT_q
    s_mov_b64 exec, 1
    {st(1, b, a, T+3, 0, 'sc1')}
    s_mov_b64 exec, -1
    RT_q:
    s_cmp_ge_u32 s{S_WAVE}, {nw}
    s_cbranch_scc1 RT_end
    """)
    p(ssum(SPO, [(T+4, 18), (S_C, 14)], WS_PART, T))
    p(ssum(SOO, [(T+4, 16), (S_C, 7)], S0 << 17, T))
    p(f"""
    RT_p:
    {ld(1, b, a, T+2)}
    {budget()}
    s_waitcnt vmcnt(0)
    v_cmp_ne_u32 vcc, 1, v{b}
    s_cbranch_vccz RT_pk
    s_cmp_lg_u32 s{S_BUD}, 0
    s_cbranch_scc1 RT_p
    RT_pk:
    """)
    tst()
    for k in range(16):
        if k % 4 == 0: p(f's_add_u32 s{T+1}, s{SPO}, {k*1024}')
        p(ld(4, FR[0] + 4*k, VL, T+1, (k & 3)*1024))
    for k in range(16):
        p(f's_waitcnt vmcnt({15-k})')
        for t in range(2):
            d = ACC + 8*(k & 1) + 4*t
            p(f'v_mfma_f32_16x16x32_bf16 {vr(d,4)}, {vr(SL + 2 - 2*t,4)}, {vr(FR[0] + 4*k,4)}, {"0" if k < 2 else vr(d,4)}')
    for k in range(8): p(f'v_cvt_pk_bf16_f32 v{PK+k}, v{ACC+2*k}, v{ACC+2*k+1}')
    for h in range(2): p(st(4, PK+4*h, VO, SOO, 16*h, '', S_SRD))
    tst()
    p('RT_end:')
    if o.get('ttrace'):
        p(ssum(T, [(2, 10), (S_WAVE, 8)], 0xFA00000, T+1)); B(a, [(0, 6, 2)]); p(st(1, 250, a, T))
```

```python
import sys, struct, math
from asmlib import *
from genr import *
import geng
NAME = 'concat_heads__memory_aug_recurrent_mem_tr__linear_attn_block__prompt'
KN = NAME + '_kernel'
def f2u(x): return struct.unpack('<I', struct.pack('<f', x))[0]
S_REG = 99
S_MODE, S_VERI, S_POLV = 3, 4, 5
LDS_MISC = 163840 - 64
RDEF = dict(nB=12, nBx=9, nB2=0, gC=6, kvwait=1, pA=2, dV=6, dS=56, dA0=36, dS0=56, syncC=0, dC=54, kx='fin', posB=2, pB=9, qB=4, wu='v', nvx=2, vxf=2, two=2, p0=0, nC=0, pace=2, dB2=4, preA=1)
def gen(o=None):
    o = dict(RDEF, **(o or {})); o['scl'] = f2u(math.log2(math.e)/math.sqrt(128))
    lists = geng.schedule(o); o['ntask'] = max(len(l) for l in lists) + 1
    p = Prog()
    T = 40; a, b, c = 40, 41, 42
    p(f'''
    s_cmp_ge_u32 s2, 256
    s_cbranch_scc1 L_exit
    s_getpc_b64 s[6:7]
    L_pc0:
    s_load_dwordx2 s[{S_WS}:{S_WS+1}], s[0:1], 96
    s_load_dwordx2 s[{S_DBG}:{S_DBG+1}], s[0:1], 88
    s_getreg_b32 s{S_XCD}, hwreg(HW_REG_XCC_ID, 0, 3)
    s_lshr_b32 s{S_IDX}, s2, 3
    v_lshrrev_b32 v1, 6, v0
    v_readfirstlane_b32 s{S_WAVE}, v1
    v_and_b32 v1, 63, v0
    s_mov_b32 s{S_BUD}, {o.get('budget', 400000)}
    s_lshr_b32 s{S_MODE}, s2, 31
    s_lshr_b32 s{S_VERI}, s2, 31
    s_lshr_b32 s{S_POLV}, s2, 31
    s_lshr_b32 s{S_REG}, s2, 31
    ''')
    if o.get('total') or o.get('gtrace'): p('s_memrealtime s[90:91]')
    if o.get('warm', 1):
        p(ssum(T, [(S_IDX, 9), (S_WAVE, 7)], 0, T+1)); p(bits(a, [(0, 4, 14)], T, c))
        p(f's_mov_b32 s{T}, L_codeend-L_pc0-4\nv_min_u32 v{a}, s{T}, v{a}\ns_mov_b64 exec, 0xffff\nglobal_load_dword v56, v{a}, s[6:7]\ns_mov_b64 exec, -1')
    if o.get('scramble'): p(f's_and_b32 s{S_IDX}, s2, 31')
    for k in range(4): p(f'v_mov_b32 v{44+k}, -1\nv_mov_b32 v{48+k}, 0')
    p(f'''
    v_mov_b32 v{c}, {LDS_MISC}
    ds_write_b64 v{c}, v[48:49]
    s_waitcnt lgkmcnt(0)
    s_add_u32 s{S_WS}, s{S_WS}, 0x1fffff
    s_addc_u32 s{S_WS+1}, s{S_WS+1}, 0
    s_and_b32 s{S_WS}, s{S_WS}, 0xffe00000
    s_mov_b32 s{S_WS+2}, {WS_SIZE}
    s_mov_b32 s{S_WS+3}, 0x20000
    s_barrier
    ''')
    p(ssum(T, [(S_WAVE, 19), (2, 10)], 0, T+1)); p(bits(a, [(0, 6, 4)], None, c))
    p(st(4, 44, a, T, 0, 'sc1'))
    p(f's_xor_b32 s{T+1}, s{T}, 0x42000'); p(st(4, 44, a, T+1, 0, 'sc1'))
    p(f's_add_u32 s{T}, s{T}, {WS_M2 + M2_A}'); p(st(4, 44, a, T, 0, 'sc1'))
    p(ssum(T, [(S_WAVE, 19), (2, 8)], WS_M2, T+1)); p(bits(b, [(0, 4, 4)], T, c))
    p(ssum(T, [(2, 7)], WS_M2 + M2_F)); p(bits(53, [(0, 3, 4)], T, c))
    p(f'''
    v_cmp_gt_u32 vcc, 16, v1
    v_cndmask_b32 v{b}, v53, v{b}, vcc
    s_bfm_b64 exec, 24, 0
    {st(4, 44, b, '0', 0, 'sc1')}
    s_mov_b64 exec, 15
    ''')
    p(ssum(T, [(2, 8), (S_WAVE, 6)], WS_FLAG, T+1)); p(st(4, 48, a, T, 0, 'sc1'))
    p(f'''
    s_mov_b64 exec, -1
    L_role:
    s_cmp_ge_u32 s{S_XCD}, 4
    s_cbranch_scc1 L_G
    ''')
    def register(p, SB, VB):
        p(f'''
        s_mov_b32 s{S_REG}, 1
        s_lshl_b32 s{SB}, 1, s{S_IDX}
        s_lshl_b32 s{SB+2}, s{S_XCD}, 5
        v_mov_b32 v{VB+2}, s{SB}
        v_mov_b32 v{VB+3}, s{SB+1}
        v_mov_b32 v{VB}, s{SB+2}
        s_mov_b64 exec, 1
        global_atomic_add_x2 v[254:255], v{VB}, v[{VB+2}:{VB+3}], s[{S_DBG}:{S_DBG+1}] sc0 sc1
        s_mov_b64 exec, -1
        ''')
    def greg(p):
        p(f's_add_u32 s48, s{S_WAVE}, s{S_VERI}\ns_cmp_eq_u32 s48, 0\ns_cbranch_scc0 G_reg\ns_mov_b32 s49, 0x100')
        register(p, 48, 30); p('G_reg:')
    NR = 1
    SB = 60; VB = V_T + 20
    def race0(p):
        p(f's_lshl2_add_u32 s{SB}, s2, s{S_WAVE}\ns_lshl_b32 s{SB}, s{SB}, 7\ns_and_b32 s{SB+1}, s{SB}, 0x1e000\ns_add_u32 s{SB}, s{SB}, s{SB+1}')
        p(f'''
        s_and_b32 s{SB+4}, s{S_WAVE}, 1
        s_lshl_b32 s{SB+1}, s{SB+4}, 13
        s_add_u32 s{SB}, s{SB}, s{SB+1}
        s_add_u32 s{SB}, s{SB}, {WS_FLAG + 0x100000}
        s_xor_b32 s{SB+1}, s{SB}, 0x2000
        s_buffer_load_dword s{SB+2}, {sr(S_WS,4)}, s{SB} glc
        s_buffer_load_dword s{SB+3}, {sr(S_WS,4)}, s{SB+1} glc
        ''')
    def race1(p):
        p(f'''
        s_cmp_lg_u32 s{S_VERI}, 0
        s_cbranch_scc1 R_race_skip
        s_not_b64 s[{SB+8}:{SB+9}], s[{SB+2}:{SB+3}]
        s_mov_b64 s[{SB+2}:{SB+3}], s[{SB+8}:{SB+9}]
        s_mov_b32 s{SB+5}, 2000
        s_buffer_load_dword s{SB+2}, {sr(S_WS,4)}, s{SB} glc
        s_buffer_load_dword s{SB+3}, {sr(S_WS,4)}, s{SB+1} glc
        R_race0:
        s_xor_b64 s[{SB+6}:{SB+7}], s[{SB+2}:{SB+3}], s[{SB+8}:{SB+9}]
        s_sub_u32 s{SB+5}, s{SB+5}, 1
        s_cselect_b64 s[{SB+6}:{SB+7}], -1, s[{SB+6}:{SB+7}]
        s_cmp_eq_u64 s[{SB+6}:{SB+7}], 0
        s_cbranch_scc1 R_race0
        R_race_skip:
        ''')
    def race(p, nout):
        p(f'''
        s_cmp_lg_u32 s{S_VERI}, 0
        s_cbranch_scc1 R_race_end
        s_waitcnt vmcnt({nout})
        s_sub_u32 s{SB+6}, s{SB+6}, s{SB+7}
        s_sub_u32 s{SB+7}, 0, s{SB+6}
        s_cmp_eq_u32 s{SB+4}, 0
        s_cselect_b32 s{SB+6}, s{SB+6}, s{SB+7}
        s_add_u32 s{SB+6}, s{SB+6}, 0x101
        v_mov_b32 v{VB}, {LDS_MISC}
        v_mov_b32 v{VB+1}, s{SB+6}
        s_mov_b64 exec, 1
        ds_add_rtn_u32 v{VB+1}, v{VB}, v{VB+1}
        s_waitcnt lgkmcnt(0)
        v_readfirstlane_b32 s{SB+7}, v{VB+1}
        s_mov_b64 exec, -1
        s_add_u32 s{SB+6}, s{SB+6}, s{SB+7}
        s_cmp_lt_u32 s{SB+6}, 0x400
        s_cbranch_scc1 R_race_end
        s_and_b32 s{SB+6}, s{SB+6}, 0xff
        s_lshl_b32 s{SB+1}, s{SB+6}, 18
        s_add_u32 s{SB+1}, s{SB+1}, 0x100
        ''')
        register(p, SB, VB)
        p('R_race_end:')
    o['hook_race'] = race; o['hook_race1'] = race1
    o['hook_reg'] = greg
    def verify(p, lbl, SB=48, VB=30, also=''):
        p(f'''
        s_cmp_lg_u32 s{S_VERI}, 0
        s_cbranch_scc1 {lbl}_ok
        v_and_b32 v{VB}, 7, v1
        v_lshlrev_b32 v{VB}, 5, v{VB}
        {lbl}:
        global_load_dwordx2 v[{VB+2}:{VB+3}], v{VB}, s[{S_DBG}:{S_DBG+1}] sc1
        {budget()}
        s_mov_b32 s{SB}, 0
        s_waitcnt vmcnt(0)
        ''')
        for k in range(8): p(f'v_readlane_b32 s{SB+1}, v{VB+3}, {k}\ns_lshr_b32 s{SB+1}, s{SB+1}, 8\ns_add_u32 s{SB}, s{SB}, s{SB+1}')
        p(f'''
        s_and_b32 s{SB+1}, s{SB}, 0x3ff
        s_cmp_ge_u32 s{SB+1}, 256
        s_cbranch_scc1 {lbl}_all
        s_cmp_eq_u32 s{S_BUD}, 0
        s_cbranch_scc1 {lbl}_all
        s_sleep 2
        s_branch {lbl}
        {lbl}_all:
        s_mov_b32 s{S_VERI}, 1
        s_lshr_b32 s{SB}, s{SB}, 10
        s_cmp_gt_u32 s{SB}, {512*NR}
        s_cselect_b32 s{S_POLV}, 1, 0
        s_xor_b32 s{S_GP}, s{S_POLV}, {o.get('gside', 1)}
        s_lshl_b32 s{S_GP}, s{S_GP}, 13
        v_bfe_u32 v{VB+1}, v{VB+3}, 8, 10
        v_cmp_ne_u32 s[{SB+2}:{SB+3}], 32, v{VB+1}
        v_and_b32 v{VB+1}, 0xff, v{VB+3}
        v_cmp_ne_u32 s[{SB+4}:{SB+5}], 0, v{VB+1}
        v_cmp_ne_u32 vcc, -1, v{VB+2}
        s_or_b64 s[{SB+4}:{SB+5}], s[{SB+4}:{SB+5}], s[{SB+2}:{SB+3}]
        s_or_b64 vcc, vcc, s[{SB+4}:{SB+5}]
        {'s_mov_b64 vcc, -1' if o.get('forceslow') else ''}
        s_cbranch_vccz {lbl}_ok
        v_mov_b32 v{VB}, {LDS_MISC + 8}
        s_waitcnt vmcnt(0) lgkmcnt(0)
        s_cmp_eq_u32 s{S_REG}, 1
        s_cbranch_scc0 {lbl}_t
        s_mov_b64 exec, 1
        ds_write_b32 v{VB}, v255
        s_mov_b64 exec, -1
        s_waitcnt lgkmcnt(0)
        {lbl}_t:
        s_barrier
        ds_read_b32 v{VB+1}, v{VB}
        s_waitcnt lgkmcnt(0)
        v_readfirstlane_b32 s{S_IDX}, v{VB+1}
        s_bfe_u32 s{S_IDX}, s{S_IDX}, 0x50008
        s_cmp_eq_u64 s[{SB+2}:{SB+3}], 0
        {'s_cmp_eq_u32 s2, -1' if o.get('forceslow') else ''}
        s_cbranch_scc1 L_role
        s_mov_b32 s{S_MODE}, 1
        s_and_b32 s{S_XCD}, s2, 7
        s_lshr_b32 s{S_IDX}, s2, 3
        {f's_lshr_b32 s{S_XCD}, s2, 5' if o.get('forceslow') == 2 else ''}
        {f's_and_b32 s{S_IDX}, s2, 31' if o.get('forceslow') == 2 else ''}
        s_branch L_role
        {lbl}_ok:
        ''')
    race0(p); r_setup(p, o); r_weights(p, o)
    if o.get('total'): p('s_memrealtime s[60:61]\ns_waitcnt lgkmcnt(0)\ns_mov_b32 s6, s60')
    p(ssum(S_KVO, [(S_V, 8)], F_KV_)); p(f'v_mov_b32 v{V_T+36}, 0\nv_mov_b32 v{V_T+37}, 0')
    verify(p, 'RV', S_T, V_T+20)
    p(f's_mov_b32 s{S_POL}, {o["pol"] if "pol" in o else "s%d" % S_POLV}')
    p(f's_cmp_lg_u32 s{S_MODE}, 0\ns_cbranch_scc1 L_Rslow')
    def rstat():
        if not o.get('total'): return
        S = S_ST
        p(f'''
        s_memtime s[{S}:{S+1}]
        s_memrealtime s[{S+2}:{S+3}]
        s_waitcnt lgkmcnt(0)
        s_mov_b32 s{S+5}, s{S+2}
        s_sub_u32 s{S}, s{S}, s{S+22}
        s_sub_u32 s{S+1}, s{S+2}, s{S+24}
        s_mov_b32 s{S+2}, s{S_BUD}
        s_mov_b32 s{S+3}, s90
        s_mov_b32 s{S+4}, s{S+24}
        s_mov_b32 s{S+6}, s{S_POL}
        s_mov_b32 s{S+7}, s{S_MODE}
        s_mov_b32 s{S+8}, s6
        s_lshl2_add_u32 s36, s2, s{S_WAVE}
        s_lshl_b32 s36, s36, 7
        s_add_u32 s36, s36, {0xF900000}
        v_mov_b32 v2, 0
        ''')
        for k in range(20): p(f'v_mov_b32 v{4+k}, s{S+k}')
        for k in range(5): p(st(4, 4+4*k, 2, 36, 16*k))
        if o.get('lite'): p(ssum(36, [(2, 10), (S_WAVE, 8)], 0xFB00000, 37)); p(f'v_lshlrev_b32 v2, 2, v1\n' + st(1, 255, 2, 36))
    r_loop(p, o, '', '')
    p('L_Rtail:'); rstat()
    r_tail(p, o)
    if o.get('total'):
        p(f's_memrealtime s[60:61]\ns_lshl2_add_u32 s36, s2, s{S_WAVE}\ns_lshl_b32 s36, s36, 7\ns_add_u32 s36, s36, {0xF900000 + 36}\nv_mov_b32 v2, 0\ns_waitcnt lgkmcnt(0)\nv_mov_b32 v4, s60\n' + st(1, 4, 2, 36))
    p('s_endpgm\nL_Rslow:')
    r_loop(p, dict(o, trace=0), 's', 'sc1')
    p('s_branch L_Rtail\nL_exit:\ns_endpgm\nL_G:')
    geng.g_role(p, o, verify)
    body = p.finish(o.get('verbose'))
    hdr = open('cdna_kernels/' + NAME + '.s.ref').read().split('; Override launch')[0] if not o.get('nohdr') else ''
    src = hdr + '; @launch grid=(256,1,1) block=(256,1,1) lds=163840\n'
    src += f'.amdgcn_target "amdgcn-amd-amdhsa--gfx950"\n.text\n.globl {KN}\n.p2align 8\n.type {KN},@function\n{KN}:\n'
    src += body + 's_endpgm\n' + geng.table(lists, o['ntask']) + 'L_codeend:\n'
    src += f'''.section .rodata,"a"
.p2align 6
.amdhsa_kernel {KN}
  .amdhsa_next_free_vgpr 512
  .amdhsa_next_free_sgpr 102
  .amdhsa_accum_offset 256
  .amdhsa_group_segment_fixed_size 0
  .amdhsa_kernarg_size 104
  .amdhsa_user_sgpr_count 2
  .amdhsa_user_sgpr_kernarg_segment_ptr 1
  .amdhsa_system_sgpr_workgroup_id_x 1
  .amdhsa_float_denorm_mode_32 3
.end_amdhsa_kernel
'''
    return src
if __name__ == '__main__':
    src = gen(eval(sys.argv[1]) if len(sys.argv) > 1 else None)
    open('cdna_kernels/' + NAME + '.s', 'w').write(src)
    print(len(src), 'bytes')
```
